```python
import torch

def _softmax(x, axis=-1):
    return torch.softmax(x, dim=axis)
def _gelu(x):
    return torch.nn.functional.gelu(x, approximate="tanh")
def _silu(x):
    return torch.nn.functional.silu(x)
def _sigmoid(x):
    return torch.sigmoid(x)
def _layernorm(x, axis=-1, eps=1e-5):
    m = x.mean(dim=axis, keepdim=True)
    v = x.var(dim=axis, keepdim=True, unbiased=False)
    return (x - m) / torch.sqrt(v + eps)
def _scatter_add(tgt, idx, src, axis=0):
    return tgt.clone().index_add_(axis, idx, src)
def _segment_sum(src, seg, n):
    out = torch.zeros((n,) + src.shape[1:], dtype=src.dtype)
    return out.index_add_(0, seg, src)
def _pad(x, pw):
    flat = tuple(v for pair in reversed(pw) for v in pair)
    return torch.nn.functional.pad(x, flat)

kernel_name = 'sequential_preLN__sliding_block__mixer_token_mlp__prompt'

def setup_inputs():

    _w = (lambda a: (lambda t: t.to(torch.bfloat16) if t.is_floating_point() else t)(torch.as_tensor(a)))
    def _A_setup():
        B, S, D = 1, 2048, 448
        return {
            "x": _w((lambda *s: torch.randn(*s, dtype=torch.bfloat16) * 0.05)(B, S, D)),
            "wqkv": _w((lambda *s: torch.randn(*s, dtype=torch.bfloat16) * 0.05)(D, 3 * D)),
            "wo": _w((lambda *s: torch.randn(*s, dtype=torch.bfloat16) * 0.05)(D, D)),
        }
    _A_in = _A_setup()

    def _B_setup():
        B, S, D, F = 1, 2048, 448, 1792
        return {
            "x": _w((lambda *s: torch.randn(*s, dtype=torch.bfloat16) * 0.05)(B, S, D)),
            "w1": _w((lambda *s: torch.randn(*s, dtype=torch.bfloat16) * 1.6)(S, F) * (S ** -0.5)),
            "b1": _w((lambda *s: torch.randn(*s, dtype=torch.bfloat16) * 1.6)(F) * 0.02),
            "w2": _w((lambda *s: torch.randn(*s, dtype=torch.bfloat16) * 0.2)(F, S) * (F ** -0.5)),
            "b2": _w((lambda *s: torch.randn(*s, dtype=torch.bfloat16) * 0.2)(S) * 0.02),
        }
    _B_in = _B_setup()

    return {
        "A_x": _A_in["x"],
        "A_wqkv": _A_in["wqkv"],
        "A_wo": _A_in["wo"],
        "B_x": _B_in["x"],
        "B_w1": _B_in["w1"],
        "B_b1": _B_in["b1"],
        "B_w2": _B_in["w2"],
        "B_b2": _B_in["b2"],
    }

def reference(A_x, A_wqkv, A_wo, B_x, B_w1, B_b1, B_w2, B_b2):
    def _A_ref(x, wqkv, wo):
        B, S, D = x.shape
        H = 16; Dh = D // H; W = 256
        qkv = (lambda x, *d: x.permute(*d))((x @ wqkv).reshape(B, S, 3, H, Dh), 2, 0, 3, 1, 4)
        q, k, v = qkv[0], qkv[1], qkv[2]
        scores = torch.einsum("bhqd,bhkd->bhqk", q, k) * (Dh ** -0.5)
        idx = torch.arange(S)
        mask = (idx[:, None] - idx[None, :] >= 0) & (idx[:, None] - idx[None, :] < W)
        scores = torch.where(mask[None, None], scores, -1e9)
        p = _softmax(scores, axis=-1)
        o = torch.einsum("bhqk,bhkd->bhqd", p, v)
        return (lambda x, *d: x.permute(*d))(o, 0, 2, 1, 3).reshape(B, S, D) @ wo

    def _B_ref(x, w1, b1, w2, b2):
        B, S, D = x.shape
        h = _layernorm(x, axis=-1)
        u = torch.einsum("bsd,sf->bdf", h, w1) + b1
        u = _gelu(u)
        y = torch.einsum("bdf,fs->bds", u, w2) + b2
        return (lambda x, *d: x.permute(*d))(y, 0, 2, 1)

    x = A_x
    h = x + _A_ref(_layernorm(x, axis=-1), A_wqkv, A_wo)
    h2 = h + _B_ref(_layernorm(h, axis=-1), B_w1, B_b1, B_w2, B_b2)
    return h2
```

```python
class Asm:
    def __init__(self):
        self.lines = []
        self._lab = 0
    def __call__(self, s=""):
        for l in s.split("\n"):
            l = l.strip()
            if not l:
                continue
            if l.endswith(":") or l.startswith("."):
                self.lines.append(l)
            else:
                self.lines.append("    " + l)
    def c(self, s):
        self.lines.append("    ; " + s)
    def label(self, base="L"):
        self._lab += 1
        return f"{base}_{self._lab}"
    def text(self):
        return "\n".join(self.lines) + "\n"

def v(a, n=1):
    return f"v{a}" if n == 1 else f"v[{a}:{a+n-1}]"
def s(a, n=1):
    return f"s{a}" if n == 1 else f"s[{a}:{a+n-1}]"
def acc(a, n=1):
    return f"a{a}" if n == 1 else f"a[{a}:{a+n-1}]"

class Regs:
    def __init__(self, start=0, limit=256):
        self.n = start
        self.limit = limit
        self.hi = start
    def get(self, cnt=1, align=1):
        self.n = (self.n + align - 1) // align * align
        r = self.n
        self.n += cnt
        assert self.n <= self.limit, f"out of regs {self.n}"
        self.hi = max(self.hi, self.n)
        return r
    def mark(self):
        return self.n
    def reset(self, m):
        self.n = m

def f32bits(x):
    import struct
    return struct.unpack("<I", struct.pack("<f", x))[0]
def hexf(x):
    return f"0x{f32bits(x):08x}"

def srd(a, sd, sp, nbytes, off=0):
    if off:
        a(f"s_add_u32 s{sd}, s{sp}, {off}")
        a(f"s_addc_u32 s{sd+1}, s{sp+1}, 0")
    else:
        a(f"s_mov_b32 s{sd}, s{sp}")
        a(f"s_mov_b32 s{sd+1}, s{sp+1}")
    a(f"s_mov_b32 s{sd+2}, {nbytes}")
    a(f"s_mov_b32 s{sd+3}, 0x00020000")

def kernel_header(a, name):
    a(".text")
    a(f".globl {name}")
    a(".p2align 8")
    a(f".type {name},@function")
    a(f"{name}:")

def kernel_desc(a, name, vgprs, agprs=0, sgprs=102):
    acc_off = (vgprs + 3) // 4 * 4
    total = acc_off + agprs if agprs else vgprs
    a('.section .rodata,"a"')
    a(".p2align 6")
    a(f".amdhsa_kernel {name}")
    a(f".amdhsa_next_free_vgpr {total}")
    a(f".amdhsa_next_free_sgpr {sgprs}")
    a(f".amdhsa_accum_offset {acc_off}")
    a(".amdhsa_group_segment_fixed_size 0")
    a(".amdhsa_kernarg_size 88")
    a(".amdhsa_user_sgpr_count 2")
    a(".amdhsa_user_sgpr_kernarg_segment_ptr 1")
    a(".amdhsa_system_sgpr_workgroup_id_x 1")
    a(".amdhsa_float_denorm_mode_32 3")
    a(".end_amdhsa_kernel")
```

```python
from asmlib import *
from layout import *
from gemm import stamp, stamp_flush

def attn_kernel(a, name, diag=False, kidx=1, opts={}):
    NWG = 256
    VB = 24 * 1024
    LDS = 48 * 1024
    tbx = int(opts.get("k2tb", opts.get("k1tb", 4)))
    sWS = 8
    rQ, rO = 12, 16
    sWave, sH, sTb, sT0, sT1, sNeg, sHb, sL = 28, 29, 30, 33, 34, 35, 36, 37
    mPar, mA, mB = 52, 54, 56
    mk = [72, 74, 76, 78]
    sTS = 60
    R = Regs(1)
    vL = R.get(); vLo = R.get(); vKa = R.get(); vVa = R.get(); vSt = R.get()
    vT = R.get(8, 2)
    vQf = R.get(4, 4)
    vO = R.get(8, 4)
    vS = R.get(72, 4)
    vP = R.get(36, 4)
    vF = R.get(72, 4)
    done = f"{name}_done"
    kernel_header(a, name)
    a(f"s_cmp_ge_u32 s2, {NWG}")
    a(f"s_cbranch_scc1 {done}")
    stamp(a, 0, sTS, diag, kidx)
    a(f"s_load_dwordx2 s[{sWS}:{sWS+1}], s[0:1], {KA_WS}")
    a(f"v_lshrrev_b32 v{vT}, 6, v0")
    a(f"v_and_b32 v{vL}, 63, v0")
    a(f"v_readfirstlane_b32 s{sWave}, v{vT}")
    nx = 16 // tbx; hx = 8 // nx
    lg = lambda n: n.bit_length() - 1
    a(f"s_and_b32 s{sT0}, s2, 7")
    a(f"s_lshr_b32 s{sT1}, s2, 3")
    a(f"s_lshr_b32 s{sTb}, s{sT0}, {lg(hx)}")
    a(f"s_lshl_b32 s{sTb}, s{sTb}, {lg(tbx)}")
    a(f"s_and_b32 s{sH}, s{sT1}, {tbx-1}")
    a(f"s_add_u32 s{sTb}, s{sTb}, s{sH}")
    a(f"s_and_b32 s{sH}, s{sT0}, {hx-1}")
    a(f"s_lshl_b32 s{sH}, s{sH}, {lg(16//hx)}")
    a(f"s_lshr_b32 s{sT1}, s{sT1}, {lg(tbx)}")
    a(f"s_add_u32 s{sH}, s{sH}, s{sT1}")
    a(f"v_lshlrev_b32 v{vLo}, 4, v{vL}")
    a(f"s_lshl_b32 s{sHb}, s{sH}, 17")
    a(f"s_mul_i32 s{sL}, s{sWave}, 3072")
    a(f"s_lshl_b32 s{sT0}, s{sTb}, 3")
    a(f"s_mul_i32 s{sT1}, s{sWave}, 3")
    a(f"s_add_u32 s{sT1}, s{sT1}, s{sT0}")
    a(f"s_sub_u32 s{sT1}, s{sT1}, 16")
    for i in range(3):
        a(f"s_add_i32 s{40+i}, s{sT1}, {i}")
        a(f"s_max_i32 s{40+i}, s{40+i}, 0")
        a(f"s_lshl_b32 s{40+i}, s{40+i}, 10")
        a(f"s_add_u32 s{40+i}, s{40+i}, s{sHb}")
        a(f"s_add_u32 s{44+i}, s{40+i}, {WS_VF - i*1024}")
        a(f"s_add_u32 s{40+i}, s{40+i}, {WS_KF - i*1024}")
    a(f"s_add_u32 s{sT0}, s{sT0}, s{sWave}")
    a(f"s_lshl_b32 s{sT1}, s{sT0}, 10")
    a(f"s_add_u32 s{sT1}, s{sT1}, s{sHb}")
    a(f"s_mov_b32 m0, s{sL}")
    a("s_waitcnt lgkmcnt(0)")
    srd(a, rQ, sWS, 6 * MB)
    a(f"buffer_load_dwordx4 {v(vQf,4)}, v{vLo}, s[{rQ}:{rQ+3}], s{sT1} offen")
    for i in range(3):
        a(f"buffer_load_dwordx4 v{vLo}, s[{rQ}:{rQ+3}], s{40+i} offen offset:{i*1024} lds")
    a(f"s_add_u32 m0, s{sL}, {VB}")
    srd(a, rO, sWS, 2 * MB, WS_O)
    for i in range(3):
        a(f"buffer_load_dwordx4 v{vLo}, s[{rQ}:{rQ+3}], s{44+i} offen offset:{i*1024} lds")
    stamp(a, 1, sTS, diag)
    a(f"s_sub_i32 s{sNeg}, 16, s{sT0}")
    a(f"s_lshl_b32 s{sT1}, s{sWave}, 10")
    a(f"v_add_u32 v{vKa}, s{sT1}, v{vLo}")
    a(f"s_lshr_b32 s{sT1}, s{sWave}, 1")
    a(f"s_lshl_b32 s{sT1}, s{sT1}, 11")
    a(f"s_add_u32 s{sT1}, s{sT1}, {VB}")
    a(f"v_add_u32 v{vVa}, s{sT1}, v{vLo}")
    for r in range(4):
        pat = sum(1 << l for l in range(64) if 4 * (l >> 4) + r > (l & 15))
        a(f"s_mov_b32 s{mk[r]}, 0x{pat & 0xffffffff:08x}")
        a(f"s_mov_b32 s{mk[r]+1}, 0x{pat >> 32:08x}")
    a(f"s_and_b32 s{sT1}, s{sH}, 1")
    a(f"s_cmp_eq_u32 s{sT1}, 1")
    a(f"s_cselect_b64 s[{mPar}:{mPar+1}], -1, 0")
    a(f"s_cselect_b32 s{mA}, 0xffff, 0")
    a(f"s_mov_b32 s{mA+1}, 0")
    a(f"s_mov_b32 s{mB}, 0")
    a(f"s_cselect_b32 s{mB+1}, 0, 0xffff0000")
    a(f"s_lshr_b32 s{sT1}, s{sT0}, 1")
    a(f"s_lshl_b32 s{sT1}, s{sT1}, 4")
    a(f"s_add_u32 s{sT1}, s{sT1}, s{sH}")
    a(f"s_lshl_b32 s{sT1}, s{sT1}, 11")
    a(f"s_and_b32 s{sT0}, s{sT0}, 1")
    a(f"s_lshl_b32 s{sT0}, s{sT0}, 8")
    a(f"s_add_u32 s{sT1}, s{sT1}, s{sT0}")
    a(f"v_lshrrev_b32 v{vT}, 4, v{vL}")
    a(f"v_and_b32 v{vT+1}, 15, v{vL}")
    a(f"v_lshlrev_b32 v{vT+1}, 4, v{vT+1}")
    a(f"v_lshl_add_u32 v{vT}, v{vT}, 9, v{vT+1}")
    a(f"v_add_u32 v{vSt}, s{sT1}, v{vT}")
    a(f"v_mov_b32 v{vT+7}, 0xff800000")
    a("s_waitcnt vmcnt(3)")
    a("s_barrier")
    stamp(a, 2, sTS, diag)
    odd = f"{name}_odd"
    a(f"s_bitcmp1_b32 s{sWave}, 0")
    a(f"s_cbranch_scc1 {odd}")
    for par in range(2):
        if par:
            a(f"{odd}:")
        St = lambda t: vS + 4 * (t + par)
        for t in range(8):
            a(f"ds_read_b128 {v(vF+4*t,4)}, v{vKa} offset:{t*1024}")
        for t in range(17):
            if t + 8 < 17:
                a(f"ds_read_b128 {v(vF+4*(t+8),4)}, v{vKa} offset:{(t+8)*1024}")
            a(f"s_waitcnt lgkmcnt({min(8, 16-t)})")
            a(f"v_mfma_f32_16x16x32_bf16 {v(St(t),4)}, {v(vF+4*t,4)}, {v(vQf,4)}, 0")
        a("s_waitcnt vmcnt(0)")
        a("s_barrier")
        for p in range(7):
            for dtile in range(2):
                a(f"ds_read_b128 {v(vF+8*p+4*dtile,4)}, v{vVa} offset:{p*2048+dtile*1024}")
        for r in range(4):
            a(f"v_cndmask_b32 v{St(0)+r}, v{vT+7}, v{St(0)+r}, s[{mk[r]}:{mk[r]+1}]")
        fx = a.label("k2fx")
        for t in range(16):
            a(f"s_cmp_le_i32 s{sNeg}, {t}")
            a(f"s_cbranch_scc1 {fx}")
            for r in range(4):
                a(f"v_mov_b32 v{St(t)+r}, v{vT+7}")
        a(f"{fx}:")
        m0_, m1_ = vT, vT + 1
        a(f"v_max3_f32 v{m0_}, v{St(0)}, v{St(0)+1}, v{St(0)+2}")
        a(f"v_max3_f32 v{m1_}, v{St(0)+3}, v{St(1)}, v{St(1)+1}")
        vals = [St(1) + 2, St(1) + 3] + [St(t) + r for t in range(2, 16) for r in range(4)]
        ch = 0
        for i in range(0, len(vals), 2):
            m = (m0_, m1_)[ch]; ch ^= 1
            a(f"v_max3_f32 v{m}, v{m}, v{vals[i]}, v{vals[i+1]}")
        for r in range(4):
            a(f"v_cndmask_b32 v{St(16)+r}, v{St(16)+r}, v{vT+7}, s[{mk[r]}:{mk[r]+1}]")
        a(f"v_max3_f32 v{m0_}, v{m0_}, v{St(16)}, v{St(16)+1}")
        a(f"v_max3_f32 v{m1_}, v{m1_}, v{St(16)+2}, v{St(16)+3}")
        a(f"v_max_f32 v{m0_}, v{m0_}, v{m1_}")
        a(f"v_mov_b32 v{m1_}, v{m0_}")
        a("s_nop 1")
        a(f"v_permlane32_swap_b32 v{m0_}, v{m1_}")
        a("s_nop 0")
        a(f"v_max_f32 v{m0_}, v{m0_}, v{m1_}")
        a(f"v_mov_b32 v{m1_}, v{m0_}")
        a("s_nop 1")
        a(f"v_permlane16_swap_b32 v{m0_}, v{m1_}")
        a("s_nop 0")
        a(f"v_max_f32 v{m0_}, v{m0_}, v{m1_}")
        empty = 17 if par == 0 else 0
        a(f"v_mov_b32 v{vP+2*empty}, 0")
        a(f"v_mov_b32 v{vP+2*empty+1}, 0")
        def softmax_pair(p):
            sl = [x for x in (2 * p, 2 * p + 1) if x != empty]
            regs = [vS + 4 * x + r for x in sl for r in range(4)]
            for r in regs:
                a(f"v_sub_f32 v{r}, v{r}, v{m0_}")
            for r in regs:
                a(f"v_exp_f32 v{r}, v{r}")
            return sl
        def pack_pair(sl):
            for x in sl:
                a(f"v_cvt_pk_bf16_f32 v{vP+2*x}, v{vS+4*x}, v{vS+4*x+1}")
                a(f"v_cvt_pk_bf16_f32 v{vP+2*x+1}, v{vS+4*x+2}, v{vS+4*x+3}")
        def pv(p):
            for dtile in range(2):
                c = "0" if p == 0 else v(vO + 4 * dtile, 4)
                a(f"v_mfma_f32_16x16x32_bf16 {v(vO+4*dtile,4)}, {v(vF+8*p+4*dtile,4)}, {v(vP+4*p,4)}, {c}")
        sl = softmax_pair(0)
        a("s_nop 0")
        pack_pair(sl)
        for p in range(9):
            if p + 1 < 9:
                sl = softmax_pair(p + 1)
            if p == 0:
                a("s_waitcnt lgkmcnt(0)")
                for pp in range(7, 9):
                    for dtile in range(2):
                        a(f"ds_read_b128 {v(vF+8*pp+4*dtile,4)}, v{vVa} offset:{pp*2048+dtile*1024}")
            if p == 7:
                a("s_waitcnt lgkmcnt(0)")
            if p == 8:
                a("s_nop 1")
            pv(p)
            if p + 1 < 9:
                pack_pair(sl)
        stamp(a, 3, sTS, diag)
        a("s_nop 7")
        a(f"v_cndmask_b32 v{vT+2}, v{vO+4}, v{vO}, s[{mPar}:{mPar+1}]")
        a(f"v_mov_b32 v{vT+3}, v{vT+2}")
        a("s_nop 1")
        a(f"v_permlane32_swap_b32 v{vT+2}, v{vT+3}")
        a("s_nop 0")
        a(f"v_cndmask_b32 v{vT+2}, v{vT+3}, v{vT+2}, s[{mPar}:{mPar+1}]")
        a(f"v_mov_b32 v{vT+3}, v{vT+2}")
        a("s_nop 1")
        a(f"v_permlane16_swap_b32 v{vT+2}, v{vT+3}")
        a("s_nop 0")
        a(f"v_cndmask_b32 v{vT+2}, v{vT+3}, v{vT+2}, s[{mPar}:{mPar+1}]")
        a(f"v_rcp_f32 v{vT+2}, v{vT+2}")
        a("s_nop 0")
        for r in range(8):
            a(f"v_mul_f32 v{vO+r}, v{vO+r}, v{vT+2}")
        for r in range(4):
            a(f"v_cvt_pk_bf16_f32 v{vQf+r}, v{vO+2*r}, v{vO+2*r+1}")
        for r in range(2):
            a(f"v_cndmask_b32 v{vQf+r}, v{vQf+r}, 0, s[{mA}:{mA+1}]")
            a(f"v_cndmask_b32 v{vQf+2+r}, v{vQf+2+r}, 0, s[{mB}:{mB+1}]")
        a(f"buffer_store_dwordx4 {v(vQf,4)}, v{vSt}, s[{rO}:{rO+3}], 0 offen")
        if diag:
            a("s_waitcnt vmcnt(0)")
            stamp(a, 4, sTS, diag)
            stamp_flush(a, 5, sTS, sWS, sWave, kidx, vT, diag, nwaves=8)
        a("s_endpgm")
    a(f"{done}:")
    a("s_endpgm")
    return dict(name=name, grid=NWG, block=512, lds=LDS, vgprs=R.hi)
```

```python
import math
from asmlib import *
from layout import *

def stamp(a, idx, sTS, diag):
    if diag:
        a(f"s_memrealtime s[{sTS+2*idx}:{sTS+2*idx+1}]")

def stamp_flush(a, n, sTS, sWS, sWave, kidx, vtmp, diag, nwaves=4):
    if not diag:
        return
    a("s_waitcnt lgkmcnt(0)")
    srd(a, 96, sWS, 1 << 20, WS_TS + kidx * 65536 * 2)
    a(f"s_mul_i32 s100, s2, {nwaves}")
    a(f"s_add_u32 s100, s100, s{sWave}")
    a(f"s_lshl_b32 s100, s100, 6")
    for i in range(n):
        a(f"v_mov_b32 v{vtmp}, s{sTS+2*i}")
        a(f"v_mov_b32 v{vtmp+1}, 0")
        a(f"buffer_store_dword v{vtmp}, v{vtmp+1}, s[96:99], s100 offen offset:{4*i}")
    a("s_waitcnt vmcnt(0)")

def gemm_kernel(a, name, which, DEPTH=12, diag=False, kperm_c=True, kidx=0):
    if which == 1:
        NWG, PITCH, STEPS, KA_W, KA_B = 224, F * 2, 32, KA_W1, KA_B1
        WBYTES, BBYTES, WS_ACT = S * F * 2, F * 2, WS_HN
    else:
        NWG, PITCH, STEPS, KA_W, KA_B = 256, S * 2, 28, KA_W2, KA_B2
        WBYTES, BBYTES, WS_ACT = F * S * 2, S * 2, WS_UF
    TSTEPS = STEPS * 4
    RING = DEPTH * 2048
    RED = 4 * RING
    LDS = RED + 12 * 4096
    assert LDS <= 163840 and (DEPTH - 1) * 4 + 8 <= 63
    sW, sWS, sB, sO = 4, 6, 8, 10
    rW, rA, rB, rO, rH = 12, 16, 20, 24, 28
    sWave, sDt, sT, sLds, sOW, sOA, sTmp = 32, 33, 34, 35, 36, 37, 38
    sC1, sC2 = 40, 41
    sEx = 42
    sTS = 60
    R = Regs(1)
    vLane = R.get(); vHi = R.get(); vDl = R.get()
    vW0 = R.get(); vW1 = R.get(); vA0 = R.get(); vA1 = R.get()
    vT0 = R.get(); vT1 = R.get()
    vRed = R.get(); vX = R.get(4)
    vBias = R.get(4, 2)
    vH = R.get(8, 2)
    vAcc = R.get(64, 4)
    vWf = R.get(16, 4)
    vAct = R.get(DEPTH * 8, 4)
    done = f"{name}_done"
    kernel_header(a, name)
    a(f"s_cmp_ge_u32 s2, {NWG}")
    a(f"s_cbranch_scc1 {done}")
    stamp(a, 0, sTS, diag)
    a(f"s_load_dwordx2 s[{sW}:{sW+1}], s[0:1], {KA_W}")
    a(f"s_load_dwordx2 s[{sWS}:{sWS+1}], s[0:1], {KA_WS}")
    a(f"s_load_dwordx2 s[{sB}:{sB+1}], s[0:1], {KA_B}")
    if which == 2:
        a(f"s_load_dwordx2 s[{sO}:{sO+1}], s[0:1], {KA_OUT}")
    a(f"v_lshrrev_b32 v{vX}, 6, v0")
    a(f"v_and_b32 v{vLane}, 63, v0")
    a(f"v_readfirstlane_b32 s{sWave}, v{vX}")
    a(f"v_lshrrev_b32 v{vHi}, 5, v{vLane}")
    a(f"v_and_b32 v{vDl}, 31, v{vLane}")
    a(f"s_and_b32 s{sTmp}, s2, 7")
    a(f"s_lshr_b32 s{sTmp+1}, s2, 3")
    a(f"s_and_b32 s{sDt}, s{sTmp}, 1")
    a(f"s_lshl_b32 s{sDt}, s{sDt}, 2")
    a(f"s_and_b32 s{sT}, s{sTmp+1}, 3")
    a(f"s_add_u32 s{sDt}, s{sDt}, s{sT}")
    a(f"s_lshr_b32 s{sTmp}, s{sTmp}, 1")
    a(f"s_mul_i32 s{sTmp}, s{sTmp}, {7 if which == 1 else 8}")
    a(f"s_lshr_b32 s{sT}, s{sTmp+1}, 2")
    a(f"s_add_u32 s{sT}, s{sT}, s{sTmp}")
    a(f"v_lshrrev_b32 v{vX}, 3, v{vLane}")
    a(f"v_lshrrev_b32 v{vX+1}, 2, v{vLane}")
    a(f"v_and_b32 v{vX+1}, 4, v{vX+1}")
    a(f"v_and_b32 v{vX+2}, 7, v{vLane}")
    a(f"v_xor_b32 v{vX+1}, v{vX+1}, v{vX+2}")
    a(f"v_lshlrev_b32 v{vX+1}, 4, v{vX+1}")
    a(f"v_mul_u32_u24 v{vX}, {PITCH}, v{vX}")
    a(f"s_mul_i32 s{sTmp}, s{sWave}, {STEPS*16*PITCH}")
    a(f"s_lshl_b32 s{sTmp+1}, s{sT}, 7")
    a(f"s_add_u32 s{sTmp}, s{sTmp}, s{sTmp+1}")
    a(f"v_add3_u32 v{vW0}, v{vX}, v{vX+1}, s{sTmp}")
    a(f"v_add_u32 v{vW1}, {8*PITCH-1024}, v{vW0}")
    a(f"s_mul_i32 s{sTmp}, s{sDt}, {TSTEPS}")
    a(f"s_mul_i32 s{sTmp+1}, s{sWave}, {STEPS}")
    a(f"s_add_u32 s{sTmp}, s{sTmp}, s{sTmp+1}")
    a(f"s_mul_i32 s{sTmp}, s{sTmp}, 1792")
    a(f"v_lshl_add_u32 v{vA0}, v{vLane}, 4, s{sTmp}")
    a(f"v_min_u32 v{vX}, 23, v{vDl}")
    a(f"v_mad_u32_u24 v{vX}, v{vHi}, 24, v{vX}")
    a(f"v_lshl_add_u32 v{vA1}, v{vX}, 4, s{sTmp}")
    a(f"v_add_u32 v{vA1}, 1024, v{vA1}")
    a(f"s_mul_i32 s{sLds}, s{sWave}, {RING}")
    a("s_waitcnt lgkmcnt(0)")
    srd(a, rW, sW, WBYTES)
    srd(a, rA, sWS, 8 * TSTEPS * 1792, WS_ACT)
    srd(a, rB, sB, BBYTES)
    if which == 1:
        srd(a, rO, sWS, 8 * 112 * 1792, WS_UF)
    else:
        srd(a, rO, sO, S * D * 2)
        srd(a, rH, sWS, S * D * 2, WS_H)

    def issue(step):
        slot = step % DEPTH
        a(f"s_add_u32 m0, s{sLds}, {slot*2048}")
        a(f"s_mov_b32 s{sOW}, {step*16*PITCH}")
        a(f"s_mov_b32 s{sOA}, {step*1792}")
        a(f"buffer_load_dwordx4 v{vW0}, s[{rW}:{rW+3}], s{sOW} offen lds")
        a(f"buffer_load_dwordx4 v{vW1}, s[{rW}:{rW+3}], s{sOW} offen offset:1024 lds")
        a(f"buffer_load_dwordx4 {v(vAct+slot*8,4)}, v{vA0}, s[{rA}:{rA+3}], s{sOA} offen")
        a(f"buffer_load_dwordx4 {v(vAct+slot*8+4,4)}, v{vA1}, s[{rA}:{rA+3}], s{sOA} offen")

    for st in range(min(2, DEPTH)):
        issue(st)
    nside = 0
    if which == 1:
        a(f"s_lshl_b32 s{sTmp}, s{sT}, 2")
        a(f"s_add_u32 s{sTmp}, s{sTmp}, s{sWave}")
        a(f"s_lshl_b32 s{sTmp}, s{sTmp}, 5")
        a(f"v_lshlrev_b32 v{vX}, 3, v{vHi}")
        a(f"buffer_load_dwordx2 {v(vBias,2)}, v{vX}, s[{rB}:{rB+3}], s{sTmp} offen")
        a(f"buffer_load_dwordx2 {v(vBias+2,2)}, v{vX}, s[{rB}:{rB+3}], s{sTmp} offen offset:16")
        nside = 2
    else:
        a(f"s_lshr_b32 s{sTmp}, s{sWave}, 1")
        a(f"s_lshl_b32 s{sTmp+1}, s{sT}, 1")
        a(f"s_add_u32 s{sTmp}, s{sTmp}, s{sTmp+1}")
        a(f"s_lshl_b32 s{sTmp}, s{sTmp}, 5")
        a(f"v_add_u32 v{vX}, s{sTmp}, v{vDl}")
        a(f"v_lshlrev_b32 v{vX+1}, 1, v{vX}")
        a(f"buffer_load_ushort v{vBias}, v{vX+1}, s[{rB}:{rB+3}], 0 offen")
        a(f"s_and_b32 s{sTmp}, s{sWave}, 1")
        a(f"s_lshl_b32 s{sTmp}, s{sTmp}, 6")
        a(f"s_mul_i32 s{sTmp+1}, s{sDt}, 112")
        a(f"s_add_u32 s{sTmp}, s{sTmp}, s{sTmp+1}")
        a(f"v_mul_u32_u24 v{vX}, 896, v{vX}")
        a(f"v_add_u32 v{vX}, s{sTmp}, v{vX}")
        a(f"v_lshl_add_u32 v{vX+1}, v{vHi}, 3, v{vX}")
        a(f"v_lshl_add_u32 v{vBias+1}, v{vHi}, 4, v{vX}")
        for j in range(4):
            a(f"buffer_load_dwordx2 {v(vH+2*j,2)}, v{vX+1}, s[{rH}:{rH+3}], 0 offen offset:{16*j}")
        nside = 5
    for st in range(2, DEPTH):
        issue(st)
    rowsel = 4 if kperm_c else 8
    joff = (8 if kperm_c else 4) * 128
    a(f"v_bfe_u32 v{vX}, v{vLane}, 2, 2")
    a(f"v_mad_u32_u24 v{vX+1}, v{vHi}, {rowsel}, v{vX}")
    a(f"v_lshlrev_b32 v{vX+1}, 7, v{vX+1}")
    a(f"v_bfe_u32 v{vX+2}, v{vLane}, 4, 1")
    a(f"v_lshlrev_b32 v{vX+2}, 5, v{vX+2}")
    a(f"v_and_b32 v{vX+3}, 3, v{vLane}")
    a(f"v_lshl_add_u32 v{vX+2}, v{vX+3}, 3, v{vX+2}")
    a(f"v_bfe_u32 v{vX+3}, v{vLane}, 3, 1")
    a(f"v_lshl_add_u32 v{vX+2}, v{vX+3}, 6, v{vX+2}")
    a(f"v_add3_u32 v{vT0}, v{vX+1}, v{vX+2}, s{sLds}")
    a(f"v_xor_b32 v{vT1}, 64, v{vT0}")
    a(f"v_lshlrev_b32 v{vRed}, 4, v{vLane}")
    a(f"v_add_u32 v{vRed}, {RED}, v{vRed}")
    if which == 1:
        c1 = -2.0 * math.sqrt(2.0 / math.pi) * math.log2(math.e)
        a(f"s_mov_b32 s{sC1}, {hexf(c1)}")
        a(f"s_mov_b32 s{sC2}, {hexf(c1*0.044715)}")

    def trreads(step):
        slot = step % DEPTH
        b = vWf + (step & 1) * 8
        for mt, va in ((0, vT0), (1, vT1)):
            for j in range(2):
                a(f"ds_read_b64_tr_b16 {v(b+mt*4+2*j,2)}, v{va} offset:{slot*2048+j*joff}")

    def outstanding_after(step, issued_upto):
        n = (issued_upto - step) * 4
        if step < 2:
            n += nside if issued_upto >= 1 else 0
        return n

    stamp(a, 1, sTS, diag)
    a(f"s_waitcnt vmcnt({outstanding_after(0, DEPTH-1)})")
    trreads(0)
    stamp(a, 2, sTS, diag)
    for st in range(STEPS):
        issued = min(st + DEPTH - 1, STEPS - 1)
        if st + 1 < STEPS:
            a(f"s_waitcnt vmcnt({outstanding_after(st+1, issued)})")
            trreads(st + 1)
            a("s_waitcnt lgkmcnt(4)")
        else:
            a("s_waitcnt lgkmcnt(0)")
        wf = vWf + (st & 1) * 8
        af = vAct + (st % DEPTH) * 8
        for nt in range(2):
            for mt in range(2):
                d = vAcc + (mt * 2 + nt) * 16
                c = "0" if st == 0 else v(d, 16)
                if which == 1:
                    a(f"v_mfma_f32_32x32x16_bf16 {v(d,16)}, {v(wf+mt*4,4)}, {v(af+nt*4,4)}, {c}")
                else:
                    a(f"v_mfma_f32_32x32x16_bf16 {v(d,16)}, {v(af+nt*4,4)}, {v(wf+mt*4,4)}, {c}")
        if st + DEPTH < STEPS:
            issue(st + DEPTH)
    stamp(a, 3, sTS, diag)
    def part_regs(j):
        if which == 1:
            mt, t = j >> 1, j & 1
            return [vAcc + (mt * 2 + 0) * 16 + 8 * t, vAcc + (mt * 2 + 0) * 16 + 8 * t + 4,
                    vAcc + (mt * 2 + 1) * 16 + 8 * t, vAcc + (mt * 2 + 1) * 16 + 8 * t + 4]
        mt, nt = j >> 1, j & 1
        b = vAcc + (mt * 2 + nt) * 16
        return [b, b + 4, b + 8] + ([b + 12] if nt == 0 else [])
    labs = [f"{name}_ep{w}" for w in range(4)]
    for w in range(1, 4):
        a(f"s_cmp_eq_u32 s{sWave}, {w}")
        a(f"s_cbranch_scc1 {labs[w]}")
    for w in range(4):
        a(f"{labs[w]}:")
        a("s_nop 7")
        a("s_nop 3")
        for j in [(w + 1) & 3, (w + 2) & 3, (w + 3) & 3]:
            i = (w - j - 1) & 3
            for q, r in enumerate(part_regs(j)):
                a(f"ds_write_b128 v{vRed}, {v(r,4)} offset:{(j*3+i)*4096+q*1024}")
        a("s_waitcnt lgkmcnt(0)")
        a("s_barrier")
        own = part_regs(w)
        tmp = vAct
        for i in range(3):
            for q in range(len(own)):
                a(f"ds_read_b128 {v(tmp+i*16+q*4,4)}, v{vRed} offset:{(w*3+i)*4096+q*1024}")
        n = len(own)
        for i in range(3):
            a(f"s_waitcnt lgkmcnt({(2-i)*n})")
            for q in range(n):
                for e in range(4):
                    a(f"v_add_f32 v{own[q]+e}, v{own[q]+e}, v{tmp+i*16+q*4+e}")
        t = vAct + 48
        if which == 1:
            for e in range(4):
                a(f"v_lshlrev_b32 v{t+2*e}, 16, v{vBias+e}")
                a(f"v_and_b32 v{t+2*e+1}, 0xffff0000, v{vBias+e}")
            xs = [own[q] + e for q in range(4) for e in range(4)]
            z = t + 8
            a(f"v_mov_b32 v{t+24}, s{sC1}")
            for i_, x in enumerate(xs):
                a(f"v_add_f32 v{x}, v{x}, v{t+(i_&7)}")
            for i_, x in enumerate(xs):
                a(f"v_mul_f32 v{z+i_}, v{x}, v{x}")
            for i_, x in enumerate(xs):
                a(f"v_fma_f32 v{z+i_}, v{z+i_}, s{sC2}, v{t+24}")
            for i_, x in enumerate(xs):
                a(f"v_mul_f32 v{z+i_}, v{z+i_}, v{x}")
            for i_, x in enumerate(xs):
                a(f"v_exp_f32 v{z+i_}, v{z+i_}")
            for i_, x in enumerate(xs):
                a(f"v_add_f32 v{z+i_}, 1.0, v{z+i_}")
            for i_, x in enumerate(xs):
                a(f"v_rcp_f32 v{z+i_}, v{z+i_}")
            for i_, x in enumerate(xs):
                a(f"v_mul_f32 v{x}, v{x}, v{z+i_}")
            pk = vWf
            for i_ in range(8):
                a(f"v_cvt_pk_bf16_f32 v{pk+i_}, v{xs[2*i_]}, v{xs[2*i_+1]}")
            a(f"s_mul_i32 s{sTmp}, s{sDt}, 112")
            a(f"s_lshl_b32 s{sTmp+1}, s{sT}, 2")
            a(f"s_add_u32 s{sTmp}, s{sTmp}, s{sTmp+1}")
            a(f"s_add_u32 s{sTmp}, s{sTmp}, {w}")
            a(f"s_mul_i32 s{sTmp}, s{sTmp}, 1792")
            a(f"v_lshlrev_b32 v{vX}, 4, v{vLane}")
            a(f"v_mad_u32_u24 v{vX+1}, v{vHi}, 24, v{vDl}")
            a(f"v_lshlrev_b32 v{vX+1}, 4, v{vX+1}")
            a(f"buffer_store_dwordx4 {v(pk,4)}, v{vX}, s[{rO}:{rO+3}], s{sTmp} offen")
            a(f"v_cmp_gt_u32 vcc, 24, v{vDl}")
            a(f"s_and_saveexec_b64 s[{sEx}:{sEx+1}], vcc")
            a(f"buffer_store_dwordx4 {v(pk+4,4)}, v{vX+1}, s[{rO}:{rO+3}], s{sTmp} offen offset:1024")
        else:
            a(f"v_lshlrev_b32 v{vBias}, 16, v{vBias}")
            for q in range(n):
                a(f"v_lshlrev_b32 v{t+4*q}, 16, v{vH+2*q}")
                a(f"v_and_b32 v{t+4*q+1}, 0xffff0000, v{vH+2*q}")
                a(f"v_lshlrev_b32 v{t+4*q+2}, 16, v{vH+2*q+1}")
                a(f"v_and_b32 v{t+4*q+3}, 0xffff0000, v{vH+2*q+1}")
            for q in range(n):
                for e in range(4):
                    a(f"v_add_f32 v{own[q]+e}, v{own[q]+e}, v{vBias}")
            for q in range(n):
                for e in range(4):
                    a(f"v_add_f32 v{own[q]+e}, v{own[q]+e}, v{t+4*q+e}")
            pk = vWf
            for q in range(n):
                a(f"v_cvt_pk_bf16_f32 v{pk+2*q}, v{own[q]}, v{own[q]+1}")
                a(f"v_cvt_pk_bf16_f32 v{pk+2*q+1}, v{own[q]+2}, v{own[q]+3}")
            a("s_nop 1")
            for p in range(2):
                a(f"v_permlane32_swap_b32 v{pk+4*p}, v{pk+4*p+2}")
                a(f"v_permlane32_swap_b32 v{pk+4*p+1}, v{pk+4*p+3}")
            a(f"buffer_store_dwordx4 {v(pk,4)}, v{vBias+1}, s[{rO}:{rO+3}], 0 offen")
            if n == 3:
                a(f"v_cmp_eq_u32 vcc, 0, v{vHi}")
                a(f"s_and_saveexec_b64 s[{sEx}:{sEx+1}], vcc")
            a(f"buffer_store_dwordx4 {v(pk+4,4)}, v{vBias+1}, s[{rO}:{rO+3}], 0 offen offset:32")
        if diag:
            a("s_mov_b64 exec, -1")
            a("s_waitcnt vmcnt(0)")
            stamp(a, 4, sTS, diag)
            stamp_flush(a, 5, sTS, sWS, sWave, kidx, vX, diag)
        a("s_endpgm")
    a(f"{done}:")
    a("s_endpgm")
    return dict(name=name, grid=NWG, block=256, lds=LDS, vgprs=R.hi)
```

```python
S, D, H, DH, W, F = 2048, 448, 16, 28, 256, 1792
MB = 1 << 20
WS_QF = 0 * MB
WS_KF = 2 * MB
WS_VF = 9 * MB // 2
HSTR = 144 * 1024
WS_O  = 7 * MB
WS_HN = 10 * MB
WS_UF = 12 * MB
WS_FL = 14 * MB
WS_TS = 16 * MB
KA_X, KA_WQKV, KA_WO, KA_BX, KA_W1, KA_B1, KA_W2, KA_B2, KA_OUT, KA_DBG, KA_WS = range(0, 88, 8)
```

```python
from asmlib import *
from layout import *
from gemm import stamp, stamp_flush

def proj_kernel(a, name, diag=False, kidx=2, opts={}):
    NWG = 256
    WR = 14 * 1024
    LDS = 4 * WR
    sX, sW, sWS = 4, 6, 8
    rX, rW, rA, rH, rN, rF = 12, 16, 20, 24, 44, 48
    sWave, sDt, sTb, sLds, sT0, sT1, sCnt, sOA = 28, 29, 30, 31, 33, 34, 35, 36
    sEx = 42
    sTS = 60
    R = Regs(1)
    vL = R.get(); vHi = R.get(); vDl = R.get()
    vW0 = R.get(); vLo = R.get(); vT0 = R.get(); vT1 = R.get()
    vHs = R.get(); vSw = R.get(); vSr = R.get(); vN1 = R.get()
    vX = R.get(8, 2)
    vXr = R.get(8, 2)
    vId = R.get(8, 4)
    vAcc = R.get(64, 4)
    vWf = R.get(16, 4)
    vAct = R.get(64, 4)
    done = f"{name}_done"
    kernel_header(a, name)
    a(f"s_cmp_ge_u32 s2, {NWG}")
    a(f"s_cbranch_scc1 {done}")
    stamp(a, 0, sTS, diag, kidx)
    a(f"s_load_dwordx2 s[{sX}:{sX+1}], s[0:1], {KA_X}")
    a(f"s_load_dwordx2 s[{sW}:{sW+1}], s[0:1], {KA_WO}")
    a(f"s_load_dwordx2 s[{sWS}:{sWS+1}], s[0:1], {KA_WS}")
    a(f"v_lshrrev_b32 v{vX}, 6, v0")
    a(f"v_and_b32 v{vL}, 63, v0")
    a(f"v_readfirstlane_b32 s{sWave}, v{vX}")
    a(f"s_and_b32 s{sT0}, s2, 7")
    a(f"s_lshr_b32 s{sT1}, s2, 3")
    a(f"s_lshl_b32 s{sTb}, s{sT0}, 2")
    a(f"s_and_b32 s{sT0}, s{sT1}, 3")
    a(f"s_add_u32 s{sTb}, s{sTb}, s{sT0}")
    a(f"s_lshr_b32 s{sDt}, s{sT1}, 2")
    a(f"v_lshrrev_b32 v{vX}, 3, v{vL}")
    a(f"v_lshrrev_b32 v{vX+1}, 2, v{vL}")
    a(f"v_and_b32 v{vX+1}, 4, v{vX+1}")
    a(f"v_and_b32 v{vX+2}, 7, v{vL}")
    a(f"v_xor_b32 v{vX+1}, v{vX+1}, v{vX+2}")
    a(f"v_lshlrev_b32 v{vX+1}, 4, v{vX+1}")
    a(f"v_mul_u32_u24 v{vX}, 896, v{vX}")
    a(f"s_mul_i32 s{sT0}, s{sWave}, {112*896}")
    a(f"s_mul_i32 s{sT1}, s{sDt}, 112")
    a(f"s_add_u32 s{sT0}, s{sT0}, s{sT1}")
    a(f"v_add3_u32 v{vW0}, v{vX}, v{vX+1}, s{sT0}")
    a(f"s_lshl_b32 s{sT0}, s{sTb}, 3")
    a(f"s_add_u32 s{sT0}, s{sT0}, s{sWave}")
    a(f"s_lshl_b32 s{sT0}, s{sT0}, 13")
    a(f"v_lshlrev_b32 v{vLo}, 4, v{vL}")
    a(f"s_mul_i32 s{sLds}, s{sWave}, {WR}")
    a("s_waitcnt lgkmcnt(0)")
    srd(a, rW, sW, D * D * 2)
    srd(a, rA, sWS, 2 * MB, WS_O)
    order = []
    def issueW(i):
        if i % 4 == 0:
            a(f"s_add_u32 m0, s{sLds}, {i*1024}")
        a(f"s_mov_b32 s{sOA}, {i*8*896 - (i%4)*1024}")
        a(f"buffer_load_dwordx4 v{vW0}, s[{rW}:{rW+3}], s{sOA} offen offset:{(i%4)*1024} lds")
        order.append(("w", i))
    def issueO(st):
        for nt in range(2):
            a(f"s_add_u32 s{sOA}, s{sT0}, {nt*32768 + (st//4)*4096}")
            a(f"buffer_load_dwordx4 {v(vAct+st*8+nt*4,4)}, v{vLo}, s[{rA}:{rA+3}], s{sOA} offen offset:{(st%4)*1024}")
            order.append(("o", st))
    wl = [3, 6, 10, 13]
    i = 0
    for hq in range(4):
        while i <= wl[hq]:
            issueW(i); i += 1
        issueO(2 * hq); issueO(2 * hq + 1)
    stamp(a, 1, sTS, diag)
    srd(a, rX, sX, S * D * 2)
    srd(a, rH, sWS, S * D * 2, WS_H)
    srd(a, rN, sWS, 8 * 128 * 1792, WS_HN)
    srd(a, rF, sWS, 256 * 1024, WS_FL)
    a(f"v_lshrrev_b32 v{vHi}, 5, v{vL}")
    a(f"v_and_b32 v{vDl}, 31, v{vL}")
    a(f"s_lshr_b32 s{sT0}, s{sWave}, 1")
    a(f"s_lshl_b32 s{sT0}, s{sT0}, 5")
    a(f"v_add_u32 v{vX+3}, s{sT0}, v{vDl}")
    a(f"s_lshl_b32 s{sT1}, s{sTb}, 6")
    a(f"v_add_u32 v{vX}, s{sT1}, v{vX+3}")
    a(f"s_and_b32 s{sT0}, s{sWave}, 1")
    a(f"s_lshl_b32 s{sT0}, s{sT0}, 6")
    a(f"s_mul_i32 s{sT1}, s{sDt}, 112")
    a(f"s_add_u32 s{sT0}, s{sT0}, s{sT1}")
    a(f"v_mul_u32_u24 v{vX}, 896, v{vX}")
    a(f"v_add_u32 v{vX}, s{sT0}, v{vX}")
    a(f"v_lshl_add_u32 v{vX+1}, v{vHi}, 3, v{vX}")
    a(f"v_lshl_add_u32 v{vHs}, v{vHi}, 4, v{vX}")
    for j in range(4):
        a(f"buffer_load_dwordx2 {v(vXr+2*j,2)}, v{vX+1}, s[{rX}:{rX+3}], 0 offen offset:{16*j}")
        order.append(("x", j))
    a(f"s_lshl_b32 s{sT0}, s{sTb}, 13")
    a(f"v_lshl_add_u32 v{vX+3}, v{vX+3}, 4, s{sT0}")
    a(f"v_lshl_add_u32 v{vSr}, v{vHi}, 12, v{vX+3}")
    a(f"s_lshl_b32 s{sT0}, s{sDt}, 10")
    a(f"s_and_b32 s{sT1}, s{sWave}, 1")
    a(f"s_lshl_b32 s{sT1}, s{sT1}, 3")
    a(f"s_add_u32 s{sT0}, s{sT0}, s{sT1}")
    a(f"v_add_u32 v{vSw}, s{sT0}, v{vX+3}")
    a(f"v_mad_u32_u24 v{vN1}, v{vHi}, 24, v{vDl}")
    a(f"v_lshlrev_b32 v{vN1}, 4, v{vN1}")
    a(f"v_bfe_u32 v{vX}, v{vL}, 2, 2")
    a(f"v_mad_u32_u24 v{vX+1}, v{vHi}, 4, v{vX}")
    a(f"v_lshlrev_b32 v{vX+1}, 7, v{vX+1}")
    a(f"v_bfe_u32 v{vX+2}, v{vL}, 4, 1")
    a(f"v_lshlrev_b32 v{vX+2}, 5, v{vX+2}")
    a(f"v_and_b32 v{vX+3}, 3, v{vL}")
    a(f"v_lshl_add_u32 v{vX+2}, v{vX+3}, 3, v{vX+2}")
    a(f"v_bfe_u32 v{vX+3}, v{vL}, 3, 1")
    a(f"v_lshl_add_u32 v{vX+2}, v{vX+3}, 6, v{vX+2}")
    a(f"v_add3_u32 v{vT0}, v{vX+1}, v{vX+2}, s{sLds}")
    a(f"v_xor_b32 v{vT1}, 64, v{vT0}")
    a(f"v_lshlrev_b32 v{vX}, 2, v{vHi}")
    a(f"v_sub_u32 v{vX}, v{vDl}, v{vX}")
    a(f"v_mov_b32 v{vX+1}, 0x3f80")
    for ks in range(2):
        for i in range(4):
            dd = 16 * ks + ((2 * i) & 3) + 8 * (i >> 1)
            a(f"v_subrev_u32 v{vX+2}, {dd}, v{vX}")
            a(f"v_cmp_gt_u32 vcc, 2, v{vX+2}")
            a(f"v_lshlrev_b32 v{vX+2}, 4, v{vX+2}")
            a(f"v_lshlrev_b32 v{vX+2}, v{vX+2}, v{vX+1}")
            a(f"v_cndmask_b32 v{vId+4*ks+i}, 0, v{vX+2}, vcc")

    def waitstep(st):
        last = max(i for i, t in enumerate(order) if t == ("o", st))
        a(f"s_waitcnt vmcnt({len(order)-1-last})")
    def trreads(st):
        hq, j = st >> 1, st & 1
        row = 56 * (hq >> 1) + 24 * (hq & 1) + 8 * j
        b = vWf + (st & 1) * 8
        for mt, va in ((0, vT0), (1, vT1)):
            for p in range(2):
                a(f"ds_read_b64_tr_b16 {v(b+mt*4+2*p,2)}, v{va} offset:{(row+16*p)*128}")
    waitstep(0)
    trreads(0)
    stamp(a, 2, sTS, diag)
    for st in range(8):
        if st + 1 < 8:
            waitstep(st + 1)
            trreads(st + 1)
            a("s_waitcnt lgkmcnt(4)")
        else:
            a("s_waitcnt lgkmcnt(0)")
        for nt in range(2):
            for mt in range(2):
                d = vAcc + (nt * 2 + mt) * 16
                c = "0" if st == 0 else v(d, 16)
                a(f"v_mfma_f32_32x32x16_bf16 {v(d,16)}, {v(vWf+(st&1)*8+mt*4,4)}, {v(vAct+st*8+nt*4,4)}, {c}")
    stamp(a, 3, sTS, diag)
    def part_regs(j):
        b = vAcc + j * 16
        return [b, b + 4, b + 8] + ([b + 12] if (j & 1) == 0 else [])
    labs = [f"{name}_ep{w}" for w in range(4)]
    for w in range(1, 4):
        a(f"s_cmp_eq_u32 s{sWave}, {w}")
        a(f"s_cbranch_scc1 {labs[w]}")
    for w in range(4):
        a(f"{labs[w]}:")
        a("s_nop 7")
        a("s_nop 3")
        for j in [(w + 1) & 3, (w + 2) & 3, (w + 3) & 3]:
            i = (j - w - 1) & 3
            for q, r in enumerate(part_regs(j)):
                a(f"ds_write_b128 v{vLo}, {v(r,4)} offset:{w*WR+i*4096+q*1024}")
        own = part_regs(w); n = len(own)
        t = vAct + 48
        a("s_waitcnt vmcnt(0)")
        for q in range(n):
            a(f"v_lshlrev_b32 v{t+4*q}, 16, v{vXr+2*q}")
            a(f"v_and_b32 v{t+4*q+1}, 0xffff0000, v{vXr+2*q}")
            a(f"v_lshlrev_b32 v{t+4*q+2}, 16, v{vXr+2*q+1}")
            a(f"v_and_b32 v{t+4*q+3}, 0xffff0000, v{vXr+2*q+1}")
        for q in range(n):
            for e in range(4):
                a(f"v_add_f32 v{own[q]+e}, v{own[q]+e}, v{t+4*q+e}")
        a("s_waitcnt lgkmcnt(0)")
        a("s_barrier")
        tmp = vAct
        for i in range(3):
            src = (w + 1 + i) & 3
            slot = (w - src - 1) & 3
            for q in range(n):
                a(f"ds_read_b128 {v(tmp+i*16+q*4,4)}, v{vLo} offset:{src*WR+slot*4096+q*1024}")
        for i in range(3):
            a(f"s_waitcnt lgkmcnt({(2-i)*n})")
            for q in range(n):
                for e in range(4):
                    a(f"v_add_f32 v{own[q]+e}, v{own[q]+e}, v{tmp+i*16+q*4+e}")
        xs = [own[q] + e for q in range(n) for e in range(4)]
        s1, s2 = vX, vX + 1
        a(f"v_add_f32 v{s1}, v{xs[0]}, v{xs[1]}")
        a(f"v_mul_f32 v{s2}, v{xs[0]}, v{xs[0]}")
        a(f"v_add_f32 v{vX+2}, v{xs[2]}, v{xs[3]}")
        a(f"v_mul_f32 v{vX+3}, v{xs[1]}, v{xs[1]}")
        for k_ in range(2, len(xs)):
            if k_ >= 4:
                a(f"v_add_f32 v{s1+2*(k_&1)}, v{s1+2*(k_&1)}, v{xs[k_]}")
            a(f"v_fmac_f32 v{s2+2*(k_&1)}, v{xs[k_]}, v{xs[k_]}")
        a(f"v_add_f32 v{s1}, v{s1}, v{vX+2}")
        a(f"v_add_f32 v{s2}, v{s2}, v{vX+3}")
        a(f"v_mov_b32 v{vX+2}, v{s1}")
        a(f"v_mov_b32 v{vX+3}, v{s2}")
        a("s_nop 1")
        a(f"v_permlane32_swap_b32 v{s1}, v{vX+2}")
        a(f"v_permlane32_swap_b32 v{s2}, v{vX+3}")
        a("s_nop 0")
        a(f"v_add_f32 v{s1}, v{s1}, v{vX+2}")
        a(f"v_add_f32 v{s2}, v{s2}, v{vX+3}")
        a("s_mov_b32 exec_hi, 0")
        a(f"buffer_store_dwordx2 {v(s1,2)}, v{vSw}, s[{rF}:{rF+3}], 0 offen sc1")
        a("s_mov_b64 exec, -1")
        pk = vWf
        for q in range(n):
            a(f"v_cvt_pk_bf16_f32 v{pk+2*q}, v{own[q]}, v{own[q]+1}")
            a(f"v_cvt_pk_bf16_f32 v{pk+2*q+1}, v{own[q]+2}, v{own[q]+3}")
        a(f"s_mov_b32 s{sCnt}, 0")
        a("s_nop 0")
        for p in range(2):
            a(f"v_permlane32_swap_b32 v{pk+4*p}, v{pk+4*p+2}")
            a(f"v_permlane32_swap_b32 v{pk+4*p+1}, v{pk+4*p+3}")
        a(f"buffer_store_dwordx4 {v(pk,4)}, v{vHs}, s[{rH}:{rH+3}], 0 offen")
        if n == 3:
            a("s_mov_b32 exec_hi, 0")
        a(f"buffer_store_dwordx4 {v(pk+4,4)}, v{vHs}, s[{rH}:{rH+3}], 0 offen offset:32")
        if n == 3:
            a("s_mov_b64 exec, -1")
        lp = f"{name}_poll{w}"; ok = f"{name}_ok{w}"
        a(f"{lp}:")
        for i in range(4):
            a(f"buffer_load_dwordx4 {v(tmp+4*i,4)}, v{vSr}, s[{rF}:{rF+3}], 0 offen offset:{i*1024} sc1")
        a(f"s_add_u32 s{sCnt}, s{sCnt}, 1")
        a("s_waitcnt vmcnt(0)")
        a(f"v_max3_u32 v{vX+2}, v{tmp}, v{tmp+1}, v{tmp+2}")
        a(f"v_max3_u32 v{vX+3}, v{tmp+3}, v{tmp+4}, v{tmp+5}")
        for k_ in range(6, 16, 2):
            r = vX + 2 + ((k_ >> 1) & 1)
            a(f"v_max3_u32 v{r}, v{r}, v{tmp+k_}, v{tmp+k_+1}")
        a(f"v_max_u32 v{vX+2}, v{vX+2}, v{vX+3}")
        a(f"v_cmp_eq_u32 vcc, -1, v{vX+2}")
        a(f"s_cbranch_vccz {ok}")
        a(f"s_cmp_lt_u32 s{sCnt}, 20000")
        a(f"s_cbranch_scc1 {lp}")
        a(f"{ok}:")
        for e in range(2):
            a(f"v_add_f32 v{tmp+e}, v{tmp+e}, v{tmp+2+e}")
            a(f"v_add_f32 v{tmp+4+e}, v{tmp+4+e}, v{tmp+6+e}")
            a(f"v_add_f32 v{tmp+8+e}, v{tmp+8+e}, v{tmp+10+e}")
            a(f"v_add_f32 v{tmp+12+e}, v{tmp+12+e}, v{tmp+14+e}")
        for e in range(2):
            a(f"v_add_f32 v{tmp+e}, v{tmp+e}, v{tmp+4+e}")
            a(f"v_add_f32 v{tmp+8+e}, v{tmp+8+e}, v{tmp+12+e}")
        for e in range(2):
            a(f"v_add_f32 v{tmp+e}, v{tmp+e}, v{tmp+8+e}")
        a(f"v_mov_b32 v{tmp+2}, v{tmp}")
        a(f"v_mov_b32 v{tmp+3}, v{tmp+1}")
        a("s_nop 1")
        a(f"v_permlane32_swap_b32 v{tmp}, v{tmp+2}")
        a(f"v_permlane32_swap_b32 v{tmp+1}, v{tmp+3}")
        a(f"v_mov_b32 v{tmp+4}, {hexf(1.0/448)}")
        a(f"v_mov_b32 v{tmp+5}, {hexf(1e-5)}")
        a(f"v_add_f32 v{tmp}, v{tmp}, v{tmp+2}")
        a(f"v_add_f32 v{tmp+1}, v{tmp+1}, v{tmp+3}")
        a(f"v_mul_f32 v{tmp}, v{tmp}, v{tmp+4}")
        a(f"v_mul_f32 v{tmp+2}, v{tmp}, v{tmp}")
        a(f"v_fma_f32 v{tmp+1}, v{tmp+1}, v{tmp+4}, -v{tmp+2}")
        a(f"v_max_f32 v{tmp+1}, 0, v{tmp+1}")
        a(f"v_add_f32 v{tmp+2}, v{tmp+1}, v{tmp+5}")
        a(f"v_rsq_f32 v{tmp+2}, v{tmp+2}")
        a("s_nop 0")
        a(f"v_mul_f32 v{tmp+3}, v{tmp+2}, v{tmp+2}")
        a(f"v_fma_f32 v{tmp+3}, v{tmp+3}, v{tmp+1}, v{tmp+5}")
        a(f"v_rsq_f32 v{tmp+3}, v{tmp+3}")
        a("s_nop 0")
        a(f"v_mul_f32 v{tmp+2}, v{tmp+2}, v{tmp+3}")
        a(f"v_mul_f32 v{tmp}, v{tmp}, v{tmp+2}")
        for x_ in xs:
            a(f"v_fma_f32 v{x_}, v{x_}, v{tmp+2}, -v{tmp}")
        pk2 = vWf + 8
        for k_ in range(8):
            if 2 * k_ < len(xs):
                a(f"v_cvt_pk_bf16_f32 v{pk2+k_}, v{xs[2*k_]}, v{xs[2*k_+1]}")
            else:
                a(f"v_mov_b32 v{pk2+k_}, 0")
        tr = vAct + 16
        a(f"s_lshl_b32 s{sT0}, s{sDt}, 5")
        a(f"s_add_u32 s{sT0}, s{sT0}, s{sTb}")
        a(f"v_mfma_f32_32x32x16_bf16 {v(tr,16)}, {v(pk2,4)}, {v(vId,4)}, 0")
        a(f"v_mfma_f32_32x32x16_bf16 {v(tr,16)}, {v(pk2+4,4)}, {v(vId+4,4)}, {v(tr,16)}")
        a(f"s_lshl_b32 s{sT0}, s{sT0}, 2")
        a(f"s_add_u32 s{sT0}, s{sT0}, {(w>>1)*2}")
        a(f"s_mul_i32 s{sT0}, s{sT0}, 1792")
        a("s_nop 7")
        a("s_nop 1")
        for k_ in range(8):
            a(f"v_cvt_pk_bf16_f32 v{tmp+k_}, v{tr+2*k_}, v{tr+2*k_+1}")
        if n == 4:
            a(f"buffer_store_dwordx4 {v(tmp,4)}, v{vLo}, s[{rN}:{rN+3}], s{sT0} offen")
            a(f"buffer_store_dwordx4 {v(tmp+4,4)}, v{vLo}, s[{rN}:{rN+3}], s{sT0} offen offset:1792")
        else:
            a(f"s_mov_b32 exec_lo, 0x00ffffff")
            a(f"s_mov_b32 exec_hi, 0x00ffffff")
            a(f"buffer_store_dwordx4 {v(tmp,4)}, v{vN1}, s[{rN}:{rN+3}], s{sT0} offen offset:1024")
            a(f"buffer_store_dwordx4 {v(tmp+4,4)}, v{vN1}, s[{rN}:{rN+3}], s{sT0} offen offset:{1024+1792}")
        if diag:
            a("s_mov_b64 exec, -1")
            a("s_waitcnt vmcnt(0)")
            stamp(a, 4, sTS, diag)
            stamp_flush(a, 5, sTS, sWS, sWave, kidx, vX, diag)
        a("s_endpgm")
    a(f"{done}:")
    a("s_endpgm")
    return dict(name=name, grid=NWG, block=256, lds=LDS, vgprs=R.hi)
```

```python
import math
from asmlib import *
from layout import *
from gemm import stamp, stamp_flush

def qkv_kernel(a, name, diag=False, kidx=0, opts={}):
    NWG = 256
    CH = 12800
    XB = 7 * CH
    CSB = XB + 4 * 16384
    PRV = CSB + 1536
    LDS = PRV + 4 * 512
    PITCH = 2688
    tbx = int(opts.get("k1tb", 4))
    rot = int(opts.get("k1rot", 1))
    sX, sW, sWS = 4, 6, 8
    rX, rW, rQ, rF = 12, 16, 20, 24
    sWave, sH, sTb, sWb, sXb, sT0, sT1 = 28, 29, 30, 31, 32, 33, 34
    sOX, sOW = 36, 44
    mPar, mA, mB, mEx, mPadV = 52, 54, 56, 58, 70
    mb = [72, 74, 76, 78, 80]
    sTS = 60
    R = Regs(1)
    vL = R.get(); vHi = R.get(); vTok = R.get()
    vWo = R.get(); vXo = R.get(4)
    vXa = R.get(4); vQa = R.get(4); vKa = R.get()
    vT = R.get(8, 2)
    vSel = R.get(4, 4)
    vCs = R.get(12, 4)
    vQ = R.get(16, 4); vK = R.get(16, 4); vV = R.get(16, 4); vG = R.get(16, 4)
    vXf = R.get(32, 4)
    vWf = R.get(24, 4)
    vE = R.get(64, 4)
    done = f"{name}_done"
    kernel_header(a, name)
    a(f"s_cmp_ge_u32 s2, {NWG}")
    a(f"s_cbranch_scc1 {done}")
    stamp(a, 0, sTS, diag, kidx)
    a(f"s_load_dwordx4 s[{sX}:{sX+3}], s[0:1], {KA_X}")
    a(f"s_load_dwordx2 s[{sWS}:{sWS+1}], s[0:1], {KA_WS}")
    a(f"v_lshrrev_b32 v{vT}, 6, v0")
    a(f"v_and_b32 v{vL}, 63, v0")
    a(f"v_readfirstlane_b32 s{sWave}, v{vT}")
    nx = 16 // tbx
    hx = 8 // nx
    lg = lambda n: n.bit_length() - 1
    a(f"s_and_b32 s{sT0}, s2, 7")
    a(f"s_lshr_b32 s{sT1}, s2, 3")
    a(f"s_lshr_b32 s{sTb}, s{sT0}, {lg(hx)}")
    a(f"s_lshl_b32 s{sTb}, s{sTb}, {lg(tbx)}")
    a(f"s_and_b32 s{sH}, s{sT1}, {tbx-1}")
    a(f"s_add_u32 s{sTb}, s{sTb}, s{sH}")
    a(f"s_and_b32 s{sH}, s{sT0}, {hx-1}")
    a(f"s_lshl_b32 s{sH}, s{sH}, {lg(16//hx)}")
    a(f"s_lshr_b32 s{sT1}, s{sT1}, {lg(tbx)}")
    a(f"s_add_u32 s{sH}, s{sH}, s{sT1}")
    if rot:
        a(f"s_and_b32 s{sT0}, s{sH}, 7")
        a(f"s_cmp_eq_u32 s{sT0}, 7")
        a(f"s_cselect_b32 s{sT0}, 3, s{sT0}")
    else:
        a(f"s_mov_b32 s{sT0}, 0")
    for c in range(7):
        a(f"s_lshl_b32 s{sOX+c}, s{sT0}, 7")
        a(f"s_mul_i32 s{sOW+c}, s{sT0}, {64*PITCH}")
        if c < 6:
            a(f"s_add_u32 s{sT0}, s{sT0}, 1")
            a(f"s_cmp_eq_u32 s{sT0}, 7")
            a(f"s_cselect_b32 s{sT0}, 0, s{sT0}")
    a(f"s_mul_i32 s{sT0}, s{sH}, 56")
    a(f"s_and_b32 s{sT1}, s{sH}, 1")
    a(f"s_lshl_b32 s{sT1}, s{sT1}, 3")
    a(f"s_sub_u32 s{sT0}, s{sT0}, s{sT1}")
    a(f"s_mul_i32 s{sT1}, s{sWave}, {16*PITCH}")
    a(f"s_add_u32 s{sT0}, s{sT0}, s{sT1}")
    a(f"v_lshrrev_b32 v{vT}, 2, v{vL}")
    a(f"v_mul_u32_u24 v{vT}, {PITCH}, v{vT}")
    a(f"v_and_b32 v{vT+1}, 3, v{vL}")
    a(f"v_lshlrev_b32 v{vT+1}, 4, v{vT+1}")
    a(f"v_add3_u32 v{vWo}, v{vT}, v{vT+1}, s{sT0}")
    a(f"s_lshl_b32 s{sT0}, s{sTb}, 2")
    a(f"s_add_u32 s{sT0}, s{sT0}, s{sWave}")
    a(f"s_mul_i32 s{sT0}, s{sT0}, {32*896}")
    a(f"v_lshrrev_b32 v{vT}, 3, v{vL}")
    a(f"v_mul_u32_u24 v{vT}, 896, v{vT}")
    a(f"v_lshrrev_b32 v{vT+1}, 4, v{vL}")
    a(f"v_and_b32 v{vT+2}, 7, v{vL}")
    a(f"v_xor_b32 v{vT+1}, v{vT+1}, v{vT+2}")
    a(f"v_lshlrev_b32 v{vT+1}, 4, v{vT+1}")
    a(f"v_add3_u32 v{vXo}, v{vT}, v{vT+1}, s{sT0}")
    a(f"v_xor_b32 v{vT+1}, 64, v{vT+1}")
    a(f"v_add3_u32 v{vXo+1}, v{vT}, v{vT+1}, s{sT0}")
    a(f"v_add_u32 v{vXo+2}, {2*(8*896-1024)}, v{vXo}")
    a(f"v_add_u32 v{vXo+1}, {8*896-1024}, v{vXo+1}")
    a(f"v_add_u32 v{vXo+3}, {2*(8*896-1024)}, v{vXo+1}")
    a(f"s_mul_i32 s{sWb}, s{sWave}, 3072")
    a(f"s_lshl_b32 s{sXb}, s{sWave}, 14")
    a(f"s_add_u32 s{sXb}, s{sXb}, {XB}")
    a("s_waitcnt lgkmcnt(0)")
    srd(a, rX, sX, S * D * 2)
    srd(a, rW, sW, D * 3 * D * 2)

    order = []
    def issueW(c):
        for t in range(3):
            a(f"s_add_u32 m0, s{sWb}, {c*CH + t*128}")
            a("s_nop 0")
            a(f"buffer_load_dwordx4 v{vWo}, s[{rW}:{rW+3}], s{sOW+c} offen offset:{t*896} lds")
            order.append(c)
    def issueX(c):
        a(f"s_add_u32 m0, s{sXb}, {(c&3)*4096}")
        a("s_nop 0")
        for i in range(4):
            a(f"buffer_load_dwordx4 v{vXo+i}, s[{rX}:{rX+3}], s{sOX+c} offen offset:{i*1024} lds")
            order.append(c)
    def waitchunk(c):
        last = max(i for i, t in enumerate(order) if t == c)
        a(f"s_waitcnt vmcnt({len(order)-1-last})")
    for c in range(4):
        issueX(c); issueW(c)
    for c in range(4, 7):
        issueW(c)
    stamp(a, 1, sTS, diag)
    srd(a, rQ, sWS, 6 * MB)
    srd(a, rF, sWS, 256 * 1024, WS_FL)
    a(f"v_lshrrev_b32 v{vHi}, 5, v{vL}")
    a(f"v_and_b32 v{vTok}, 31, v{vL}")
    a(f"v_lshrrev_b32 v{vT}, 5, v0")
    a(f"v_mul_u32_u24 v{vT}, {CH}, v{vT}")
    a(f"v_lshl_add_u32 v{vT}, v{vTok}, 4, v{vT}")
    for e in range(4):
        a(f"v_mov_b32 v{vSel+e}, 0x3f803f80")
    a(f"v_cmp_gt_u32 vcc, 224, v0")
    a(f"s_and_saveexec_b64 s[{mEx}:{mEx+1}], vcc")
    a(f"ds_write_b128 v{vT}, {v(vSel,4)} offset:12288")
    a(f"s_mov_b64 exec, s[{mEx}:{mEx+1}]")
    a(f"v_bfe_u32 v{vT}, v{vL}, 1, 3")
    a(f"v_xor_b32 v{vT}, v{vT}, v{vHi}")
    a(f"v_lshlrev_b32 v{vT}, 4, v{vT}")
    a(f"v_lshl_add_u32 v{vT+1}, v{vTok}, 7, s{sXb}")
    for j in range(4):
        a(f"v_xor_b32 v{vT+2}, {32*j}, v{vT}")
        a(f"v_add_u32 v{vXa+j}, v{vT+2}, v{vT+1}")
    a(f"v_bfe_u32 v{vT}, v{vL}, 2, 2")
    a(f"v_lshlrev_b32 v{vT}, 6, v{vT}")
    a(f"v_bfe_u32 v{vT+1}, v{vL}, 4, 1")
    a(f"v_and_b32 v{vT+2}, 3, v{vL}")
    a(f"v_lshlrev_b32 v{vT+2}, 3, v{vT+2}")
    a(f"v_lshl_add_u32 v{vT+1}, v{vT+1}, 5, v{vT+2}")
    a(f"v_add_u32 v{vT}, v{vT}, v{vT+1}")
    a(f"v_lshl_add_u32 v{vKa}, v{vHi}, 9, v{vT}")
    a(f"v_add_u32 v{vT}, 12288, v{vT}")
    a(f"s_and_b32 s{sT0}, s{sH}, 1")
    a(f"s_cmp_eq_u32 s{sT0}, 1")
    a(f"s_cselect_b32 s{sT1}, 0, 0x13")
    a(f"s_cselect_b64 s[{mPar}:{mPar+1}], -1, 0")
    a(f"s_cselect_b32 s{mA}, -1, 0")
    a(f"s_mov_b32 s{mA+1}, 0")
    a(f"s_mov_b32 s{mB}, 0")
    a(f"s_cselect_b32 s{mB+1}, 0, -1")
    a(f"s_cselect_b32 s{mPadV}, 0x0000000f, 0xf0000000")
    a(f"s_mov_b32 s{mPadV+1}, s{mPadV}")
    a(f"v_and_b32 v{vT+1}, 0x13, v{vL}")
    a(f"v_cmp_eq_u32 vcc, s{sT1}, v{vT+1}")
    a("s_nop 0")
    for j in range(4):
        a(f"v_add_u32 v{vT+2}, {j*3072}, v{vKa}")
        a(f"v_cndmask_b32 v{vQa+j}, v{vT+2}, v{vT}, vcc")
    a(f"v_and_b32 v{vT}, 15, v{vL}")
    a(f"v_bfe_u32 v{vT+1}, v{vL}, 4, 1")
    a(f"v_cmp_eq_u32 vcc, v{vT}, v{vT+1}")
    a("s_waitcnt lgkmcnt(0)")
    a("s_nop 1")
    for e in range(4):
        a(f"v_cndmask_b32 v{vSel+e}, 0, v{vSel+e}, vcc")
    for i, bit in enumerate((0, 1, 3, 4, 2)):
        pat = sum(1 << l for l in range(32) if (l >> bit) & 1)
        a(f"s_mov_b32 s{mb[i]}, 0x{pat:08x}")
        a(f"s_mov_b32 s{mb[i]+1}, 0x{pat:08x}")
    def rd_x(c, j):
        a(f"ds_read_b128 {v(vXf+(c&1)*16+4*j,4)}, v{vXa+j} offset:{(c&3)*4096}")
    def rd_w(s_, t, p):
        c, j = s_ >> 2, s_ & 3
        cc = c if c < 5 else c - 5
        d = vWf + (s_ & 1) * 12 + t * 4 + 2 * p
        if t == 0:
            a(f"ds_read_b64_tr_b16 {v(d,2)}, v{vQa+j} offset:{cc*CH+p*256}")
        else:
            a(f"ds_read_b64_tr_b16 {v(d,2)}, v{vKa} offset:{cc*CH+j*3072+t*1024+p*256}")
    waitchunk(0)
    a("s_barrier")
    stamp(a, 2, sTS, diag)
    rd_x(0, 0); rd_x(0, 1)
    for t in range(3):
        rd_w(0, t, 0); rd_w(0, t, 1)
    rd_x(0, 2); rd_x(0, 3)
    for s_ in range(28):
        c, j = s_ >> 2, s_ & 3
        xf = v(vXf + (c & 1) * 16 + 4 * j, 4)
        wf = [v(vWf + (s_ & 1) * 12 + 4 * t, 4) for t in range(3)]
        cz = lambda r, n=16: "0" if s_ == 0 else v(r, n)
        nxt = s_ + 1 < 28
        newc = nxt and j == 3
        if j == 0:
            a("s_waitcnt lgkmcnt(8)")
        a(f"v_mfma_f32_32x32x16_bf16 {v(vG,16)}, {xf}, {xf}, {cz(vG)}")
        if newc:
            waitchunk(c + 1)
            if c + 1 == 5:
                for r in [vKa] + [vQa + i for i in range(4)]:
                    a(f"v_add_u32 v{r}, {5*CH}, v{r}")
            a("s_waitcnt lgkmcnt(0)")
            a("s_barrier")
            rd_x(c + 1, 0); rd_x(c + 1, 1)
        else:
            a(f"s_waitcnt lgkmcnt({2 if j == 0 else 0})")
        if nxt:
            rd_w(s_ + 1, 0, 0); rd_w(s_ + 1, 0, 1)
        a(f"v_mfma_f32_32x32x16_bf16 {v(vQ,16)}, {wf[0]}, {xf}, {cz(vQ)}")
        if nxt:
            rd_w(s_ + 1, 1, 0); rd_w(s_ + 1, 1, 1)
        if j == 1 and c + 4 < 7:
            issueX(c + 4)
        a(f"v_mfma_f32_32x32x16_bf16 {v(vK,16)}, {wf[1]}, {xf}, {cz(vK)}")
        if nxt:
            rd_w(s_ + 1, 2, 0); rd_w(s_ + 1, 2, 1)
        if newc:
            rd_x(c + 1, 2); rd_x(c + 1, 3)
        a(f"v_mfma_f32_32x32x16_bf16 {v(vV,16)}, {xf}, {wf[2]}, {cz(vV)}")
        lab = a.label("k1cs")
        a(f"s_cmp_lg_u32 s{sWave}, {j}")
        a(f"s_cbranch_scc1 {lab}")
        for t in range(3):
            cs = "0" if c == 0 else v(vCs + 4 * t, 4)
            a(f"v_mfma_f32_16x16x32_bf16 {v(vCs+4*t,4)}, {v(vSel,4)}, {wf[t]}, {cs}")
        a(f"{lab}:")
    stamp(a, 3, sTS, diag)
    a(f"v_mov_b32 v{vT+6}, -1")
    a(f"v_lshlrev_b32 v{vT+7}, 2, v0")
    a(f"s_lshl_b32 s{sT0}, s2, 10")
    a(f"buffer_store_dword v{vT+6}, v{vT+7}, s[{rF}:{rF+3}], s{sT0} offen")
    a(f"s_lshl_b32 s{sT0}, s{sWave}, 2")
    a(f"s_add_u32 s{sT0}, s{sT0}, {CSB}")
    a(f"v_lshl_add_u32 v{vT}, v{vL}, 4, s{sT0}")
    a(f"v_lshlrev_b32 v{vT+1}, 4, v{vL}")
    a(f"v_add_u32 v{vT+1}, {CSB}, v{vT+1}")
    a(f"v_lshlrev_b32 v{vT+2}, 4, v{vTok}")
    a(f"v_add_u32 v{vT+2}, {CSB+1024}, v{vT+2}")
    a(f"s_lshl_b32 s{sT0}, s{sWave}, 9")
    a(f"s_add_u32 s{sT0}, s{sT0}, {PRV}")
    a(f"v_lshl_add_u32 v{vT+3}, v{vL}, 2, s{sT0}")
    a(f"v_lshl_add_u32 v{vT+4}, v{vTok}, 2, s{sT0}")
    a(f"v_lshl_add_u32 v{vT+5}, v{vHi}, 4, s{sT0}")
    a("s_mov_b64 exec, 0xffff")
    for t in range(3):
        a(f"ds_write_b32 v{vT}, v{vCs+4*t} offset:{t*512}")
        a(f"ds_write_b32 v{vT}, v{vCs+4*t+1} offset:{t*512+256}")
    a("s_mov_b64 exec, -1")
    g = vG
    for i in range(8):
        a(f"v_cndmask_b32 v{g+2*i}, v{g+2*i}, v{g+2*i+1}, s[{mb[0]}:{mb[0]+1}]")
    for i in range(4):
        a(f"v_cndmask_b32 v{g+4*i}, v{g+4*i}, v{g+4*i+2}, s[{mb[1]}:{mb[1]+1}]")
    a("s_waitcnt lgkmcnt(0)")
    a("s_barrier")
    a(f"ds_read_b128 {v(vE,4)}, v{vT+1}")
    a(f"ds_read_b128 {v(vE+4,4)}, v{vT+2}")
    for i in range(2):
        a(f"v_cndmask_b32 v{g+8*i}, v{g+8*i}, v{g+8*i+4}, s[{mb[2]}:{mb[2]+1}]")
    a(f"v_cndmask_b32 v{g}, v{g}, v{g+8}, s[{mb[3]}:{mb[3]+1}]")
    a(f"v_cndmask_b32 v{g+2}, v{vQ+12}, v{vQ}, s[{mPar}:{mPar+1}]")
    a(f"v_mov_b32 v{g+1}, v{g}")
    a(f"v_mov_b32 v{g+3}, v{g+2}")
    a("s_nop 1")
    a(f"v_permlane32_swap_b32 v{g}, v{g+1}")
    a(f"v_permlane32_swap_b32 v{g+2}, v{g+3}")
    a("s_nop 1")
    a(f"v_cndmask_b32 v{g}, v{g}, v{g+1}, s[{mb[4]}:{mb[4]+1}]")
    a(f"v_cndmask_b32 v{g+2}, v{g+3}, v{g+2}, s[{mPar}:{mPar+1}]")
    a(f"v_mul_f32 v{g+2}, {hexf(1.0/448)}, v{g+2}")
    a(f"v_mul_f32 v{g+1}, v{g+2}, v{g+2}")
    a(f"v_mov_b32 v{g+3}, {hexf(1.0/448)}")
    a(f"v_fma_f32 v{g}, v{g}, v{g+3}, -v{g+1}")
    a(f"v_max_f32 v{g}, 0, v{g}")
    a(f"v_add_f32 v{g}, {hexf(1e-5)}, v{g}")
    a(f"v_rsq_f32 v{g}, v{g}")
    a("s_waitcnt lgkmcnt(1)")
    a(f"v_add_f32 v{vE}, v{vE}, v{vE+1}")
    a(f"v_add_f32 v{vE+2}, v{vE+2}, v{vE+3}")
    a(f"v_mul_f32 v{g+1}, v{g}, v{g+2}")
    a(f"v_add_f32 v{vE}, v{vE}, v{vE+2}")
    a(f"v_sub_f32 v{g+1}, 0, v{g+1}")
    a(f"ds_write_b32 v{vT+3}, v{vE}")
    a(f"ds_write_b32 v{vT+4}, v{g} offset:256")
    a(f"ds_write_b32 v{vT+4}, v{g+1} offset:384")
    a("s_waitcnt lgkmcnt(3)")
    a(f"v_add_f32 v{vE+4}, v{vE+4}, v{vE+5}")
    a(f"v_add_f32 v{vE+6}, v{vE+6}, v{vE+7}")
    qs = 28 ** -0.5 * math.log2(math.e)
    a(f"v_mul_f32 v{g+4}, {hexf(qs)}, v{g}")
    a(f"v_mul_f32 v{g+5}, {hexf(qs)}, v{g+1}")
    a(f"v_add_f32 v{g+6}, v{vE+4}, v{vE+6}")
    a("s_waitcnt lgkmcnt(0)")
    def rdb(i):
        a(f"ds_read_b128 {v(vE+4*i,4)}, v{vT+5} offset:{(i >> 2) * 128 + (i & 3) * 32}")
    for i in range(12):
        rdb(i)
    a(f"s_lshl_b32 s{sT0}, s{sH}, 4")
    a(f"s_add_u32 s{sT0}, s{sT0}, s{sTb}")
    a(f"s_lshl_b32 s{sT0}, s{sT0}, 2")
    a(f"s_add_u32 s{sT0}, s{sT0}, s{sWave}")
    a(f"s_lshl_b32 s{sT0}, s{sT0}, 11")
    a(f"s_add_u32 s{sT1}, s{sT0}, {WS_KF}")
    a(f"s_add_u32 s{sOX}, s{sT0}, {WS_VF}")
    a(f"v_bfe_u32 v{vT}, v{vL}, 4, 1")
    a(f"v_and_b32 v{vT+1}, 15, v{vL}")
    a(f"v_lshlrev_b32 v{vT+1}, 4, v{vT+1}")
    a(f"v_lshl_add_u32 v{vT}, v{vT}, 10, v{vT+1}")
    a(f"v_lshl_add_u32 v{vT+1}, v{vHi}, 8, v{vT}")
    a(f"v_lshl_add_u32 v{vT}, v{vHi}, 9, v{vT}")
    pk = vXf
    for t, (A_, B_, acc_) in enumerate(((g + 4, g + 5, vQ), (g, g + 1, vK))):
        a(f"s_waitcnt lgkmcnt(8)")
        if t == 0:
            for i in range(12, 16):
                rdb(i)
        for r in range(16):
            a(f"v_mul_f32 v{vE+16*t+r}, v{B_}, v{vE+16*t+r}")
        for r in range(16):
            a(f"v_fma_f32 v{acc_+r}, v{A_}, v{acc_+r}, v{vE+16*t+r}")
        for r in range(8):
            a(f"v_cvt_pk_bf16_f32 v{pk+8*t+r}, v{acc_+2*r}, v{acc_+2*r+1}")
        if t == 1:
            for r in (0, 1):
                a(f"v_cndmask_b32 v{pk+8+r}, v{pk+8+r}, 0, s[{mA}:{mA+1}]")
            for r in (6, 7):
                a(f"v_cndmask_b32 v{pk+8+r}, v{pk+8+r}, 0, s[{mB}:{mB+1}]")
        so = sT0 if t == 0 else sT1
        a(f"buffer_store_dwordx4 {v(pk+8*t,4)}, v{vT}, s[{rQ}:{rQ+3}], s{so} offen")
        a(f"buffer_store_dwordx4 {v(pk+8*t+4,4)}, v{vT}, s[{rQ}:{rQ+3}], s{so} offen offset:256")
    a("s_waitcnt lgkmcnt(0)")
    a(f"v_mov_b32 v{g+7}, 0x3f803f80")
    for r in range(16):
        a(f"v_mul_f32 v{vE+48+r}, v{g+6}, v{vE+48+r}")
    for r in range(16):
        a(f"v_fma_f32 v{vV+r}, v{vE+32+r}, v{vV+r}, v{vE+48+r}")
    for jj in range(2):
        for e, r in enumerate((4*jj, 4*jj+2, 8+4*jj, 8+4*jj+2)):
            a(f"v_cvt_pk_bf16_f32 v{pk+16+4*jj+e}, v{vV+r}, v{vV+r+1}")
    for r in range(8):
        a(f"v_cndmask_b32 v{pk+16+r}, v{pk+16+r}, v{g+7}, s[{mPadV}:{mPadV+1}]")
    a(f"buffer_store_dwordx4 {v(pk+16,4)}, v{vT+1}, s[{rQ}:{rQ+3}], s{sOX} offen")
    a(f"buffer_store_dwordx4 {v(pk+20,4)}, v{vT+1}, s[{rQ}:{rQ+3}], s{sOX} offen offset:512")
    if diag:
        a("s_waitcnt vmcnt(0)")
        stamp(a, 4, sTS, diag)
        stamp_flush(a, 5, sTS, sWS, sWave, kidx, vT, diag)
    a(f"{done}:")
    a("s_endpgm")
    return dict(name=name, grid=NWG, block=256, lds=LDS, vgprs=R.hi)
```

```python
import sys, os
sys.path.insert(0, os.path.dirname(os.path.abspath(__file__)))
from asmlib import *
from layout import *
import gemm

NAME = "sequential_preLN__sliding_block__mixer_token_mlp__prompt"

def empty_kernel(a, name):
    kernel_header(a, name)
    a("s_endpgm")
    return dict(name=name, grid=256, block=256, lds=0, vgprs=8)

def build(opts):
    a = Asm()
    ks = []
    diag = int(opts.get("diag", 0))
    only = opts.get("only", "12345")
    if "1" in only:
        import qkv
        ks.append(qkv.qkv_kernel(a, "qkv_kernel", diag=diag, kidx=0, opts=opts))
    if "2" in only:
        import attn
        ks.append(attn.attn_kernel(a, "attn_kernel", diag=diag, kidx=1, opts=opts))
    if "3" in only:
        import proj
        ks.append(proj.proj_kernel(a, "proj_kernel", diag=diag, kidx=2, opts=opts))
    if "4" in only:
        ks.append(gemm.gemm_kernel(a, "mix1_kernel", 1, DEPTH=int(opts.get("d4", 12)), diag=diag, kidx=3))
    if "5" in only:
        ks.append(gemm.gemm_kernel(a, "mix2_kernel", 2, DEPTH=int(opts.get("d5", 12)), diag=diag, kidx=4))
    launches = list(ks)
    nempty = int(opts.get("empty", 0))
    if nempty:
        e = empty_kernel(a, "nop_kernel")
        ks.append(e)
        launches += [e] * nempty
    for k in ks:
        kernel_desc(a, k["name"], k["vgprs"], k.get("agprs", 0))
    hdr = ["; hand-written generator output (gen/*.py): LN+QKV, sliding-window attention, Wo+LN, token-mixing MLP",
           "; kernarg: 0 x, 8 wqkv, 16 wo, 24 (unused), 32 w1, 40 b1, 48 w2, 56 b2, 64 out, 72 debug, 80 ws"]
    for k in launches:
        hdr.append(f"; @launch kernel={k['name']} grid=({k['grid']},1,1) block=({k['block']},1,1) lds={k['lds']}")
    hdr.append('.amdgcn_target "amdgcn-amd-amdhsa--gfx950"')
    return "\n".join(hdr) + "\n" + a.text()

if __name__ == "__main__":
    args = sys.argv[1:]
    out = f"cdna_kernels/{NAME}.s"
    opts = {}
    for x in args:
        if "=" in x:
            k, v_ = x.split("=", 1); opts[k] = v_
        else:
            out = x
    t = build(opts)
    open(out, "w").write(t)
    print("wrote", out, len(t), "bytes")
```

```python
import math
from asmlib import *
from layout import *

MARK = [None]
def mark(a, kidx):
    if MARK[0] is None:
        return
    lab = a.label("mk")
    a("s_cmp_lg_u32 s2, 0")
    a(f"s_cbranch_scc1 {lab}")
    a("s_memrealtime s[90:91]")
    a(f"s_load_dwordx2 s[92:93], s[0:1], {KA_WS}")
    a("s_waitcnt lgkmcnt(0)")
    srd(a, 96, 92, 4096, WS_TS)
    a("v_mov_b32 v1, s90")
    a(f"v_mov_b32 v2, {4*kidx}")
    a("buffer_store_dword v1, v2, s[96:99], 0 offen")
    a("s_waitcnt vmcnt(0)")
    a(f"{lab}:")

def spin_kernel(a, name, i, j, mult):
    kernel_header(a, name)
    a("s_cmp_lg_u32 s2, 0")
    a(f"s_cbranch_scc1 {name}_done")
    a("s_memrealtime s[10:11]")
    a(f"s_load_dwordx2 s[4:5], s[0:1], {KA_WS}")
    a("s_waitcnt lgkmcnt(0)")
    srd(a, 12, 4, 4096, WS_TS)
    a("v_lshlrev_b32 v1, 2, v0")
    a("buffer_load_dword v2, v1, s[12:15], 0 offen sc1")
    a("s_waitcnt vmcnt(0)")
    a(f"v_readlane_b32 s6, v2, {i}")
    if j >= 0:
        a(f"v_readlane_b32 s7, v2, {j}")
    else:
        a("s_mov_b32 s7, s10")
    a("s_nop 3")
    a("s_sub_u32 s6, s7, s6")
    a("s_min_u32 s6, s6, 10000")
    a(f"s_mul_i32 s6, s6, {mult}")
    a(f"{name}_lp:")
    a("s_memrealtime s[8:9]")
    a("s_waitcnt lgkmcnt(0)")
    a("s_sub_u32 s8, s8, s10")
    a("s_cmp_lt_u32 s8, s6")
    a(f"s_cbranch_scc1 {name}_lp")
    a(f"{name}_done:")
    a("s_endpgm")
    return dict(name=name, grid=1, block=64, lds=0, vgprs=8)

def stamp(a, idx, sTS, diag, kidx=0):
    if idx == 0:
        mark(a, kidx)
    if diag:
        a(f"s_memrealtime s[{sTS+2*idx}:{sTS+2*idx+1}]")

def stamp_flush(a, n, sTS, sWS, sWave, kidx, vtmp, diag, nwaves=4):
    if not diag:
        return
    a("s_waitcnt lgkmcnt(0)")
    srd(a, 96, sWS, 1 << 20, WS_TS + kidx * 65536 * 2)
    a(f"s_mul_i32 s100, s2, {nwaves}")
    a(f"s_add_u32 s100, s100, s{sWave}")
    a(f"s_lshl_b32 s100, s100, 6")
    for i in range(n):
        a(f"v_mov_b32 v{vtmp}, s{sTS+2*i}")
        a(f"v_mov_b32 v{vtmp+1}, 0")
        a(f"buffer_store_dword v{vtmp}, v{vtmp+1}, s[96:99], s100 offen offset:{4*i}")
    a("s_waitcnt vmcnt(0)")

def gemm_kernel(a, name, which, DEPTH=12, diag=False, kperm_c=True, kidx=0):
    if which == 1:
        NWG, PITCH, STEPS, KA_W, KA_B = 224, F * 2, 32, KA_W1, KA_B1
        WBYTES, BBYTES, WS_ACT = S * F * 2, F * 2, WS_HN
    else:
        NWG, PITCH, STEPS, KA_W, KA_B = 256, S * 2, 28, KA_W2, KA_B2
        WBYTES, BBYTES, WS_ACT = F * S * 2, S * 2, WS_UF
    TSTEPS = STEPS * 4
    RING = DEPTH * 2048
    RED = 4 * RING
    LDS = RED + 12 * 4096
    assert LDS <= 163840 and (DEPTH - 1) * 4 + 8 <= 63
    sW, sWS, sB, sO = 4, 6, 8, 10
    rW, rA, rB, rO, rH = 12, 16, 20, 24, 28
    sWave, sDt, sT, sLds, sOW, sOA, sTmp = 32, 33, 34, 35, 36, 37, 38
    sC1, sC2 = 40, 41
    sEx = 42
    sTS = 60
    R = Regs(1)
    vLane = R.get(); vHi = R.get(); vDl = R.get()
    vW0 = R.get(); vW1 = R.get(); vA0 = R.get(); vA1 = R.get()
    vT0 = R.get(); vT1 = R.get()
    vRed = R.get(); vX = R.get(4)
    vBias = R.get(4, 2)
    vH = R.get(8, 2)
    vAcc = R.get(64, 4)
    vWf = R.get(16, 4)
    vAct = R.get(DEPTH * 8, 4)
    done = f"{name}_done"
    kernel_header(a, name)
    a(f"s_cmp_ge_u32 s2, {NWG}")
    a(f"s_cbranch_scc1 {done}")
    stamp(a, 0, sTS, diag, kidx)
    a(f"s_load_dwordx2 s[{sW}:{sW+1}], s[0:1], {KA_W}")
    a(f"s_load_dwordx2 s[{sWS}:{sWS+1}], s[0:1], {KA_WS}")
    a(f"s_load_dwordx2 s[{sB}:{sB+1}], s[0:1], {KA_B}")
    if which == 2:
        a(f"s_load_dwordx2 s[{sO}:{sO+1}], s[0:1], {KA_OUT}")
    a(f"v_lshrrev_b32 v{vX}, 6, v0")
    a(f"v_and_b32 v{vLane}, 63, v0")
    a(f"v_readfirstlane_b32 s{sWave}, v{vX}")
    a(f"v_lshrrev_b32 v{vHi}, 5, v{vLane}")
    a(f"v_and_b32 v{vDl}, 31, v{vLane}")
    a(f"s_and_b32 s{sTmp}, s2, 7")
    a(f"s_lshr_b32 s{sTmp+1}, s2, 3")
    a(f"s_and_b32 s{sDt}, s{sTmp}, 1")
    a(f"s_lshl_b32 s{sDt}, s{sDt}, 2")
    a(f"s_and_b32 s{sT}, s{sTmp+1}, 3")
    a(f"s_add_u32 s{sDt}, s{sDt}, s{sT}")
    a(f"s_lshr_b32 s{sTmp}, s{sTmp}, 1")
    a(f"s_mul_i32 s{sTmp}, s{sTmp}, {7 if which == 1 else 8}")
    a(f"s_lshr_b32 s{sT}, s{sTmp+1}, 2")
    a(f"s_add_u32 s{sT}, s{sT}, s{sTmp}")
    a(f"v_lshrrev_b32 v{vX}, 3, v{vLane}")
    a(f"v_lshrrev_b32 v{vX+1}, 2, v{vLane}")
    a(f"v_and_b32 v{vX+1}, 4, v{vX+1}")
    a(f"v_and_b32 v{vX+2}, 7, v{vLane}")
    a(f"v_xor_b32 v{vX+1}, v{vX+1}, v{vX+2}")
    a(f"v_lshlrev_b32 v{vX+1}, 4, v{vX+1}")
    a(f"v_mul_u32_u24 v{vX}, {PITCH}, v{vX}")
    a(f"s_mul_i32 s{sTmp}, s{sWave}, {STEPS*16*PITCH}")
    a(f"s_lshl_b32 s{sTmp+1}, s{sT}, 7")
    a(f"s_add_u32 s{sTmp}, s{sTmp}, s{sTmp+1}")
    a(f"v_add3_u32 v{vW0}, v{vX}, v{vX+1}, s{sTmp}")
    a(f"v_add_u32 v{vW1}, {8*PITCH-1024}, v{vW0}")
    a(f"s_mul_i32 s{sTmp}, s{sDt}, {TSTEPS}")
    a(f"s_mul_i32 s{sTmp+1}, s{sWave}, {STEPS}")
    a(f"s_add_u32 s{sTmp}, s{sTmp}, s{sTmp+1}")
    a(f"s_mul_i32 s{sTmp}, s{sTmp}, 1792")
    a(f"v_lshl_add_u32 v{vA0}, v{vLane}, 4, s{sTmp}")
    a(f"v_min_u32 v{vX}, 23, v{vDl}")
    a(f"v_mad_u32_u24 v{vX}, v{vHi}, 24, v{vX}")
    a(f"v_lshl_add_u32 v{vA1}, v{vX}, 4, s{sTmp}")
    a(f"v_add_u32 v{vA1}, 1024, v{vA1}")
    a(f"s_mul_i32 s{sLds}, s{sWave}, {RING}")
    a("s_waitcnt lgkmcnt(0)")
    srd(a, rW, sW, WBYTES)
    srd(a, rA, sWS, 8 * TSTEPS * 1792, WS_ACT)
    srd(a, rB, sB, BBYTES)
    if which == 1:
        srd(a, rO, sWS, 8 * 112 * 1792, WS_UF)
    else:
        srd(a, rO, sO, S * D * 2)
        srd(a, rH, sWS, S * D * 2, WS_H)

    def issue(step):
        slot = step % DEPTH
        a(f"s_add_u32 m0, s{sLds}, {slot*2048}")
        a(f"s_mov_b32 s{sOW}, {step*16*PITCH}")
        a(f"s_mov_b32 s{sOA}, {step*1792}")
        a(f"buffer_load_dwordx4 v{vW0}, s[{rW}:{rW+3}], s{sOW} offen lds")
        a(f"buffer_load_dwordx4 v{vW1}, s[{rW}:{rW+3}], s{sOW} offen offset:1024 lds")
        a(f"buffer_load_dwordx4 {v(vAct+slot*8,4)}, v{vA0}, s[{rA}:{rA+3}], s{sOA} offen")
        a(f"buffer_load_dwordx4 {v(vAct+slot*8+4,4)}, v{vA1}, s[{rA}:{rA+3}], s{sOA} offen")

    for st in range(min(2, DEPTH)):
        issue(st)
    nside = 0
    if which == 1:
        a(f"s_lshl_b32 s{sTmp}, s{sT}, 2")
        a(f"s_add_u32 s{sTmp}, s{sTmp}, s{sWave}")
        a(f"s_lshl_b32 s{sTmp}, s{sTmp}, 5")
        a(f"v_lshlrev_b32 v{vX}, 3, v{vHi}")
        a(f"buffer_load_dwordx2 {v(vBias,2)}, v{vX}, s[{rB}:{rB+3}], s{sTmp} offen")
        a(f"buffer_load_dwordx2 {v(vBias+2,2)}, v{vX}, s[{rB}:{rB+3}], s{sTmp} offen offset:16")
        nside = 2
    else:
        a(f"s_lshr_b32 s{sTmp}, s{sWave}, 1")
        a(f"s_lshl_b32 s{sTmp+1}, s{sT}, 1")
        a(f"s_add_u32 s{sTmp}, s{sTmp}, s{sTmp+1}")
        a(f"s_lshl_b32 s{sTmp}, s{sTmp}, 5")
        a(f"v_add_u32 v{vX}, s{sTmp}, v{vDl}")
        a(f"v_lshlrev_b32 v{vX+1}, 1, v{vX}")
        a(f"buffer_load_ushort v{vBias}, v{vX+1}, s[{rB}:{rB+3}], 0 offen")
        a(f"s_and_b32 s{sTmp}, s{sWave}, 1")
        a(f"s_lshl_b32 s{sTmp}, s{sTmp}, 6")
        a(f"s_mul_i32 s{sTmp+1}, s{sDt}, 112")
        a(f"s_add_u32 s{sTmp}, s{sTmp}, s{sTmp+1}")
        a(f"v_mul_u32_u24 v{vX}, 896, v{vX}")
        a(f"v_add_u32 v{vX}, s{sTmp}, v{vX}")
        a(f"v_lshl_add_u32 v{vX+1}, v{vHi}, 3, v{vX}")
        a(f"v_lshl_add_u32 v{vBias+1}, v{vHi}, 4, v{vX}")
        for j in range(4):
            a(f"buffer_load_dwordx2 {v(vH+2*j,2)}, v{vX+1}, s[{rH}:{rH+3}], 0 offen offset:{16*j}")
        nside = 5
    for st in range(2, DEPTH):
        issue(st)
    rowsel = 4 if kperm_c else 8
    joff = (8 if kperm_c else 4) * 128
    a(f"v_bfe_u32 v{vX}, v{vLane}, 2, 2")
    a(f"v_mad_u32_u24 v{vX+1}, v{vHi}, {rowsel}, v{vX}")
    a(f"v_lshlrev_b32 v{vX+1}, 7, v{vX+1}")
    a(f"v_bfe_u32 v{vX+2}, v{vLane}, 4, 1")
    a(f"v_lshlrev_b32 v{vX+2}, 5, v{vX+2}")
    a(f"v_and_b32 v{vX+3}, 3, v{vLane}")
    a(f"v_lshl_add_u32 v{vX+2}, v{vX+3}, 3, v{vX+2}")
    a(f"v_bfe_u32 v{vX+3}, v{vLane}, 3, 1")
    a(f"v_lshl_add_u32 v{vX+2}, v{vX+3}, 6, v{vX+2}")
    a(f"v_add3_u32 v{vT0}, v{vX+1}, v{vX+2}, s{sLds}")
    a(f"v_xor_b32 v{vT1}, 64, v{vT0}")
    a(f"v_lshlrev_b32 v{vRed}, 4, v{vLane}")
    a(f"v_add_u32 v{vRed}, {RED}, v{vRed}")
    if which == 1:
        c1 = -2.0 * math.sqrt(2.0 / math.pi) * math.log2(math.e)
        a(f"s_mov_b32 s{sC1}, {hexf(c1)}")
        a(f"s_mov_b32 s{sC2}, {hexf(c1*0.044715)}")

    def trreads(step):
        slot = step % DEPTH
        b = vWf + (step & 1) * 8
        for mt, va in ((0, vT0), (1, vT1)):
            for j in range(2):
                a(f"ds_read_b64_tr_b16 {v(b+mt*4+2*j,2)}, v{va} offset:{slot*2048+j*joff}")

    def outstanding_after(step, issued_upto):
        n = (issued_upto - step) * 4
        if step < 2:
            n += nside if issued_upto >= 1 else 0
        return n

    stamp(a, 1, sTS, diag)
    a(f"s_waitcnt vmcnt({outstanding_after(0, DEPTH-1)})")
    trreads(0)
    stamp(a, 2, sTS, diag)
    for st in range(STEPS):
        issued = min(st + DEPTH - 1, STEPS - 1)
        if st + 1 < STEPS:
            a(f"s_waitcnt vmcnt({outstanding_after(st+1, issued)})")
            trreads(st + 1)
            a("s_waitcnt lgkmcnt(4)")
        else:
            a("s_waitcnt lgkmcnt(0)")
        wf = vWf + (st & 1) * 8
        af = vAct + (st % DEPTH) * 8
        for nt in range(2):
            for mt in range(2):
                d = vAcc + (mt * 2 + nt) * 16
                c = "0" if st == 0 else v(d, 16)
                if which == 1:
                    a(f"v_mfma_f32_32x32x16_bf16 {v(d,16)}, {v(wf+mt*4,4)}, {v(af+nt*4,4)}, {c}")
                else:
                    a(f"v_mfma_f32_32x32x16_bf16 {v(d,16)}, {v(af+nt*4,4)}, {v(wf+mt*4,4)}, {c}")
        if st + DEPTH < STEPS:
            issue(st + DEPTH)
    stamp(a, 3, sTS, diag)
    def part_regs(j):
        if which == 1:
            mt, t = j >> 1, j & 1
            return [vAcc + (mt * 2 + 0) * 16 + 8 * t, vAcc + (mt * 2 + 0) * 16 + 8 * t + 4,
                    vAcc + (mt * 2 + 1) * 16 + 8 * t, vAcc + (mt * 2 + 1) * 16 + 8 * t + 4]
        mt, nt = j >> 1, j & 1
        b = vAcc + (mt * 2 + nt) * 16
        return [b, b + 4, b + 8] + ([b + 12] if nt == 0 else [])
    labs = [f"{name}_ep{w}" for w in range(4)]
    for w in range(1, 4):
        a(f"s_cmp_eq_u32 s{sWave}, {w}")
        a(f"s_cbranch_scc1 {labs[w]}")
    for w in range(4):
        a(f"{labs[w]}:")
        a("s_nop 7")
        a("s_nop 3")
        for j in [(w + 1) & 3, (w + 2) & 3, (w + 3) & 3]:
            i = (w - j - 1) & 3
            for q, r in enumerate(part_regs(j)):
                a(f"ds_write_b128 v{vRed}, {v(r,4)} offset:{(j*3+i)*4096+q*1024}")
        a("s_waitcnt lgkmcnt(0)")
        a("s_barrier")
        own = part_regs(w)
        tmp = vAct
        for i in range(3):
            for q in range(len(own)):
                a(f"ds_read_b128 {v(tmp+i*16+q*4,4)}, v{vRed} offset:{(w*3+i)*4096+q*1024}")
        n = len(own)
        for i in range(3):
            a(f"s_waitcnt lgkmcnt({(2-i)*n})")
            for q in range(n):
                for e in range(4):
                    a(f"v_add_f32 v{own[q]+e}, v{own[q]+e}, v{tmp+i*16+q*4+e}")
        t = vAct + 48
        if which == 1:
            for e in range(4):
                a(f"v_lshlrev_b32 v{t+2*e}, 16, v{vBias+e}")
                a(f"v_and_b32 v{t+2*e+1}, 0xffff0000, v{vBias+e}")
            xs = [own[q] + e for q in range(4) for e in range(4)]
            z = t + 8
            a(f"v_mov_b32 v{t+24}, s{sC1}")
            for i_, x in enumerate(xs):
                a(f"v_add_f32 v{x}, v{x}, v{t+(i_&7)}")
            for i_, x in enumerate(xs):
                a(f"v_mul_f32 v{z+i_}, v{x}, v{x}")
            for i_, x in enumerate(xs):
                a(f"v_fma_f32 v{z+i_}, v{z+i_}, s{sC2}, v{t+24}")
            for i_, x in enumerate(xs):
                a(f"v_mul_f32 v{z+i_}, v{z+i_}, v{x}")
            for i_, x in enumerate(xs):
                a(f"v_exp_f32 v{z+i_}, v{z+i_}")
            for i_, x in enumerate(xs):
                a(f"v_add_f32 v{z+i_}, 1.0, v{z+i_}")
            for i_, x in enumerate(xs):
                a(f"v_rcp_f32 v{z+i_}, v{z+i_}")
            for i_, x in enumerate(xs):
                a(f"v_mul_f32 v{x}, v{x}, v{z+i_}")
            pk = vWf
            for i_ in range(8):
                a(f"v_cvt_pk_bf16_f32 v{pk+i_}, v{xs[2*i_]}, v{xs[2*i_+1]}")
            a(f"s_mul_i32 s{sTmp}, s{sDt}, 112")
            a(f"s_lshl_b32 s{sTmp+1}, s{sT}, 2")
            a(f"s_add_u32 s{sTmp}, s{sTmp}, s{sTmp+1}")
            a(f"s_add_u32 s{sTmp}, s{sTmp}, {w}")
            a(f"s_mul_i32 s{sTmp}, s{sTmp}, 1792")
            a(f"v_lshlrev_b32 v{vX}, 4, v{vLane}")
            a(f"v_mad_u32_u24 v{vX+1}, v{vHi}, 24, v{vDl}")
            a(f"v_lshlrev_b32 v{vX+1}, 4, v{vX+1}")
            a(f"buffer_store_dwordx4 {v(pk,4)}, v{vX}, s[{rO}:{rO+3}], s{sTmp} offen")
            a(f"v_cmp_gt_u32 vcc, 24, v{vDl}")
            a(f"s_and_saveexec_b64 s[{sEx}:{sEx+1}], vcc")
            a(f"buffer_store_dwordx4 {v(pk+4,4)}, v{vX+1}, s[{rO}:{rO+3}], s{sTmp} offen offset:1024")
        else:
            a(f"v_lshlrev_b32 v{vBias}, 16, v{vBias}")
            for q in range(n):
                a(f"v_lshlrev_b32 v{t+4*q}, 16, v{vH+2*q}")
                a(f"v_and_b32 v{t+4*q+1}, 0xffff0000, v{vH+2*q}")
                a(f"v_lshlrev_b32 v{t+4*q+2}, 16, v{vH+2*q+1}")
                a(f"v_and_b32 v{t+4*q+3}, 0xffff0000, v{vH+2*q+1}")
            for q in range(n):
                for e in range(4):
                    a(f"v_add_f32 v{own[q]+e}, v{own[q]+e}, v{vBias}")
            for q in range(n):
                for e in range(4):
                    a(f"v_add_f32 v{own[q]+e}, v{own[q]+e}, v{t+4*q+e}")
            pk = vWf
            for q in range(n):
                a(f"v_cvt_pk_bf16_f32 v{pk+2*q}, v{own[q]}, v{own[q]+1}")
                a(f"v_cvt_pk_bf16_f32 v{pk+2*q+1}, v{own[q]+2}, v{own[q]+3}")
            a("s_nop 1")
            for p in range(2):
                a(f"v_permlane32_swap_b32 v{pk+4*p}, v{pk+4*p+2}")
                a(f"v_permlane32_swap_b32 v{pk+4*p+1}, v{pk+4*p+3}")
            a(f"buffer_store_dwordx4 {v(pk,4)}, v{vBias+1}, s[{rO}:{rO+3}], 0 offen")
            if n == 3:
                a(f"v_cmp_eq_u32 vcc, 0, v{vHi}")
                a(f"s_and_saveexec_b64 s[{sEx}:{sEx+1}], vcc")
            a(f"buffer_store_dwordx4 {v(pk+4,4)}, v{vBias+1}, s[{rO}:{rO+3}], 0 offen offset:32")
        if diag:
            a("s_mov_b64 exec, -1")
            a("s_waitcnt vmcnt(0)")
            stamp(a, 4, sTS, diag)
            stamp_flush(a, 5, sTS, sWS, sWave, kidx, vX, diag)
        a("s_endpgm")
    a(f"{done}:")
    a("s_endpgm")
    return dict(name=name, grid=NWG, block=256, lds=LDS, vgprs=R.hi)
```

```python
import sys, os
sys.path.insert(0, os.path.dirname(os.path.abspath(__file__)))
from asmlib import *
from layout import *
import gemm

NAME = "sequential_preLN__sliding_block__mixer_token_mlp__prompt"

def empty_kernel(a, name):
    kernel_header(a, name)
    a("s_endpgm")
    return dict(name=name, grid=256, block=256, lds=0, vgprs=8)

def build(opts):
    a = Asm()
    ks = []
    diag = int(opts.get("diag", 0))
    only = opts.get("only", "12345")
    if "spin" in opts:
        gemm.MARK[0] = 1
    if "1" in only:
        import qkv
        ks.append(qkv.qkv_kernel(a, "qkv_kernel", diag=diag, kidx=0, opts=opts))
    if "2" in only:
        import attn
        ks.append(attn.attn_kernel(a, "attn_kernel", diag=diag, kidx=1, opts=opts))
    if "3" in only:
        import proj
        ks.append(proj.proj_kernel(a, "proj_kernel", diag=diag, kidx=2, opts=opts))
    if "4" in only:
        ks.append(gemm.gemm_kernel(a, "mix1_kernel", 1, DEPTH=int(opts.get("d4", 12)), diag=diag, kidx=3, opts=opts))
    if "5" in only:
        ks.append(gemm.gemm_kernel(a, "mix2_kernel", 2, DEPTH=int(opts.get("d5", 12)), diag=diag, kidx=4, opts=opts))
    if "spin" in opts:
        i, j, m = map(int, opts["spin"].split(","))
        ks.append(gemm.spin_kernel(a, "spin_kernel", i, j, m))
    launches = list(ks)
    nempty = int(opts.get("empty", 0))
    if nempty:
        e = empty_kernel(a, "nop_kernel")
        ks.append(e)
        launches += [e] * nempty
    for k in ks:
        kernel_desc(a, k["name"], k["vgprs"], k.get("agprs", 0))
    hdr = ["; hand-written generator output (gen/*.py): LN+QKV, sliding-window attention, Wo+LN, token-mixing MLP",
           "; kernarg: 0 x, 8 wqkv, 16 wo, 24 (unused), 32 w1, 40 b1, 48 w2, 56 b2, 64 out, 72 debug, 80 ws"]
    for k in launches:
        hdr.append(f"; @launch kernel={k['name']} grid=({k['grid']},1,1) block=({k['block']},1,1) lds={k['lds']}")
    hdr.append('.amdgcn_target "amdgcn-amd-amdhsa--gfx950"')
    return "\n".join(hdr) + "\n" + a.text()

if __name__ == "__main__":
    args = sys.argv[1:]
    out = f"cdna_kernels/{NAME}.s"
    opts = {}
    for x in args:
        if "=" in x:
            k, v_ = x.split("=", 1); opts[k] = v_
        else:
            out = x
    t = build(opts)
    open(out, "w").write(t)
    print("wrote", out, len(t), "bytes")
```

```python
from asmlib import *
from layout import *
from gemm import stamp, stamp_flush, pf_setup, pf_issue

def attn_kernel(a, name, diag=False, kidx=1, opts={}):
    NWG = 256
    VB = 24 * 1024
    LDS = 48 * 1024
    tbx = int(opts.get("k2tb", opts.get("k1tb", 4)))
    sWS = 8
    rQ, rO = 12, 16
    sWave, sH, sTb, sT0, sT1, sNeg, sHb, sL = 28, 29, 30, 33, 34, 35, 36, 37
    mPar, mA, mB = 52, 54, 56
    mk = [72, 74, 76, 78]
    sTS = 60
    R = Regs(1)
    vL = R.get(); vLo = R.get(); vKa = R.get(); vVa = R.get(); vSt = R.get()
    vT = R.get(8, 2)
    vQf = R.get(4, 4)
    vO = R.get(8, 4)
    vS = R.get(72, 4)
    vP = R.get(36, 4)
    vF = R.get(72, 4)
    pf = [x for x in opts.get('pf2', '').split(',') if x]
    vPf = R.get(6)
    done = f"{name}_done"
    kernel_header(a, name)
    a(f"s_cmp_ge_u32 s2, {NWG}")
    a(f"s_cbranch_scc1 {done}")
    stamp(a, 0, sTS, diag, kidx)
    a(f"s_load_dwordx2 s[{sWS}:{sWS+1}], s[0:1], {KA_WS}")
    for i, w_ in enumerate(pf):
        pf_setup(a, w_, 82 + 2 * i)
    a(f"v_lshrrev_b32 v{vT}, 6, v0")
    a(f"v_and_b32 v{vL}, 63, v0")
    a(f"v_readfirstlane_b32 s{sWave}, v{vT}")
    nx = 16 // tbx; hx = 8 // nx
    lg = lambda n: n.bit_length() - 1
    a(f"s_and_b32 s{sT0}, s2, 7")
    a(f"s_lshr_b32 s{sT1}, s2, 3")
    a(f"s_lshr_b32 s{sTb}, s{sT0}, {lg(hx)}")
    a(f"s_lshl_b32 s{sTb}, s{sTb}, {lg(tbx)}")
    a(f"s_and_b32 s{sH}, s{sT1}, {tbx-1}")
    a(f"s_add_u32 s{sTb}, s{sTb}, s{sH}")
    a(f"s_and_b32 s{sH}, s{sT0}, {hx-1}")
    a(f"s_lshl_b32 s{sH}, s{sH}, {lg(16//hx)}")
    a(f"s_lshr_b32 s{sT1}, s{sT1}, {lg(tbx)}")
    a(f"s_add_u32 s{sH}, s{sH}, s{sT1}")
    a(f"v_lshlrev_b32 v{vLo}, 4, v{vL}")
    a(f"s_lshl_b32 s{sHb}, s{sH}, 17")
    a(f"s_mul_i32 s{sL}, s{sWave}, 3072")
    a(f"s_lshl_b32 s{sT0}, s{sTb}, 3")
    a(f"s_mul_i32 s{sT1}, s{sWave}, 3")
    a(f"s_add_u32 s{sT1}, s{sT1}, s{sT0}")
    a(f"s_sub_u32 s{sT1}, s{sT1}, 16")
    for i in range(3):
        a(f"s_add_i32 s{40+i}, s{sT1}, {i}")
        a(f"s_max_i32 s{40+i}, s{40+i}, 0")
        a(f"s_lshl_b32 s{40+i}, s{40+i}, 10")
        a(f"s_add_u32 s{40+i}, s{40+i}, s{sHb}")
        a(f"s_add_u32 s{44+i}, s{40+i}, {WS_VF - i*1024}")
        a(f"s_add_u32 s{40+i}, s{40+i}, {WS_KF - i*1024}")
    a(f"s_add_u32 s{sT0}, s{sT0}, s{sWave}")
    a(f"s_lshl_b32 s{sT1}, s{sT0}, 10")
    a(f"s_add_u32 s{sT1}, s{sT1}, s{sHb}")
    a(f"s_mov_b32 m0, s{sL}")
    a("s_waitcnt lgkmcnt(0)")
    srd(a, rQ, sWS, 6 * MB)
    a(f"buffer_load_dwordx4 {v(vQf,4)}, v{vLo}, s[{rQ}:{rQ+3}], s{sT1} offen")
    for i in range(3):
        a(f"buffer_load_dwordx4 v{vLo}, s[{rQ}:{rQ+3}], s{40+i} offen offset:{i*1024} lds")
    a(f"s_add_u32 m0, s{sL}, {VB}")
    srd(a, rO, sWS, 2 * MB, WS_O)
    for i in range(3):
        a(f"buffer_load_dwordx4 v{vLo}, s[{rQ}:{rQ+3}], s{44+i} offen offset:{i*1024} lds")
    stamp(a, 1, sTS, diag)
    a(f"s_sub_i32 s{sNeg}, 16, s{sT0}")
    a(f"s_lshl_b32 s{sT1}, s{sWave}, 10")
    a(f"v_add_u32 v{vKa}, s{sT1}, v{vLo}")
    a(f"s_lshr_b32 s{sT1}, s{sWave}, 1")
    a(f"s_lshl_b32 s{sT1}, s{sT1}, 11")
    a(f"s_add_u32 s{sT1}, s{sT1}, {VB}")
    a(f"v_add_u32 v{vVa}, s{sT1}, v{vLo}")
    for r in range(4):
        pat = sum(1 << l for l in range(64) if 4 * (l >> 4) + r > (l & 15))
        a(f"s_mov_b32 s{mk[r]}, 0x{pat & 0xffffffff:08x}")
        a(f"s_mov_b32 s{mk[r]+1}, 0x{pat >> 32:08x}")
    a(f"s_and_b32 s{sT1}, s{sH}, 1")
    a(f"s_cmp_eq_u32 s{sT1}, 1")
    a(f"s_cselect_b64 s[{mPar}:{mPar+1}], -1, 0")
    a(f"s_cselect_b32 s{mA}, 0xffff, 0")
    a(f"s_mov_b32 s{mA+1}, 0")
    a(f"s_mov_b32 s{mB}, 0")
    a(f"s_cselect_b32 s{mB+1}, 0, 0xffff0000")
    a(f"s_lshr_b32 s{sT1}, s{sT0}, 1")
    a(f"s_lshl_b32 s{sT1}, s{sT1}, 4")
    a(f"s_add_u32 s{sT1}, s{sT1}, s{sH}")
    a(f"s_lshl_b32 s{sT1}, s{sT1}, 11")
    a(f"s_and_b32 s{sT0}, s{sT0}, 1")
    a(f"s_lshl_b32 s{sT0}, s{sT0}, 8")
    a(f"s_add_u32 s{sT1}, s{sT1}, s{sT0}")
    a(f"v_lshrrev_b32 v{vT}, 4, v{vL}")
    a(f"v_and_b32 v{vT+1}, 15, v{vL}")
    a(f"v_lshlrev_b32 v{vT+1}, 4, v{vT+1}")
    a(f"v_lshl_add_u32 v{vT}, v{vT}, 9, v{vT+1}")
    a(f"v_add_u32 v{vSt}, s{sT1}, v{vT}")
    a(f"v_mov_b32 v{vT+7}, 0xff800000")
    a("s_waitcnt vmcnt(3)")
    a("s_barrier")
    stamp(a, 2, sTS, diag)
    odd = f"{name}_odd"
    a(f"s_bitcmp1_b32 s{sWave}, 0")
    a(f"s_cbranch_scc1 {odd}")
    for par in range(2):
        if par:
            a(f"{odd}:")
        St = lambda t: vS + 4 * (t + par)
        for t in range(8):
            a(f"ds_read_b128 {v(vF+4*t,4)}, v{vKa} offset:{t*1024}")
        for t in range(17):
            if t + 8 < 17:
                a(f"ds_read_b128 {v(vF+4*(t+8),4)}, v{vKa} offset:{(t+8)*1024}")
            a(f"s_waitcnt lgkmcnt({min(8, 16-t)})")
            a(f"v_mfma_f32_16x16x32_bf16 {v(St(t),4)}, {v(vF+4*t,4)}, {v(vQf,4)}, 0")
        a("s_waitcnt vmcnt(0)")
        a("s_barrier")
        for i, w_ in enumerate(pf):
            pf_issue(a, w_, 82 + 2 * i, 88, 92, sWave, vL, vPf, vPf + 2 + i, nwaves=8)
        for p in range(7):
            for dtile in range(2):
                a(f"ds_read_b128 {v(vF+8*p+4*dtile,4)}, v{vVa} offset:{p*2048+dtile*1024}")
        for r in range(4):
            a(f"v_cndmask_b32 v{St(0)+r}, v{vT+7}, v{St(0)+r}, s[{mk[r]}:{mk[r]+1}]")
        fx = a.label("k2fx")
        for t in range(16):
            a(f"s_cmp_le_i32 s{sNeg}, {t}")
            a(f"s_cbranch_scc1 {fx}")
            for r in range(4):
                a(f"v_mov_b32 v{St(t)+r}, v{vT+7}")
        a(f"{fx}:")
        m0_, m1_ = vT, vT + 1
        a(f"v_max3_f32 v{m0_}, v{St(0)}, v{St(0)+1}, v{St(0)+2}")
        a(f"v_max3_f32 v{m1_}, v{St(0)+3}, v{St(1)}, v{St(1)+1}")
        vals = [St(1) + 2, St(1) + 3] + [St(t) + r for t in range(2, 16) for r in range(4)]
        ch = 0
        for i in range(0, len(vals), 2):
            m = (m0_, m1_)[ch]; ch ^= 1
            a(f"v_max3_f32 v{m}, v{m}, v{vals[i]}, v{vals[i+1]}")
        for r in range(4):
            a(f"v_cndmask_b32 v{St(16)+r}, v{St(16)+r}, v{vT+7}, s[{mk[r]}:{mk[r]+1}]")
        a(f"v_max3_f32 v{m0_}, v{m0_}, v{St(16)}, v{St(16)+1}")
        a(f"v_max3_f32 v{m1_}, v{m1_}, v{St(16)+2}, v{St(16)+3}")
        a(f"v_max_f32 v{m0_}, v{m0_}, v{m1_}")
        a(f"v_mov_b32 v{m1_}, v{m0_}")
        a("s_nop 1")
        a(f"v_permlane32_swap_b32 v{m0_}, v{m1_}")
        a("s_nop 0")
        a(f"v_max_f32 v{m0_}, v{m0_}, v{m1_}")
        a(f"v_mov_b32 v{m1_}, v{m0_}")
        a("s_nop 1")
        a(f"v_permlane16_swap_b32 v{m0_}, v{m1_}")
        a("s_nop 0")
        a(f"v_max_f32 v{m0_}, v{m0_}, v{m1_}")
        empty = 17 if par == 0 else 0
        a(f"v_mov_b32 v{vP+2*empty}, 0")
        a(f"v_mov_b32 v{vP+2*empty+1}, 0")
        def softmax_pair(p):
            sl = [x for x in (2 * p, 2 * p + 1) if x != empty]
            regs = [vS + 4 * x + r for x in sl for r in range(4)]
            for r in regs:
                a(f"v_sub_f32 v{r}, v{r}, v{m0_}")
            for r in regs:
                a(f"v_exp_f32 v{r}, v{r}")
            return sl
        def pack_pair(sl):
            for x in sl:
                a(f"v_cvt_pk_bf16_f32 v{vP+2*x}, v{vS+4*x}, v{vS+4*x+1}")
                a(f"v_cvt_pk_bf16_f32 v{vP+2*x+1}, v{vS+4*x+2}, v{vS+4*x+3}")
        def pv(p):
            for dtile in range(2):
                c = "0" if p == 0 else v(vO + 4 * dtile, 4)
                a(f"v_mfma_f32_16x16x32_bf16 {v(vO+4*dtile,4)}, {v(vF+8*p+4*dtile,4)}, {v(vP+4*p,4)}, {c}")
        sl = softmax_pair(0)
        a("s_nop 0")
        pack_pair(sl)
        for p in range(9):
            if p + 1 < 9:
                sl = softmax_pair(p + 1)
            if p == 0:
                a("s_waitcnt lgkmcnt(0)")
                for pp in range(7, 9):
                    for dtile in range(2):
                        a(f"ds_read_b128 {v(vF+8*pp+4*dtile,4)}, v{vVa} offset:{pp*2048+dtile*1024}")
            if p == 7:
                a("s_waitcnt lgkmcnt(0)")
            if p == 8:
                a("s_nop 1")
            pv(p)
            if p + 1 < 9:
                pack_pair(sl)
        stamp(a, 3, sTS, diag)
        a("s_nop 7")
        a(f"v_cndmask_b32 v{vT+2}, v{vO+4}, v{vO}, s[{mPar}:{mPar+1}]")
        a(f"v_mov_b32 v{vT+3}, v{vT+2}")
        a("s_nop 1")
        a(f"v_permlane32_swap_b32 v{vT+2}, v{vT+3}")
        a("s_nop 0")
        a(f"v_cndmask_b32 v{vT+2}, v{vT+3}, v{vT+2}, s[{mPar}:{mPar+1}]")
        a(f"v_mov_b32 v{vT+3}, v{vT+2}")
        a("s_nop 1")
        a(f"v_permlane16_swap_b32 v{vT+2}, v{vT+3}")
        a("s_nop 0")
        a(f"v_cndmask_b32 v{vT+2}, v{vT+3}, v{vT+2}, s[{mPar}:{mPar+1}]")
        a(f"v_rcp_f32 v{vT+2}, v{vT+2}")
        a("s_nop 0")
        for r in range(8):
            a(f"v_mul_f32 v{vO+r}, v{vO+r}, v{vT+2}")
        for r in range(4):
            a(f"v_cvt_pk_bf16_f32 v{vQf+r}, v{vO+2*r}, v{vO+2*r+1}")
        for r in range(2):
            a(f"v_cndmask_b32 v{vQf+r}, v{vQf+r}, 0, s[{mA}:{mA+1}]")
            a(f"v_cndmask_b32 v{vQf+2+r}, v{vQf+2+r}, 0, s[{mB}:{mB+1}]")
        a(f"buffer_store_dwordx4 {v(vQf,4)}, v{vSt}, s[{rO}:{rO+3}], 0 offen")
        if pf and not diag:
            a("s_waitcnt vmcnt(1)")
        if diag:
            a("s_waitcnt vmcnt(0)")
            stamp(a, 4, sTS, diag)
            stamp_flush(a, 5, sTS, sWS, sWave, kidx, vT, diag, nwaves=8)
        a("s_endpgm")
    a(f"{done}:")
    a("s_endpgm")
    return dict(name=name, grid=NWG, block=512, lds=LDS, vgprs=R.hi)
```

```python
import math
from asmlib import *
from layout import *

MARK = [None]
def mark(a, kidx):
    if MARK[0] is None:
        return
    lab = a.label("mk")
    a("s_cmp_lg_u32 s2, 0")
    a(f"s_cbranch_scc1 {lab}")
    a("s_memrealtime s[90:91]")
    a(f"s_load_dwordx2 s[92:93], s[0:1], {KA_WS}")
    a("s_waitcnt lgkmcnt(0)")
    srd(a, 96, 92, 4096, WS_TS)
    a("v_mov_b32 v1, s90")
    a(f"v_mov_b32 v2, {4*kidx}")
    a("buffer_store_dword v1, v2, s[96:99], 0 offen")
    a("s_waitcnt vmcnt(0)")
    a(f"{lab}:")

def spin_kernel(a, name, i, j, mult):
    kernel_header(a, name)
    a("s_cmp_lg_u32 s2, 0")
    a(f"s_cbranch_scc1 {name}_done")
    a("s_memrealtime s[10:11]")
    a(f"s_load_dwordx2 s[4:5], s[0:1], {KA_WS}")
    a("s_waitcnt lgkmcnt(0)")
    srd(a, 12, 4, 4096, WS_TS)
    a("v_lshlrev_b32 v1, 2, v0")
    a("buffer_load_dword v2, v1, s[12:15], 0 offen sc1")
    a("s_waitcnt vmcnt(0)")
    a(f"v_readlane_b32 s6, v2, {i}")
    if j >= 0:
        a(f"v_readlane_b32 s7, v2, {j}")
    else:
        a("s_mov_b32 s7, s10")
    a("s_nop 3")
    a("s_sub_u32 s6, s7, s6")
    a("s_min_u32 s6, s6, 10000")
    a(f"s_mul_i32 s6, s6, {mult}")
    a(f"{name}_lp:")
    a("s_memrealtime s[8:9]")
    a("s_waitcnt lgkmcnt(0)")
    a("s_sub_u32 s8, s8, s10")
    a("s_cmp_lt_u32 s8, s6")
    a(f"s_cbranch_scc1 {name}_lp")
    a(f"{name}_done:")
    a("s_endpgm")
    return dict(name=name, grid=1, block=64, lds=0, vgprs=8)

def stamp(a, idx, sTS, diag, kidx=0):
    if idx == 0:
        mark(a, kidx)
    if diag:
        a(f"s_memrealtime s[{sTS+2*idx}:{sTS+2*idx+1}]")

def stamp_flush(a, n, sTS, sWS, sWave, kidx, vtmp, diag, nwaves=4):
    if not diag:
        return
    a("s_waitcnt lgkmcnt(0)")
    srd(a, 96, sWS, 1 << 20, WS_TS + kidx * 65536 * 2)
    a(f"s_mul_i32 s100, s2, {nwaves}")
    a(f"s_add_u32 s100, s100, s{sWave}")
    a(f"s_lshl_b32 s100, s100, 6")
    for i in range(n):
        a(f"v_mov_b32 v{vtmp}, s{sTS+2*i}")
        a(f"v_mov_b32 v{vtmp+1}, 0")
        a(f"buffer_store_dword v{vtmp}, v{vtmp+1}, s[96:99], s100 offen offset:{4*i}")
    a("s_waitcnt vmcnt(0)")

def pf_setup(a, which, sP):
    a(f"s_load_dwordx2 s[{sP}:{sP+1}], s[0:1], {dict(w1=KA_W1, w2=KA_W2, wo=KA_WO)[which]}")

def pf_issue(a, which, sP, rP, sT, sWave, vL, vT, vD, nwaves=4):
    if which == "wo":
        srd(a, rP, sP, D * D * 2)
        a(f"s_lshr_b32 s{sT}, s2, 3")
        a(f"s_mul_i32 s{sT}, s{sT}, {nwaves}")
        a(f"s_add_u32 s{sT}, s{sT}, s{sWave}")
        a(f"s_lshl_b32 s{sT}, s{sT}, {12 if nwaves == 4 else 11}")
        a(f"v_lshlrev_b32 v{vT}, {6 if nwaves == 4 else 5}, v{vL}")
        a(f"buffer_load_dword v{vD}, v{vT}, s[{rP}:{rP+3}], s{sT} offen")
        return 1
    pitch, nl, rows = (F * 2, 7, 64) if which == "w1" else (S * 2, 8, 56)
    srd(a, rP, sP, S * F * 2)
    per = 8 // nwaves
    a(f"s_lshr_b32 s{sT}, s2, 3")
    a(f"s_mul_i32 s{sT}, s{sT}, {rows*pitch}")
    a(f"s_mul_i32 s{sT+1}, s{sWave}, {per*8*pitch}")
    a(f"s_add_u32 s{sT}, s{sT}, s{sT+1}")
    a(f"s_bfe_u32 s{sT+1}, s2, 0x20001")
    a(f"s_mul_i32 s{sT+1}, s{sT+1}, {nl*128}")
    a(f"s_add_u32 s{sT}, s{sT}, s{sT+1}")
    a(f"v_lshrrev_b32 v{vT}, 3, v{vL}")
    a(f"v_mul_u32_u24 v{vT}, {pitch}, v{vT}")
    a(f"v_and_b32 v{vT+1}, 7, v{vL}")
    if nl == 7:
        a(f"v_min_u32 v{vT+1}, 6, v{vT+1}")
    a(f"v_lshl_add_u32 v{vT}, v{vT+1}, 7, v{vT}")
    for k in range(per):
        if k:
            a(f"s_add_u32 s{sT}, s{sT}, {8*pitch}")
        a(f"buffer_load_dword v{vD+k}, v{vT}, s[{rP}:{rP+3}], s{sT} offen")
    return per

def gemm_kernel(a, name, which, DEPTH=12, diag=False, kperm_c=True, kidx=0, opts={}):
    if which == 1:
        NWG, PITCH, STEPS, KA_W, KA_B = 224, F * 2, 32, KA_W1, KA_B1
        WBYTES, BBYTES, WS_ACT = S * F * 2, F * 2, WS_HN
    else:
        NWG, PITCH, STEPS, KA_W, KA_B = 256, S * 2, 28, KA_W2, KA_B2
        WBYTES, BBYTES, WS_ACT = F * S * 2, S * 2, WS_UF
    TSTEPS = STEPS * 4
    RING = DEPTH * 2048
    RED = 4 * RING
    LDS = RED + 12 * 4096
    assert LDS <= 163840 and (DEPTH - 1) * 4 + 8 <= 63
    sW, sWS, sB, sO = 4, 6, 8, 10
    rW, rA, rB, rO, rH = 12, 16, 20, 24, 28
    sWave, sDt, sT, sLds, sOW, sOA, sTmp = 32, 33, 34, 35, 36, 37, 38
    sC1, sC2 = 40, 41
    sEx = 42
    sTS = 60
    R = Regs(1)
    vLane = R.get(); vHi = R.get(); vDl = R.get()
    vW0 = R.get(); vW1 = R.get(); vA0 = R.get(); vA1 = R.get()
    vT0 = R.get(); vT1 = R.get()
    vRed = R.get(); vX = R.get(4)
    vBias = R.get(4, 2)
    vH = R.get(8, 2)
    vAcc = R.get(64, 4)
    vWf = R.get(16, 4)
    vAct = R.get(DEPTH * 8, 4)
    done = f"{name}_done"
    kernel_header(a, name)
    a(f"s_cmp_ge_u32 s2, {NWG}")
    a(f"s_cbranch_scc1 {done}")
    stamp(a, 0, sTS, diag, kidx)
    a(f"s_load_dwordx2 s[{sW}:{sW+1}], s[0:1], {KA_W}")
    a(f"s_load_dwordx2 s[{sWS}:{sWS+1}], s[0:1], {KA_WS}")
    a(f"s_load_dwordx2 s[{sB}:{sB+1}], s[0:1], {KA_B}")
    if which == 2:
        a(f"s_load_dwordx2 s[{sO}:{sO+1}], s[0:1], {KA_OUT}")
    a(f"v_lshrrev_b32 v{vX}, 6, v0")
    a(f"v_and_b32 v{vLane}, 63, v0")
    a(f"v_readfirstlane_b32 s{sWave}, v{vX}")
    a(f"v_lshrrev_b32 v{vHi}, 5, v{vLane}")
    a(f"v_and_b32 v{vDl}, 31, v{vLane}")
    a(f"s_and_b32 s{sTmp}, s2, 7")
    a(f"s_lshr_b32 s{sTmp+1}, s2, 3")
    a(f"s_and_b32 s{sDt}, s{sTmp}, 1")
    a(f"s_lshl_b32 s{sDt}, s{sDt}, 2")
    a(f"s_and_b32 s{sT}, s{sTmp+1}, 3")
    a(f"s_add_u32 s{sDt}, s{sDt}, s{sT}")
    a(f"s_lshr_b32 s{sTmp}, s{sTmp}, 1")
    a(f"s_mul_i32 s{sTmp}, s{sTmp}, {7 if which == 1 else 8}")
    a(f"s_lshr_b32 s{sT}, s{sTmp+1}, 2")
    a(f"s_add_u32 s{sT}, s{sT}, s{sTmp}")
    a(f"v_lshrrev_b32 v{vX}, 3, v{vLane}")
    a(f"v_lshrrev_b32 v{vX+1}, 2, v{vLane}")
    a(f"v_and_b32 v{vX+1}, 4, v{vX+1}")
    a(f"v_and_b32 v{vX+2}, 7, v{vLane}")
    a(f"v_xor_b32 v{vX+1}, v{vX+1}, v{vX+2}")
    a(f"v_lshlrev_b32 v{vX+1}, 4, v{vX+1}")
    a(f"v_mul_u32_u24 v{vX}, {PITCH}, v{vX}")
    a(f"s_mul_i32 s{sTmp}, s{sWave}, {STEPS*16*PITCH}")
    a(f"s_lshl_b32 s{sTmp+1}, s{sT}, 7")
    a(f"s_add_u32 s{sTmp}, s{sTmp}, s{sTmp+1}")
    a(f"v_add3_u32 v{vW0}, v{vX}, v{vX+1}, s{sTmp}")
    a(f"v_add_u32 v{vW1}, {8*PITCH-1024}, v{vW0}")
    a(f"s_mul_i32 s{sTmp}, s{sDt}, {TSTEPS}")
    a(f"s_mul_i32 s{sTmp+1}, s{sWave}, {STEPS}")
    a(f"s_add_u32 s{sTmp}, s{sTmp}, s{sTmp+1}")
    a(f"s_mul_i32 s{sTmp}, s{sTmp}, 1792")
    a(f"v_lshl_add_u32 v{vA0}, v{vLane}, 4, s{sTmp}")
    a(f"v_min_u32 v{vX}, 23, v{vDl}")
    a(f"v_mad_u32_u24 v{vX}, v{vHi}, 24, v{vX}")
    a(f"v_lshl_add_u32 v{vA1}, v{vX}, 4, s{sTmp}")
    a(f"v_add_u32 v{vA1}, 1024, v{vA1}")
    a(f"s_mul_i32 s{sLds}, s{sWave}, {RING}")
    a("s_waitcnt lgkmcnt(0)")
    srd(a, rW, sW, WBYTES)
    srd(a, rA, sWS, 8 * TSTEPS * 1792, WS_ACT)
    srd(a, rB, sB, BBYTES)
    if which == 1:
        srd(a, rO, sWS, 8 * 112 * 1792, WS_UF)
    else:
        srd(a, rO, sO, S * D * 2)
        srd(a, rH, sWS, S * D * 2, WS_H)

    def issue(step):
        slot = step % DEPTH
        a(f"s_add_u32 m0, s{sLds}, {slot*2048}")
        a(f"s_mov_b32 s{sOW}, {step*16*PITCH}")
        a(f"s_mov_b32 s{sOA}, {step*1792}")
        a(f"buffer_load_dwordx4 v{vW0}, s[{rW}:{rW+3}], s{sOW} offen lds")
        a(f"buffer_load_dwordx4 v{vW1}, s[{rW}:{rW+3}], s{sOW} offen offset:1024 lds")
        a(f"buffer_load_dwordx4 {v(vAct+slot*8,4)}, v{vA0}, s[{rA}:{rA+3}], s{sOA} offen")
        a(f"buffer_load_dwordx4 {v(vAct+slot*8+4,4)}, v{vA1}, s[{rA}:{rA+3}], s{sOA} offen")

    for st in range(min(2, DEPTH)):
        issue(st)
    nside = 0
    if which == 1:
        a(f"s_lshl_b32 s{sTmp}, s{sT}, 2")
        a(f"s_add_u32 s{sTmp}, s{sTmp}, s{sWave}")
        a(f"s_lshl_b32 s{sTmp}, s{sTmp}, 5")
        a(f"v_lshlrev_b32 v{vX}, 3, v{vHi}")
        a(f"buffer_load_dwordx2 {v(vBias,2)}, v{vX}, s[{rB}:{rB+3}], s{sTmp} offen")
        a(f"buffer_load_dwordx2 {v(vBias+2,2)}, v{vX}, s[{rB}:{rB+3}], s{sTmp} offen offset:16")
        nside = 2
    else:
        a(f"s_lshr_b32 s{sTmp}, s{sWave}, 1")
        a(f"s_lshl_b32 s{sTmp+1}, s{sT}, 1")
        a(f"s_add_u32 s{sTmp}, s{sTmp}, s{sTmp+1}")
        a(f"s_lshl_b32 s{sTmp}, s{sTmp}, 5")
        a(f"v_add_u32 v{vX}, s{sTmp}, v{vDl}")
        a(f"v_lshlrev_b32 v{vX+1}, 1, v{vX}")
        a(f"buffer_load_ushort v{vBias}, v{vX+1}, s[{rB}:{rB+3}], 0 offen")
        a(f"s_and_b32 s{sTmp}, s{sWave}, 1")
        a(f"s_lshl_b32 s{sTmp}, s{sTmp}, 6")
        a(f"s_mul_i32 s{sTmp+1}, s{sDt}, 112")
        a(f"s_add_u32 s{sTmp}, s{sTmp}, s{sTmp+1}")
        a(f"v_mul_u32_u24 v{vX}, 896, v{vX}")
        a(f"v_add_u32 v{vX}, s{sTmp}, v{vX}")
        a(f"v_lshl_add_u32 v{vX+1}, v{vHi}, 3, v{vX}")
        a(f"v_lshl_add_u32 v{vBias+1}, v{vHi}, 4, v{vX}")
        for j in range(4):
            a(f"buffer_load_dwordx2 {v(vH+2*j,2)}, v{vX+1}, s[{rH}:{rH+3}], 0 offen offset:{16*j}")
        nside = 5
    INIT = int(opts.get(f"init{which+3}", DEPTH))
    RAMP = int(opts.get(f"ramp{which+3}", 2))
    for st in range(2, INIT):
        issue(st)
    rowsel = 4 if kperm_c else 8
    joff = (8 if kperm_c else 4) * 128
    a(f"v_bfe_u32 v{vX}, v{vLane}, 2, 2")
    a(f"v_mad_u32_u24 v{vX+1}, v{vHi}, {rowsel}, v{vX}")
    a(f"v_lshlrev_b32 v{vX+1}, 7, v{vX+1}")
    a(f"v_bfe_u32 v{vX+2}, v{vLane}, 4, 1")
    a(f"v_lshlrev_b32 v{vX+2}, 5, v{vX+2}")
    a(f"v_and_b32 v{vX+3}, 3, v{vLane}")
    a(f"v_lshl_add_u32 v{vX+2}, v{vX+3}, 3, v{vX+2}")
    a(f"v_bfe_u32 v{vX+3}, v{vLane}, 3, 1")
    a(f"v_lshl_add_u32 v{vX+2}, v{vX+3}, 6, v{vX+2}")
    a(f"v_add3_u32 v{vT0}, v{vX+1}, v{vX+2}, s{sLds}")
    a(f"v_xor_b32 v{vT1}, 64, v{vT0}")
    a(f"v_lshlrev_b32 v{vRed}, 4, v{vLane}")
    a(f"v_add_u32 v{vRed}, {RED}, v{vRed}")
    if which == 1:
        c1 = -2.0 * math.sqrt(2.0 / math.pi) * math.log2(math.e)
        a(f"s_mov_b32 s{sC1}, {hexf(c1)}")
        a(f"s_mov_b32 s{sC2}, {hexf(c1*0.044715)}")

    def trreads(step):
        slot = step % DEPTH
        b = vWf + (step & 1) * 8
        for mt, va in ((0, vT0), (1, vT1)):
            for j in range(2):
                a(f"ds_read_b64_tr_b16 {v(b+mt*4+2*j,2)}, v{va} offset:{slot*2048+j*joff}")

    def outstanding_after(step, issued_upto):
        n = (issued_upto - step) * 4
        if step < 2:
            n += nside if issued_upto >= 1 else 0
        return n

    stamp(a, 1, sTS, diag)
    a(f"s_waitcnt vmcnt({outstanding_after(0, INIT-1)})")
    issued = INIT - 1
    trreads(0)
    stamp(a, 2, sTS, diag)
    for st in range(STEPS):
        if st + 1 < STEPS:
            a(f"s_waitcnt vmcnt({outstanding_after(st+1, issued)})")
            trreads(st + 1)
            a("s_waitcnt lgkmcnt(4)")
        else:
            a("s_waitcnt lgkmcnt(0)")
        wf = vWf + (st & 1) * 8
        af = vAct + (st % DEPTH) * 8
        todo = list(range(issued + 1, min(issued + RAMP, st + DEPTH - 1, STEPS - 1) + 1))
        for nt in range(2):
            for mt in range(2):
                d = vAcc + (mt * 2 + nt) * 16
                c = "0" if st == 0 else v(d, 16)
                if todo and (nt, mt) in ((0, 1), (1, 1)):
                    issued = todo.pop(0)
                    issue(issued)
                if which == 1:
                    a(f"v_mfma_f32_32x32x16_bf16 {v(d,16)}, {v(wf+mt*4,4)}, {v(af+nt*4,4)}, {c}")
                else:
                    a(f"v_mfma_f32_32x32x16_bf16 {v(d,16)}, {v(af+nt*4,4)}, {v(wf+mt*4,4)}, {c}")
        while todo:
            issued = todo.pop(0)
            issue(issued)
    stamp(a, 3, sTS, diag)
    def part_regs(j):
        if which == 1:
            mt, t = j >> 1, j & 1
            return [vAcc + (mt * 2 + 0) * 16 + 8 * t, vAcc + (mt * 2 + 0) * 16 + 8 * t + 4,
                    vAcc + (mt * 2 + 1) * 16 + 8 * t, vAcc + (mt * 2 + 1) * 16 + 8 * t + 4]
        mt, nt = j >> 1, j & 1
        b = vAcc + (mt * 2 + nt) * 16
        return [b, b + 4, b + 8] + ([b + 12] if nt == 0 else [])
    labs = [f"{name}_ep{w}" for w in range(4)]
    for w in range(1, 4):
        a(f"s_cmp_eq_u32 s{sWave}, {w}")
        a(f"s_cbranch_scc1 {labs[w]}")
    for w in range(4):
        a(f"{labs[w]}:")
        a("s_nop 7")
        a("s_nop 3")
        for j in [(w + 1) & 3, (w + 2) & 3, (w + 3) & 3]:
            i = (w - j - 1) & 3
            for q, r in enumerate(part_regs(j)):
                a(f"ds_write_b128 v{vRed}, {v(r,4)} offset:{(j*3+i)*4096+q*1024}")
        a("s_waitcnt lgkmcnt(0)")
        a("s_barrier")
        own = part_regs(w)
        tmp = vAct
        for i in range(3):
            for q in range(len(own)):
                a(f"ds_read_b128 {v(tmp+i*16+q*4,4)}, v{vRed} offset:{(w*3+i)*4096+q*1024}")
        n = len(own)
        for i in range(3):
            a(f"s_waitcnt lgkmcnt({(2-i)*n})")
            for q in range(n):
                for e in range(4):
                    a(f"v_add_f32 v{own[q]+e}, v{own[q]+e}, v{tmp+i*16+q*4+e}")
        t = vAct + 48
        if which == 1:
            for e in range(4):
                a(f"v_lshlrev_b32 v{t+2*e}, 16, v{vBias+e}")
                a(f"v_and_b32 v{t+2*e+1}, 0xffff0000, v{vBias+e}")
            xs = [own[q] + e for q in range(4) for e in range(4)]
            z = t + 8
            a(f"v_mov_b32 v{t+24}, s{sC1}")
            for i_, x in enumerate(xs):
                a(f"v_add_f32 v{x}, v{x}, v{t+(i_&7)}")
            for i_, x in enumerate(xs):
                a(f"v_mul_f32 v{z+i_}, v{x}, v{x}")
            for i_, x in enumerate(xs):
                a(f"v_fma_f32 v{z+i_}, v{z+i_}, s{sC2}, v{t+24}")
            for i_, x in enumerate(xs):
                a(f"v_mul_f32 v{z+i_}, v{z+i_}, v{x}")
            for i_, x in enumerate(xs):
                a(f"v_exp_f32 v{z+i_}, v{z+i_}")
            for i_, x in enumerate(xs):
                a(f"v_add_f32 v{z+i_}, 1.0, v{z+i_}")
            for i_, x in enumerate(xs):
                a(f"v_rcp_f32 v{z+i_}, v{z+i_}")
            for i_, x in enumerate(xs):
                a(f"v_mul_f32 v{x}, v{x}, v{z+i_}")
            pk = vWf
            for i_ in range(8):
                a(f"v_cvt_pk_bf16_f32 v{pk+i_}, v{xs[2*i_]}, v{xs[2*i_+1]}")
            a(f"s_mul_i32 s{sTmp}, s{sDt}, 112")
            a(f"s_lshl_b32 s{sTmp+1}, s{sT}, 2")
            a(f"s_add_u32 s{sTmp}, s{sTmp}, s{sTmp+1}")
            a(f"s_add_u32 s{sTmp}, s{sTmp}, {w}")
            a(f"s_mul_i32 s{sTmp}, s{sTmp}, 1792")
            a(f"v_lshlrev_b32 v{vX}, 4, v{vLane}")
            a(f"v_mad_u32_u24 v{vX+1}, v{vHi}, 24, v{vDl}")
            a(f"v_lshlrev_b32 v{vX+1}, 4, v{vX+1}")
            a(f"buffer_store_dwordx4 {v(pk,4)}, v{vX}, s[{rO}:{rO+3}], s{sTmp} offen")
            a(f"v_cmp_gt_u32 vcc, 24, v{vDl}")
            a(f"s_and_saveexec_b64 s[{sEx}:{sEx+1}], vcc")
            a(f"buffer_store_dwordx4 {v(pk+4,4)}, v{vX+1}, s[{rO}:{rO+3}], s{sTmp} offen offset:1024")
        else:
            a(f"v_lshlrev_b32 v{vBias}, 16, v{vBias}")
            for q in range(n):
                a(f"v_lshlrev_b32 v{t+4*q}, 16, v{vH+2*q}")
                a(f"v_and_b32 v{t+4*q+1}, 0xffff0000, v{vH+2*q}")
                a(f"v_lshlrev_b32 v{t+4*q+2}, 16, v{vH+2*q+1}")
                a(f"v_and_b32 v{t+4*q+3}, 0xffff0000, v{vH+2*q+1}")
            for q in range(n):
                for e in range(4):
                    a(f"v_add_f32 v{own[q]+e}, v{own[q]+e}, v{vBias}")
            for q in range(n):
                for e in range(4):
                    a(f"v_add_f32 v{own[q]+e}, v{own[q]+e}, v{t+4*q+e}")
            pk = vWf
            for q in range(n):
                a(f"v_cvt_pk_bf16_f32 v{pk+2*q}, v{own[q]}, v{own[q]+1}")
                a(f"v_cvt_pk_bf16_f32 v{pk+2*q+1}, v{own[q]+2}, v{own[q]+3}")
            a("s_nop 1")
            for p in range(2):
                a(f"v_permlane32_swap_b32 v{pk+4*p}, v{pk+4*p+2}")
                a(f"v_permlane32_swap_b32 v{pk+4*p+1}, v{pk+4*p+3}")
            a(f"buffer_store_dwordx4 {v(pk,4)}, v{vBias+1}, s[{rO}:{rO+3}], 0 offen")
            if n == 3:
                a(f"v_cmp_eq_u32 vcc, 0, v{vHi}")
                a(f"s_and_saveexec_b64 s[{sEx}:{sEx+1}], vcc")
            a(f"buffer_store_dwordx4 {v(pk+4,4)}, v{vBias+1}, s[{rO}:{rO+3}], 0 offen offset:32")
        if diag:
            a("s_mov_b64 exec, -1")
            a("s_waitcnt vmcnt(0)")
            stamp(a, 4, sTS, diag)
            stamp_flush(a, 5, sTS, sWS, sWave, kidx, vX, diag)
        a("s_endpgm")
    a(f"{done}:")
    a("s_endpgm")
    return dict(name=name, grid=NWG, block=256, lds=LDS, vgprs=R.hi)
```

```python
from asmlib import *
from layout import *
from gemm import stamp, stamp_flush, pf_setup, pf_issue

def proj_kernel(a, name, diag=False, kidx=2, opts={}):
    NWG = 256
    WR = 14 * 1024
    LDS = 4 * WR
    sX, sW, sWS = 4, 6, 8
    rX, rW, rA, rH, rN, rF = 12, 16, 20, 24, 44, 48
    sWave, sDt, sTb, sLds, sT0, sT1, sCnt, sOA = 28, 29, 30, 31, 33, 34, 35, 36
    sEx = 42
    sTS = 60
    R = Regs(1)
    vL = R.get(); vHi = R.get(); vDl = R.get()
    vW0 = R.get(); vLo = R.get(); vT0 = R.get(); vT1 = R.get()
    vHs = R.get(); vSw = R.get(); vSr = R.get(); vN1 = R.get()
    vX = R.get(8, 2)
    vXr = R.get(8, 2)
    vId = R.get(8, 4)
    vAcc = R.get(64, 4)
    vWf = R.get(16, 4)
    vAct = R.get(64, 4)
    pf = [x for x in opts.get('pf3', '').split(',') if x]
    vPf = R.get(6)
    done = f"{name}_done"
    kernel_header(a, name)
    a(f"s_cmp_ge_u32 s2, {NWG}")
    a(f"s_cbranch_scc1 {done}")
    stamp(a, 0, sTS, diag, kidx)
    a(f"s_load_dwordx2 s[{sX}:{sX+1}], s[0:1], {KA_X}")
    a(f"s_load_dwordx2 s[{sW}:{sW+1}], s[0:1], {KA_WO}")
    a(f"s_load_dwordx2 s[{sWS}:{sWS+1}], s[0:1], {KA_WS}")
    for i, w_ in enumerate(pf):
        pf_setup(a, w_, 82 + 2 * i)
    a(f"v_lshrrev_b32 v{vX}, 6, v0")
    a(f"v_and_b32 v{vL}, 63, v0")
    a(f"v_readfirstlane_b32 s{sWave}, v{vX}")
    a(f"s_and_b32 s{sT0}, s2, 7")
    a(f"s_lshr_b32 s{sT1}, s2, 3")
    a(f"s_lshl_b32 s{sTb}, s{sT0}, 2")
    a(f"s_and_b32 s{sT0}, s{sT1}, 3")
    a(f"s_add_u32 s{sTb}, s{sTb}, s{sT0}")
    a(f"s_lshr_b32 s{sDt}, s{sT1}, 2")
    a(f"v_lshrrev_b32 v{vX}, 3, v{vL}")
    a(f"v_lshrrev_b32 v{vX+1}, 2, v{vL}")
    a(f"v_and_b32 v{vX+1}, 4, v{vX+1}")
    a(f"v_and_b32 v{vX+2}, 7, v{vL}")
    a(f"v_xor_b32 v{vX+1}, v{vX+1}, v{vX+2}")
    a(f"v_lshlrev_b32 v{vX+1}, 4, v{vX+1}")
    a(f"v_mul_u32_u24 v{vX}, 896, v{vX}")
    a(f"s_mul_i32 s{sT0}, s{sWave}, {112*896}")
    a(f"s_mul_i32 s{sT1}, s{sDt}, 112")
    a(f"s_add_u32 s{sT0}, s{sT0}, s{sT1}")
    a(f"v_add3_u32 v{vW0}, v{vX}, v{vX+1}, s{sT0}")
    a(f"s_lshl_b32 s{sT0}, s{sTb}, 3")
    a(f"s_add_u32 s{sT0}, s{sT0}, s{sWave}")
    a(f"s_lshl_b32 s{sT0}, s{sT0}, 13")
    a(f"v_lshlrev_b32 v{vLo}, 4, v{vL}")
    a(f"s_mul_i32 s{sLds}, s{sWave}, {WR}")
    a("s_waitcnt lgkmcnt(0)")
    srd(a, rW, sW, D * D * 2)
    srd(a, rA, sWS, 2 * MB, WS_O)
    order = []
    def issueW(i):
        if i % 4 == 0:
            a(f"s_add_u32 m0, s{sLds}, {i*1024}")
        a(f"s_mov_b32 s{sOA}, {i*8*896 - (i%4)*1024}")
        a(f"buffer_load_dwordx4 v{vW0}, s[{rW}:{rW+3}], s{sOA} offen offset:{(i%4)*1024} lds")
        order.append(("w", i))
    def issueO(st):
        for nt in range(2):
            a(f"s_add_u32 s{sOA}, s{sT0}, {nt*32768 + (st//4)*4096}")
            a(f"buffer_load_dwordx4 {v(vAct+st*8+nt*4,4)}, v{vLo}, s[{rA}:{rA+3}], s{sOA} offen offset:{(st%4)*1024}")
            order.append(("o", st))
    wl = [3, 6, 10, 13]
    i = 0
    for hq in range(4):
        while i <= wl[hq]:
            issueW(i); i += 1
        issueO(2 * hq); issueO(2 * hq + 1)
    stamp(a, 1, sTS, diag)
    srd(a, rX, sX, S * D * 2)
    srd(a, rH, sWS, S * D * 2, WS_H)
    srd(a, rN, sWS, 8 * 128 * 1792, WS_HN)
    srd(a, rF, sWS, 256 * 1024, WS_FL)
    a(f"v_lshrrev_b32 v{vHi}, 5, v{vL}")
    a(f"v_and_b32 v{vDl}, 31, v{vL}")
    a(f"s_lshr_b32 s{sT0}, s{sWave}, 1")
    a(f"s_lshl_b32 s{sT0}, s{sT0}, 5")
    a(f"v_add_u32 v{vX+3}, s{sT0}, v{vDl}")
    a(f"s_lshl_b32 s{sT1}, s{sTb}, 6")
    a(f"v_add_u32 v{vX}, s{sT1}, v{vX+3}")
    a(f"s_and_b32 s{sT0}, s{sWave}, 1")
    a(f"s_lshl_b32 s{sT0}, s{sT0}, 6")
    a(f"s_mul_i32 s{sT1}, s{sDt}, 112")
    a(f"s_add_u32 s{sT0}, s{sT0}, s{sT1}")
    a(f"v_mul_u32_u24 v{vX}, 896, v{vX}")
    a(f"v_add_u32 v{vX}, s{sT0}, v{vX}")
    a(f"v_lshl_add_u32 v{vX+1}, v{vHi}, 3, v{vX}")
    a(f"v_lshl_add_u32 v{vHs}, v{vHi}, 4, v{vX}")
    for j in range(4):
        a(f"buffer_load_dwordx2 {v(vXr+2*j,2)}, v{vX+1}, s[{rX}:{rX+3}], 0 offen offset:{16*j}")
        order.append(("x", j))
    for i, w_ in enumerate(pf):
        n_ = pf_issue(a, w_, 82 + 2 * i, 88, 92, sWave, vL, vPf, vPf + 2 + 2 * i)
        order.extend([("pf", 0)] * n_)
    npf = sum(1 for o in order if o[0] == "pf")
    a(f"s_lshl_b32 s{sT0}, s{sTb}, 13")
    a(f"v_lshl_add_u32 v{vX+3}, v{vX+3}, 4, s{sT0}")
    a(f"v_lshl_add_u32 v{vSr}, v{vHi}, 12, v{vX+3}")
    a(f"s_lshl_b32 s{sT0}, s{sDt}, 10")
    a(f"s_and_b32 s{sT1}, s{sWave}, 1")
    a(f"s_lshl_b32 s{sT1}, s{sT1}, 3")
    a(f"s_add_u32 s{sT0}, s{sT0}, s{sT1}")
    a(f"v_add_u32 v{vSw}, s{sT0}, v{vX+3}")
    a(f"v_mad_u32_u24 v{vN1}, v{vHi}, 24, v{vDl}")
    a(f"v_lshlrev_b32 v{vN1}, 4, v{vN1}")
    a(f"v_bfe_u32 v{vX}, v{vL}, 2, 2")
    a(f"v_mad_u32_u24 v{vX+1}, v{vHi}, 4, v{vX}")
    a(f"v_lshlrev_b32 v{vX+1}, 7, v{vX+1}")
    a(f"v_bfe_u32 v{vX+2}, v{vL}, 4, 1")
    a(f"v_lshlrev_b32 v{vX+2}, 5, v{vX+2}")
    a(f"v_and_b32 v{vX+3}, 3, v{vL}")
    a(f"v_lshl_add_u32 v{vX+2}, v{vX+3}, 3, v{vX+2}")
    a(f"v_bfe_u32 v{vX+3}, v{vL}, 3, 1")
    a(f"v_lshl_add_u32 v{vX+2}, v{vX+3}, 6, v{vX+2}")
    a(f"v_add3_u32 v{vT0}, v{vX+1}, v{vX+2}, s{sLds}")
    a(f"v_xor_b32 v{vT1}, 64, v{vT0}")
    a(f"v_lshlrev_b32 v{vX}, 2, v{vHi}")
    a(f"v_sub_u32 v{vX}, v{vDl}, v{vX}")
    a(f"v_mov_b32 v{vX+1}, 0x3f80")
    for ks in range(2):
        for i in range(4):
            dd = 16 * ks + ((2 * i) & 3) + 8 * (i >> 1)
            a(f"v_subrev_u32 v{vX+2}, {dd}, v{vX}")
            a(f"v_cmp_gt_u32 vcc, 2, v{vX+2}")
            a(f"v_lshlrev_b32 v{vX+2}, 4, v{vX+2}")
            a(f"v_lshlrev_b32 v{vX+2}, v{vX+2}, v{vX+1}")
            a(f"v_cndmask_b32 v{vId+4*ks+i}, 0, v{vX+2}, vcc")

    def waitstep(st):
        last = max(i for i, t in enumerate(order) if t == ("o", st))
        a(f"s_waitcnt vmcnt({len(order)-1-last})")
    def trreads(st):
        hq, j = st >> 1, st & 1
        row = 56 * (hq >> 1) + 24 * (hq & 1) + 8 * j
        b = vWf + (st & 1) * 8
        for mt, va in ((0, vT0), (1, vT1)):
            for p in range(2):
                a(f"ds_read_b64_tr_b16 {v(b+mt*4+2*p,2)}, v{va} offset:{(row+16*p)*128}")
    waitstep(0)
    trreads(0)
    stamp(a, 2, sTS, diag)
    for st in range(8):
        if st + 1 < 8:
            waitstep(st + 1)
            trreads(st + 1)
            a("s_waitcnt lgkmcnt(4)")
        else:
            a("s_waitcnt lgkmcnt(0)")
        for nt in range(2):
            for mt in range(2):
                d = vAcc + (nt * 2 + mt) * 16
                c = "0" if st == 0 else v(d, 16)
                a(f"v_mfma_f32_32x32x16_bf16 {v(d,16)}, {v(vWf+(st&1)*8+mt*4,4)}, {v(vAct+st*8+nt*4,4)}, {c}")
    stamp(a, 3, sTS, diag)
    def part_regs(j):
        b = vAcc + j * 16
        return [b, b + 4, b + 8] + ([b + 12] if (j & 1) == 0 else [])
    labs = [f"{name}_ep{w}" for w in range(4)]
    for w in range(1, 4):
        a(f"s_cmp_eq_u32 s{sWave}, {w}")
        a(f"s_cbranch_scc1 {labs[w]}")
    for w in range(4):
        a(f"{labs[w]}:")
        a("s_nop 7")
        a("s_nop 3")
        for j in [(w + 1) & 3, (w + 2) & 3, (w + 3) & 3]:
            i = (j - w - 1) & 3
            for q, r in enumerate(part_regs(j)):
                a(f"ds_write_b128 v{vLo}, {v(r,4)} offset:{w*WR+i*4096+q*1024}")
        own = part_regs(w); n = len(own)
        t = vAct + 48
        a(f"s_waitcnt vmcnt({npf})")
        for q in range(n):
            a(f"v_lshlrev_b32 v{t+4*q}, 16, v{vXr+2*q}")
            a(f"v_and_b32 v{t+4*q+1}, 0xffff0000, v{vXr+2*q}")
            a(f"v_lshlrev_b32 v{t+4*q+2}, 16, v{vXr+2*q+1}")
            a(f"v_and_b32 v{t+4*q+3}, 0xffff0000, v{vXr+2*q+1}")
        for q in range(n):
            for e in range(4):
                a(f"v_add_f32 v{own[q]+e}, v{own[q]+e}, v{t+4*q+e}")
        a("s_waitcnt lgkmcnt(0)")
        a("s_barrier")
        tmp = vAct
        for i in range(3):
            src = (w + 1 + i) & 3
            slot = (w - src - 1) & 3
            for q in range(n):
                a(f"ds_read_b128 {v(tmp+i*16+q*4,4)}, v{vLo} offset:{src*WR+slot*4096+q*1024}")
        for i in range(3):
            a(f"s_waitcnt lgkmcnt({(2-i)*n})")
            for q in range(n):
                for e in range(4):
                    a(f"v_add_f32 v{own[q]+e}, v{own[q]+e}, v{tmp+i*16+q*4+e}")
        xs = [own[q] + e for q in range(n) for e in range(4)]
        s1, s2 = vX, vX + 1
        a(f"v_add_f32 v{s1}, v{xs[0]}, v{xs[1]}")
        a(f"v_mul_f32 v{s2}, v{xs[0]}, v{xs[0]}")
        a(f"v_add_f32 v{vX+2}, v{xs[2]}, v{xs[3]}")
        a(f"v_mul_f32 v{vX+3}, v{xs[1]}, v{xs[1]}")
        for k_ in range(2, len(xs)):
            if k_ >= 4:
                a(f"v_add_f32 v{s1+2*(k_&1)}, v{s1+2*(k_&1)}, v{xs[k_]}")
            a(f"v_fmac_f32 v{s2+2*(k_&1)}, v{xs[k_]}, v{xs[k_]}")
        a(f"v_add_f32 v{s1}, v{s1}, v{vX+2}")
        a(f"v_add_f32 v{s2}, v{s2}, v{vX+3}")
        a(f"v_mov_b32 v{vX+2}, v{s1}")
        a(f"v_mov_b32 v{vX+3}, v{s2}")
        a("s_nop 1")
        a(f"v_permlane32_swap_b32 v{s1}, v{vX+2}")
        a(f"v_permlane32_swap_b32 v{s2}, v{vX+3}")
        a("s_nop 0")
        a(f"v_add_f32 v{s1}, v{s1}, v{vX+2}")
        a(f"v_add_f32 v{s2}, v{s2}, v{vX+3}")
        a("s_mov_b32 exec_hi, 0")
        a(f"buffer_store_dwordx2 {v(s1,2)}, v{vSw}, s[{rF}:{rF+3}], 0 offen sc1")
        a("s_mov_b64 exec, -1")
        pk = vWf
        for q in range(n):
            a(f"v_cvt_pk_bf16_f32 v{pk+2*q}, v{own[q]}, v{own[q]+1}")
            a(f"v_cvt_pk_bf16_f32 v{pk+2*q+1}, v{own[q]+2}, v{own[q]+3}")
        a(f"s_mov_b32 s{sCnt}, 0")
        a("s_nop 0")
        for p in range(2):
            a(f"v_permlane32_swap_b32 v{pk+4*p}, v{pk+4*p+2}")
            a(f"v_permlane32_swap_b32 v{pk+4*p+1}, v{pk+4*p+3}")
        a(f"buffer_store_dwordx4 {v(pk,4)}, v{vHs}, s[{rH}:{rH+3}], 0 offen")
        if n == 3:
            a("s_mov_b32 exec_hi, 0")
        a(f"buffer_store_dwordx4 {v(pk+4,4)}, v{vHs}, s[{rH}:{rH+3}], 0 offen offset:32")
        if n == 3:
            a("s_mov_b64 exec, -1")
        lp = f"{name}_poll{w}"; ok = f"{name}_ok{w}"
        a(f"{lp}:")
        for i in range(4):
            a(f"buffer_load_dwordx4 {v(tmp+4*i,4)}, v{vSr}, s[{rF}:{rF+3}], 0 offen offset:{i*1024} sc1")
        a(f"s_add_u32 s{sCnt}, s{sCnt}, 1")
        a("s_waitcnt vmcnt(0)")
        a(f"v_max3_u32 v{vX+2}, v{tmp}, v{tmp+1}, v{tmp+2}")
        a(f"v_max3_u32 v{vX+3}, v{tmp+3}, v{tmp+4}, v{tmp+5}")
        for k_ in range(6, 16, 2):
            r = vX + 2 + ((k_ >> 1) & 1)
            a(f"v_max3_u32 v{r}, v{r}, v{tmp+k_}, v{tmp+k_+1}")
        a(f"v_max_u32 v{vX+2}, v{vX+2}, v{vX+3}")
        a(f"v_cmp_eq_u32 vcc, -1, v{vX+2}")
        a(f"s_cbranch_vccz {ok}")
        a(f"s_cmp_lt_u32 s{sCnt}, 20000")
        a(f"s_cbranch_scc1 {lp}")
        a(f"{ok}:")
        for e in range(2):
            a(f"v_add_f32 v{tmp+e}, v{tmp+e}, v{tmp+2+e}")
            a(f"v_add_f32 v{tmp+4+e}, v{tmp+4+e}, v{tmp+6+e}")
            a(f"v_add_f32 v{tmp+8+e}, v{tmp+8+e}, v{tmp+10+e}")
            a(f"v_add_f32 v{tmp+12+e}, v{tmp+12+e}, v{tmp+14+e}")
        for e in range(2):
            a(f"v_add_f32 v{tmp+e}, v{tmp+e}, v{tmp+4+e}")
            a(f"v_add_f32 v{tmp+8+e}, v{tmp+8+e}, v{tmp+12+e}")
        for e in range(2):
            a(f"v_add_f32 v{tmp+e}, v{tmp+e}, v{tmp+8+e}")
        a(f"v_mov_b32 v{tmp+2}, v{tmp}")
        a(f"v_mov_b32 v{tmp+3}, v{tmp+1}")
        a("s_nop 1")
        a(f"v_permlane32_swap_b32 v{tmp}, v{tmp+2}")
        a(f"v_permlane32_swap_b32 v{tmp+1}, v{tmp+3}")
        a(f"v_mov_b32 v{tmp+4}, {hexf(1.0/448)}")
        a(f"v_mov_b32 v{tmp+5}, {hexf(1e-5)}")
        a(f"v_add_f32 v{tmp}, v{tmp}, v{tmp+2}")
        a(f"v_add_f32 v{tmp+1}, v{tmp+1}, v{tmp+3}")
        a(f"v_mul_f32 v{tmp}, v{tmp}, v{tmp+4}")
        a(f"v_mul_f32 v{tmp+2}, v{tmp}, v{tmp}")
        a(f"v_fma_f32 v{tmp+1}, v{tmp+1}, v{tmp+4}, -v{tmp+2}")
        a(f"v_max_f32 v{tmp+1}, 0, v{tmp+1}")
        a(f"v_add_f32 v{tmp+2}, v{tmp+1}, v{tmp+5}")
        a(f"v_rsq_f32 v{tmp+2}, v{tmp+2}")
        a("s_nop 0")
        a(f"v_mul_f32 v{tmp+3}, v{tmp+2}, v{tmp+2}")
        a(f"v_fma_f32 v{tmp+3}, v{tmp+3}, v{tmp+1}, v{tmp+5}")
        a(f"v_rsq_f32 v{tmp+3}, v{tmp+3}")
        a("s_nop 0")
        a(f"v_mul_f32 v{tmp+2}, v{tmp+2}, v{tmp+3}")
        a(f"v_mul_f32 v{tmp}, v{tmp}, v{tmp+2}")
        for x_ in xs:
            a(f"v_fma_f32 v{x_}, v{x_}, v{tmp+2}, -v{tmp}")
        pk2 = vWf + 8
        for k_ in range(8):
            if 2 * k_ < len(xs):
                a(f"v_cvt_pk_bf16_f32 v{pk2+k_}, v{xs[2*k_]}, v{xs[2*k_+1]}")
            else:
                a(f"v_mov_b32 v{pk2+k_}, 0")
        tr = vAct + 16
        a(f"s_lshl_b32 s{sT0}, s{sDt}, 5")
        a(f"s_add_u32 s{sT0}, s{sT0}, s{sTb}")
        a(f"v_mfma_f32_32x32x16_bf16 {v(tr,16)}, {v(pk2,4)}, {v(vId,4)}, 0")
        a(f"v_mfma_f32_32x32x16_bf16 {v(tr,16)}, {v(pk2+4,4)}, {v(vId+4,4)}, {v(tr,16)}")
        a(f"s_lshl_b32 s{sT0}, s{sT0}, 2")
        a(f"s_add_u32 s{sT0}, s{sT0}, {(w>>1)*2}")
        a(f"s_mul_i32 s{sT0}, s{sT0}, 1792")
        a("s_nop 7")
        a("s_nop 1")
        for k_ in range(8):
            a(f"v_cvt_pk_bf16_f32 v{tmp+k_}, v{tr+2*k_}, v{tr+2*k_+1}")
        if n == 4:
            a(f"buffer_store_dwordx4 {v(tmp,4)}, v{vLo}, s[{rN}:{rN+3}], s{sT0} offen")
            a(f"buffer_store_dwordx4 {v(tmp+4,4)}, v{vLo}, s[{rN}:{rN+3}], s{sT0} offen offset:1792")
        else:
            a(f"s_mov_b32 exec_lo, 0x00ffffff")
            a(f"s_mov_b32 exec_hi, 0x00ffffff")
            a(f"buffer_store_dwordx4 {v(tmp,4)}, v{vN1}, s[{rN}:{rN+3}], s{sT0} offen offset:1024")
            a(f"buffer_store_dwordx4 {v(tmp+4,4)}, v{vN1}, s[{rN}:{rN+3}], s{sT0} offen offset:{1024+1792}")
        if diag:
            a("s_mov_b64 exec, -1")
            a("s_waitcnt vmcnt(0)")
            stamp(a, 4, sTS, diag)
            stamp_flush(a, 5, sTS, sWS, sWave, kidx, vX, diag)
        a("s_endpgm")
    a(f"{done}:")
    a("s_endpgm")
    return dict(name=name, grid=NWG, block=256, lds=LDS, vgprs=R.hi)
```

```python
import math
from asmlib import *
from layout import *
from gemm import stamp, stamp_flush, pf_setup, pf_issue

def qkv_kernel(a, name, diag=False, kidx=0, opts={}):
    NWG = 256
    CH = 12800
    XB = 7 * CH
    CSB = XB + 4 * 16384
    PRV = CSB + 1536
    LDS = PRV + 4 * 512
    PITCH = 2688
    tbx = int(opts.get("k1tb", 4))
    rot = int(opts.get("k1rot", 1))
    sX, sW, sWS = 4, 6, 8
    rX, rW, rQ, rF = 12, 16, 20, 24
    sWave, sH, sTb, sWb, sXb, sT0, sT1 = 28, 29, 30, 31, 32, 33, 34
    sOX, sOW = 36, 44
    mPar, mA, mB, mEx, mPadV = 52, 54, 56, 58, 70
    mb = [72, 74, 76, 78, 80]
    sTS = 60
    R = Regs(1)
    vL = R.get(); vHi = R.get(); vTok = R.get()
    vWo = R.get(); vXo = R.get(4)
    vXa = R.get(4); vQa = R.get(4); vKa = R.get()
    vT = R.get(8, 2)
    vSel = R.get(4, 4)
    vCs = R.get(12, 4)
    vQ = R.get(16, 4); vK = R.get(16, 4); vV = R.get(16, 4); vG = R.get(16, 4)
    vXf = R.get(32, 4)
    vWf = R.get(24, 4)
    vE = R.get(64, 4)
    pf = [x for x in opts.get('pf1', '').split(',') if x]
    pfat = int(opts.get('pf1at', 16))
    vPf = R.get(8)
    done = f"{name}_done"
    kernel_header(a, name)
    a(f"s_cmp_ge_u32 s2, {NWG}")
    a(f"s_cbranch_scc1 {done}")
    stamp(a, 0, sTS, diag, kidx)
    a(f"s_load_dwordx4 s[{sX}:{sX+3}], s[0:1], {KA_X}")
    a(f"s_load_dwordx2 s[{sWS}:{sWS+1}], s[0:1], {KA_WS}")
    for i, w_ in enumerate(pf):
        pf_setup(a, w_, 82 + 2 * i)
    a(f"v_lshrrev_b32 v{vT}, 6, v0")
    a(f"v_and_b32 v{vL}, 63, v0")
    a(f"v_readfirstlane_b32 s{sWave}, v{vT}")
    nx = 16 // tbx
    hx = 8 // nx
    lg = lambda n: n.bit_length() - 1
    a(f"s_and_b32 s{sT0}, s2, 7")
    a(f"s_lshr_b32 s{sT1}, s2, 3")
    a(f"s_lshr_b32 s{sTb}, s{sT0}, {lg(hx)}")
    a(f"s_lshl_b32 s{sTb}, s{sTb}, {lg(tbx)}")
    a(f"s_and_b32 s{sH}, s{sT1}, {tbx-1}")
    a(f"s_add_u32 s{sTb}, s{sTb}, s{sH}")
    a(f"s_and_b32 s{sH}, s{sT0}, {hx-1}")
    a(f"s_lshl_b32 s{sH}, s{sH}, {lg(16//hx)}")
    a(f"s_lshr_b32 s{sT1}, s{sT1}, {lg(tbx)}")
    a(f"s_add_u32 s{sH}, s{sH}, s{sT1}")
    if rot:
        a(f"s_and_b32 s{sT0}, s{sH}, 7")
        a(f"s_cmp_eq_u32 s{sT0}, 7")
        a(f"s_cselect_b32 s{sT0}, 3, s{sT0}")
    else:
        a(f"s_mov_b32 s{sT0}, 0")
    for c in range(7):
        a(f"s_lshl_b32 s{sOX+c}, s{sT0}, 7")
        a(f"s_mul_i32 s{sOW+c}, s{sT0}, {64*PITCH}")
        if c < 6:
            a(f"s_add_u32 s{sT0}, s{sT0}, 1")
            a(f"s_cmp_eq_u32 s{sT0}, 7")
            a(f"s_cselect_b32 s{sT0}, 0, s{sT0}")
    a(f"s_mul_i32 s{sT0}, s{sH}, 56")
    a(f"s_and_b32 s{sT1}, s{sH}, 1")
    a(f"s_lshl_b32 s{sT1}, s{sT1}, 3")
    a(f"s_sub_u32 s{sT0}, s{sT0}, s{sT1}")
    a(f"s_mul_i32 s{sT1}, s{sWave}, {16*PITCH}")
    a(f"s_add_u32 s{sT0}, s{sT0}, s{sT1}")
    a(f"v_lshrrev_b32 v{vT}, 2, v{vL}")
    a(f"v_mul_u32_u24 v{vT}, {PITCH}, v{vT}")
    a(f"v_and_b32 v{vT+1}, 3, v{vL}")
    a(f"v_lshlrev_b32 v{vT+1}, 4, v{vT+1}")
    a(f"v_add3_u32 v{vWo}, v{vT}, v{vT+1}, s{sT0}")
    a(f"s_lshl_b32 s{sT0}, s{sTb}, 2")
    a(f"s_add_u32 s{sT0}, s{sT0}, s{sWave}")
    a(f"s_mul_i32 s{sT0}, s{sT0}, {32*896}")
    a(f"v_lshrrev_b32 v{vT}, 3, v{vL}")
    a(f"v_mul_u32_u24 v{vT}, 896, v{vT}")
    a(f"v_lshrrev_b32 v{vT+1}, 4, v{vL}")
    a(f"v_and_b32 v{vT+2}, 7, v{vL}")
    a(f"v_xor_b32 v{vT+1}, v{vT+1}, v{vT+2}")
    a(f"v_lshlrev_b32 v{vT+1}, 4, v{vT+1}")
    a(f"v_add3_u32 v{vXo}, v{vT}, v{vT+1}, s{sT0}")
    a(f"v_xor_b32 v{vT+1}, 64, v{vT+1}")
    a(f"v_add3_u32 v{vXo+1}, v{vT}, v{vT+1}, s{sT0}")
    a(f"v_add_u32 v{vXo+2}, {2*(8*896-1024)}, v{vXo}")
    a(f"v_add_u32 v{vXo+1}, {8*896-1024}, v{vXo+1}")
    a(f"v_add_u32 v{vXo+3}, {2*(8*896-1024)}, v{vXo+1}")
    a(f"s_mul_i32 s{sWb}, s{sWave}, 3072")
    a(f"s_lshl_b32 s{sXb}, s{sWave}, 14")
    a(f"s_add_u32 s{sXb}, s{sXb}, {XB}")
    a("s_waitcnt lgkmcnt(0)")
    srd(a, rX, sX, S * D * 2)
    srd(a, rW, sW, D * 3 * D * 2)

    order = []
    def issueW(c):
        for t in range(3):
            a(f"s_add_u32 m0, s{sWb}, {c*CH + t*128}")
            a("s_nop 0")
            a(f"buffer_load_dwordx4 v{vWo}, s[{rW}:{rW+3}], s{sOW+c} offen offset:{t*896} lds")
            order.append(c)
    def issueX(c):
        a(f"s_add_u32 m0, s{sXb}, {(c&3)*4096}")
        a("s_nop 0")
        for i in range(4):
            a(f"buffer_load_dwordx4 v{vXo+i}, s[{rX}:{rX+3}], s{sOX+c} offen offset:{i*1024} lds")
            order.append(c)
    def waitchunk(c):
        last = max(i for i, t in enumerate(order) if t == c)
        a(f"s_waitcnt vmcnt({len(order)-1-last})")
    for c in range(4):
        issueX(c); issueW(c)
    for c in range(4, 7):
        issueW(c)
    stamp(a, 1, sTS, diag)
    srd(a, rQ, sWS, 6 * MB)
    srd(a, rF, sWS, 256 * 1024, WS_FL)
    a(f"v_lshrrev_b32 v{vHi}, 5, v{vL}")
    a(f"v_and_b32 v{vTok}, 31, v{vL}")
    a(f"v_lshrrev_b32 v{vT}, 5, v0")
    a(f"v_mul_u32_u24 v{vT}, {CH}, v{vT}")
    a(f"v_lshl_add_u32 v{vT}, v{vTok}, 4, v{vT}")
    for e in range(4):
        a(f"v_mov_b32 v{vSel+e}, 0x3f803f80")
    a(f"v_cmp_gt_u32 vcc, 224, v0")
    a(f"s_and_saveexec_b64 s[{mEx}:{mEx+1}], vcc")
    a(f"ds_write_b128 v{vT}, {v(vSel,4)} offset:12288")
    a(f"s_mov_b64 exec, s[{mEx}:{mEx+1}]")
    a(f"v_bfe_u32 v{vT}, v{vL}, 1, 3")
    a(f"v_xor_b32 v{vT}, v{vT}, v{vHi}")
    a(f"v_lshlrev_b32 v{vT}, 4, v{vT}")
    a(f"v_lshl_add_u32 v{vT+1}, v{vTok}, 7, s{sXb}")
    for j in range(4):
        a(f"v_xor_b32 v{vT+2}, {32*j}, v{vT}")
        a(f"v_add_u32 v{vXa+j}, v{vT+2}, v{vT+1}")
    a(f"v_bfe_u32 v{vT}, v{vL}, 2, 2")
    a(f"v_lshlrev_b32 v{vT}, 6, v{vT}")
    a(f"v_bfe_u32 v{vT+1}, v{vL}, 4, 1")
    a(f"v_and_b32 v{vT+2}, 3, v{vL}")
    a(f"v_lshlrev_b32 v{vT+2}, 3, v{vT+2}")
    a(f"v_lshl_add_u32 v{vT+1}, v{vT+1}, 5, v{vT+2}")
    a(f"v_add_u32 v{vT}, v{vT}, v{vT+1}")
    a(f"v_lshl_add_u32 v{vKa}, v{vHi}, 9, v{vT}")
    a(f"v_add_u32 v{vT}, 12288, v{vT}")
    a(f"s_and_b32 s{sT0}, s{sH}, 1")
    a(f"s_cmp_eq_u32 s{sT0}, 1")
    a(f"s_cselect_b32 s{sT1}, 0, 0x13")
    a(f"s_cselect_b64 s[{mPar}:{mPar+1}], -1, 0")
    a(f"s_cselect_b32 s{mA}, -1, 0")
    a(f"s_mov_b32 s{mA+1}, 0")
    a(f"s_mov_b32 s{mB}, 0")
    a(f"s_cselect_b32 s{mB+1}, 0, -1")
    a(f"s_cselect_b32 s{mPadV}, 0x0000000f, 0xf0000000")
    a(f"s_mov_b32 s{mPadV+1}, s{mPadV}")
    a(f"v_and_b32 v{vT+1}, 0x13, v{vL}")
    a(f"v_cmp_eq_u32 vcc, s{sT1}, v{vT+1}")
    a("s_nop 0")
    for j in range(4):
        a(f"v_add_u32 v{vT+2}, {j*3072}, v{vKa}")
        a(f"v_cndmask_b32 v{vQa+j}, v{vT+2}, v{vT}, vcc")
    a(f"v_and_b32 v{vT}, 15, v{vL}")
    a(f"v_bfe_u32 v{vT+1}, v{vL}, 4, 1")
    a(f"v_cmp_eq_u32 vcc, v{vT}, v{vT+1}")
    a("s_waitcnt lgkmcnt(0)")
    a("s_nop 1")
    for e in range(4):
        a(f"v_cndmask_b32 v{vSel+e}, 0, v{vSel+e}, vcc")
    for i, bit in enumerate((0, 1, 3, 4, 2)):
        pat = sum(1 << l for l in range(32) if (l >> bit) & 1)
        a(f"s_mov_b32 s{mb[i]}, 0x{pat:08x}")
        a(f"s_mov_b32 s{mb[i]+1}, 0x{pat:08x}")
    def rd_x(c, j):
        a(f"ds_read_b128 {v(vXf+(c&1)*16+4*j,4)}, v{vXa+j} offset:{(c&3)*4096}")
    def rd_w(s_, t, p):
        c, j = s_ >> 2, s_ & 3
        cc = c if c < 5 else c - 5
        d = vWf + (s_ & 1) * 12 + t * 4 + 2 * p
        if t == 0:
            a(f"ds_read_b64_tr_b16 {v(d,2)}, v{vQa+j} offset:{cc*CH+p*256}")
        else:
            a(f"ds_read_b64_tr_b16 {v(d,2)}, v{vKa} offset:{cc*CH+j*3072+t*1024+p*256}")
    waitchunk(0)
    a("s_barrier")
    stamp(a, 2, sTS, diag)
    rd_x(0, 0); rd_x(0, 1)
    for t in range(3):
        rd_w(0, t, 0); rd_w(0, t, 1)
    rd_x(0, 2); rd_x(0, 3)
    for s_ in range(28):
        c, j = s_ >> 2, s_ & 3
        xf = v(vXf + (c & 1) * 16 + 4 * j, 4)
        wf = [v(vWf + (s_ & 1) * 12 + 4 * t, 4) for t in range(3)]
        cz = lambda r, n=16: "0" if s_ == 0 else v(r, n)
        nxt = s_ + 1 < 28
        newc = nxt and j == 3
        if j == 0:
            a("s_waitcnt lgkmcnt(8)")
        a(f"v_mfma_f32_32x32x16_bf16 {v(vG,16)}, {xf}, {xf}, {cz(vG)}")
        if newc:
            waitchunk(c + 1)
            if c + 1 == 5:
                for r in [vKa] + [vQa + i for i in range(4)]:
                    a(f"v_add_u32 v{r}, {5*CH}, v{r}")
            a("s_waitcnt lgkmcnt(0)")
            a("s_barrier")
            rd_x(c + 1, 0); rd_x(c + 1, 1)
        else:
            a(f"s_waitcnt lgkmcnt({2 if j == 0 else 0})")
        if nxt:
            rd_w(s_ + 1, 0, 0); rd_w(s_ + 1, 0, 1)
        a(f"v_mfma_f32_32x32x16_bf16 {v(vQ,16)}, {wf[0]}, {xf}, {cz(vQ)}")
        if nxt:
            rd_w(s_ + 1, 1, 0); rd_w(s_ + 1, 1, 1)
        if j == 1 and c + 4 < 7:
            issueX(c + 4)
        a(f"v_mfma_f32_32x32x16_bf16 {v(vK,16)}, {wf[1]}, {xf}, {cz(vK)}")
        if nxt:
            rd_w(s_ + 1, 2, 0); rd_w(s_ + 1, 2, 1)
        if newc:
            rd_x(c + 1, 2); rd_x(c + 1, 3)
        a(f"v_mfma_f32_32x32x16_bf16 {v(vV,16)}, {xf}, {wf[2]}, {cz(vV)}")
        if s_ == pfat:
            for i, w_ in enumerate(pf):
                n_ = pf_issue(a, w_, 82 + 2 * i, 88, 92, sWave, vL, vPf, vPf + 2 + 2 * i)
                order.extend([-1] * n_)
        lab = a.label("k1cs")
        a(f"s_cmp_lg_u32 s{sWave}, {j}")
        a(f"s_cbranch_scc1 {lab}")
        for t in range(3):
            cs = "0" if c == 0 else v(vCs + 4 * t, 4)
            a(f"v_mfma_f32_16x16x32_bf16 {v(vCs+4*t,4)}, {v(vSel,4)}, {wf[t]}, {cs}")
        a(f"{lab}:")
    stamp(a, 3, sTS, diag)
    a(f"v_mov_b32 v{vT+6}, -1")
    a(f"v_lshlrev_b32 v{vT+7}, 2, v0")
    a(f"s_lshl_b32 s{sT0}, s2, 10")
    a(f"buffer_store_dword v{vT+6}, v{vT+7}, s[{rF}:{rF+3}], s{sT0} offen")
    a(f"s_lshl_b32 s{sT0}, s{sWave}, 2")
    a(f"s_add_u32 s{sT0}, s{sT0}, {CSB}")
    a(f"v_lshl_add_u32 v{vT}, v{vL}, 4, s{sT0}")
    a(f"v_lshlrev_b32 v{vT+1}, 4, v{vL}")
    a(f"v_add_u32 v{vT+1}, {CSB}, v{vT+1}")
    a(f"v_lshlrev_b32 v{vT+2}, 4, v{vTok}")
    a(f"v_add_u32 v{vT+2}, {CSB+1024}, v{vT+2}")
    a(f"s_lshl_b32 s{sT0}, s{sWave}, 9")
    a(f"s_add_u32 s{sT0}, s{sT0}, {PRV}")
    a(f"v_lshl_add_u32 v{vT+3}, v{vL}, 2, s{sT0}")
    a(f"v_lshl_add_u32 v{vT+4}, v{vTok}, 2, s{sT0}")
    a(f"v_lshl_add_u32 v{vT+5}, v{vHi}, 4, s{sT0}")
    a("s_mov_b64 exec, 0xffff")
    for t in range(3):
        a(f"ds_write_b32 v{vT}, v{vCs+4*t} offset:{t*512}")
        a(f"ds_write_b32 v{vT}, v{vCs+4*t+1} offset:{t*512+256}")
    a("s_mov_b64 exec, -1")
    g = vG
    for i in range(8):
        a(f"v_cndmask_b32 v{g+2*i}, v{g+2*i}, v{g+2*i+1}, s[{mb[0]}:{mb[0]+1}]")
    for i in range(4):
        a(f"v_cndmask_b32 v{g+4*i}, v{g+4*i}, v{g+4*i+2}, s[{mb[1]}:{mb[1]+1}]")
    a("s_waitcnt lgkmcnt(0)")
    a("s_barrier")
    a(f"ds_read_b128 {v(vE,4)}, v{vT+1}")
    a(f"ds_read_b128 {v(vE+4,4)}, v{vT+2}")
    for i in range(2):
        a(f"v_cndmask_b32 v{g+8*i}, v{g+8*i}, v{g+8*i+4}, s[{mb[2]}:{mb[2]+1}]")
    a(f"v_cndmask_b32 v{g}, v{g}, v{g+8}, s[{mb[3]}:{mb[3]+1}]")
    a(f"v_cndmask_b32 v{g+2}, v{vQ+12}, v{vQ}, s[{mPar}:{mPar+1}]")
    a(f"v_mov_b32 v{g+1}, v{g}")
    a(f"v_mov_b32 v{g+3}, v{g+2}")
    a("s_nop 1")
    a(f"v_permlane32_swap_b32 v{g}, v{g+1}")
    a(f"v_permlane32_swap_b32 v{g+2}, v{g+3}")
    a("s_nop 1")
    a(f"v_cndmask_b32 v{g}, v{g}, v{g+1}, s[{mb[4]}:{mb[4]+1}]")
    a(f"v_cndmask_b32 v{g+2}, v{g+3}, v{g+2}, s[{mPar}:{mPar+1}]")
    a(f"v_mul_f32 v{g+2}, {hexf(1.0/448)}, v{g+2}")
    a(f"v_mul_f32 v{g+1}, v{g+2}, v{g+2}")
    a(f"v_mov_b32 v{g+3}, {hexf(1.0/448)}")
    a(f"v_fma_f32 v{g}, v{g}, v{g+3}, -v{g+1}")
    a(f"v_max_f32 v{g}, 0, v{g}")
    a(f"v_add_f32 v{g}, {hexf(1e-5)}, v{g}")
    a(f"v_rsq_f32 v{g}, v{g}")
    a("s_waitcnt lgkmcnt(1)")
    a(f"v_add_f32 v{vE}, v{vE}, v{vE+1}")
    a(f"v_add_f32 v{vE+2}, v{vE+2}, v{vE+3}")
    a(f"v_mul_f32 v{g+1}, v{g}, v{g+2}")
    a(f"v_add_f32 v{vE}, v{vE}, v{vE+2}")
    a(f"v_sub_f32 v{g+1}, 0, v{g+1}")
    a(f"ds_write_b32 v{vT+3}, v{vE}")
    a(f"ds_write_b32 v{vT+4}, v{g} offset:256")
    a(f"ds_write_b32 v{vT+4}, v{g+1} offset:384")
    a("s_waitcnt lgkmcnt(3)")
    a(f"v_add_f32 v{vE+4}, v{vE+4}, v{vE+5}")
    a(f"v_add_f32 v{vE+6}, v{vE+6}, v{vE+7}")
    qs = 28 ** -0.5 * math.log2(math.e)
    a(f"v_mul_f32 v{g+4}, {hexf(qs)}, v{g}")
    a(f"v_mul_f32 v{g+5}, {hexf(qs)}, v{g+1}")
    a(f"v_add_f32 v{g+6}, v{vE+4}, v{vE+6}")
    a("s_waitcnt lgkmcnt(0)")
    def rdb(i):
        a(f"ds_read_b128 {v(vE+4*i,4)}, v{vT+5} offset:{(i >> 2) * 128 + (i & 3) * 32}")
    for i in range(12):
        rdb(i)
    a(f"s_lshl_b32 s{sT0}, s{sH}, 4")
    a(f"s_add_u32 s{sT0}, s{sT0}, s{sTb}")
    a(f"s_lshl_b32 s{sT0}, s{sT0}, 2")
    a(f"s_add_u32 s{sT0}, s{sT0}, s{sWave}")
    a(f"s_lshl_b32 s{sT0}, s{sT0}, 11")
    a(f"s_add_u32 s{sT1}, s{sT0}, {WS_KF}")
    a(f"s_add_u32 s{sOX}, s{sT0}, {WS_VF}")
    a(f"v_bfe_u32 v{vT}, v{vL}, 4, 1")
    a(f"v_and_b32 v{vT+1}, 15, v{vL}")
    a(f"v_lshlrev_b32 v{vT+1}, 4, v{vT+1}")
    a(f"v_lshl_add_u32 v{vT}, v{vT}, 10, v{vT+1}")
    a(f"v_lshl_add_u32 v{vT+1}, v{vHi}, 8, v{vT}")
    a(f"v_lshl_add_u32 v{vT}, v{vHi}, 9, v{vT}")
    pk = vXf
    for t, (A_, B_, acc_) in enumerate(((g + 4, g + 5, vQ), (g, g + 1, vK))):
        a(f"s_waitcnt lgkmcnt(8)")
        if t == 0:
            for i in range(12, 16):
                rdb(i)
        for r in range(16):
            a(f"v_mul_f32 v{vE+16*t+r}, v{B_}, v{vE+16*t+r}")
        for r in range(16):
            a(f"v_fma_f32 v{acc_+r}, v{A_}, v{acc_+r}, v{vE+16*t+r}")
        for r in range(8):
            a(f"v_cvt_pk_bf16_f32 v{pk+8*t+r}, v{acc_+2*r}, v{acc_+2*r+1}")
        if t == 1:
            for r in (0, 1):
                a(f"v_cndmask_b32 v{pk+8+r}, v{pk+8+r}, 0, s[{mA}:{mA+1}]")
            for r in (6, 7):
                a(f"v_cndmask_b32 v{pk+8+r}, v{pk+8+r}, 0, s[{mB}:{mB+1}]")
        so = sT0 if t == 0 else sT1
        a(f"buffer_store_dwordx4 {v(pk+8*t,4)}, v{vT}, s[{rQ}:{rQ+3}], s{so} offen")
        a(f"buffer_store_dwordx4 {v(pk+8*t+4,4)}, v{vT}, s[{rQ}:{rQ+3}], s{so} offen offset:256")
    a("s_waitcnt lgkmcnt(0)")
    a(f"v_mov_b32 v{g+7}, 0x3f803f80")
    for r in range(16):
        a(f"v_mul_f32 v{vE+48+r}, v{g+6}, v{vE+48+r}")
    for r in range(16):
        a(f"v_fma_f32 v{vV+r}, v{vE+32+r}, v{vV+r}, v{vE+48+r}")
    for jj in range(2):
        for e, r in enumerate((4*jj, 4*jj+2, 8+4*jj, 8+4*jj+2)):
            a(f"v_cvt_pk_bf16_f32 v{pk+16+4*jj+e}, v{vV+r}, v{vV+r+1}")
    for r in range(8):
        a(f"v_cndmask_b32 v{pk+16+r}, v{pk+16+r}, v{g+7}, s[{mPadV}:{mPadV+1}]")
    a(f"buffer_store_dwordx4 {v(pk+16,4)}, v{vT+1}, s[{rQ}:{rQ+3}], s{sOX} offen")
    a(f"buffer_store_dwordx4 {v(pk+20,4)}, v{vT+1}, s[{rQ}:{rQ+3}], s{sOX} offen offset:512")
    if pf and not diag:
        a("s_waitcnt vmcnt(6)")
    if diag:
        a("s_waitcnt vmcnt(0)")
        stamp(a, 4, sTS, diag)
        stamp_flush(a, 5, sTS, sWS, sWave, kidx, vT, diag)
    a(f"{done}:")
    a("s_endpgm")
    return dict(name=name, grid=NWG, block=256, lds=LDS, vgprs=R.hi)
```

```python
import math
from asmlib import *
from layout import *
from gemm import stamp, stamp_flush

class Trk:
    def __init__(self, a):
        self.a = a; self.vm = []; self.vd = 0; self.ds = []; self.dd = 0
    def ld(self, tag, txt):
        self.a(txt); self.vm.append(tag)
    def lds(self, tag, txt):
        self.a(txt); self.ds.append(tag)
    def wvm(self, tag):
        i = max(k for k, t in enumerate(self.vm) if t == tag) + 1
        if i > self.vd:
            n = min(len(self.vm) - i, 63)
            self.a(f"s_waitcnt vmcnt({n})"); self.vd = len(self.vm) - n
    def wds(self, tag):
        i = max(k for k, t in enumerate(self.ds) if t == tag) + 1
        if i > self.dd:
            n = min(len(self.ds) - i, 15)
            self.a(f"s_waitcnt lgkmcnt({n})"); self.dd = len(self.ds) - n
    def vm0(self):
        self.a("s_waitcnt vmcnt(0)"); self.vd = len(self.vm)
    def ds0(self):
        self.a("s_waitcnt lgkmcnt(0)"); self.dd = len(self.ds)

def fused_kernel(a, name, diag=False, kidx=1, opts={}):
    g_ = lambda k, d: int(opts.get(k, d))
    RING0, RINGW = 48 * 1024, 28 * 1024
    LDS = 160 * 1024
    P1, P2, PO = F * 2, S * 2, D * 2
    DEPTH, INIT, RAMP = g_("dep", 12), g_("init", 3), g_("ramp", 2)
    SPIN = 20000
    sWS, sP1, sP2, sPo = 4, 6, 8, 10
    rWS, rW1, rW2, rWo, rOut, rT = 12, 16, 20, 24, 28, 32
    sWave, sDt, sSt, sFt, sH, sTb = 36, 37, 38, 39, 40, 41
    sT0, sT1, sT2, sT3, sO, sO2 = 42, 43, 44, 45, 46, 47
    sRing, sCnt, sIdle = 48, 49, 50
    mPar, mA, mB, sC1, sC2 = 52, 54, 56, 58, 59
    sTS = 60
    R = Regs(1)
    vL = R.get(); vLo = R.get(); vHi = R.get(); vDl = R.get()
    vT0 = R.get(); vT1 = R.get(); vA0 = R.get(); vA1 = R.get()
    vSw = R.get(); vSr = R.get(); vN1 = R.get(); vOs = R.get(); vB2 = R.get()
    vWa = R.get(4); vWb = R.get(4)
    vX = R.get(8, 2)
    vB1 = R.get(4, 2)
    vXr = R.get(8, 2)
    vH = R.get(16, 4)
    base = R.mark()
    vKa = R.get(); vVa = R.get(); vSt = R.get()
    vQ = R.get(8, 4); vO = R.get(16, 4); vMk = R.get(8, 4); vNm = R.get(8, 4)
    vK = R.get(72, 4); vV = R.get(24, 4); vS = R.get(32, 4); vP = R.get(16, 4)
    R.reset(base)
    vAcc = R.get(64, 4); vAct = R.get(DEPTH * 8, 4); vWf = R.get(16, 4); vId = R.get(8, 4)
    T = Trk(a)
    done = f"{name}_done"
    st_n = [0]
    def stp():
        stamp(a, st_n[0], sTS, diag, kidx); st_n[0] += 1
    kernel_header(a, name)
    a("s_cmp_ge_u32 s2, 256")
    a(f"s_cbranch_scc1 {done}")
    stp()
    a(f"s_load_dwordx2 s[{sWS}:{sWS+1}], s[0:1], {KA_WS}")
    a(f"s_load_dwordx4 s[{rW1}:{rW1+3}], s[0:1], {KA_W1}")
    a(f"s_load_dwordx4 s[{rW2}:{rW2+3}], s[0:1], {KA_W2}")
    a(f"s_load_dwordx2 s[{rWo}:{rWo+1}], s[0:1], {KA_WO}")
    a(f"s_load_dwordx2 s[{rOut}:{rOut+1}], s[0:1], {KA_OUT}")
    a(f"s_load_dwordx2 s[{sPo}:{sPo+1}], s[0:1], {KA_X}")
    a(f"v_lshrrev_b32 v{vX}, 6, v0")
    a(f"v_and_b32 v{vL}, 63, v0")
    a(f"v_readfirstlane_b32 s{sWave}, v{vX}")
    a(f"s_and_b32 s{sT0}, s2, 7")
    a(f"s_lshr_b32 s{sT1}, s2, 3")
    a(f"s_lshr_b32 s{sT2}, s{sT0}, 1")
    a(f"s_and_b32 s{sT0}, s{sT0}, 1")
    a(f"s_and_b32 s{sT3}, s{sT1}, 3")
    a(f"s_lshr_b32 s{sT1}, s{sT1}, 2")
    a(f"s_lshl2_add_u32 s{sTb}, s{sT2}, s{sT3}")
    a(f"s_lshl3_add_u32 s{sH}, s{sT0}, s{sT1}")
    a(f"s_lshl2_add_u32 s{sDt}, s{sT0}, s{sT3}")
    a(f"s_lshl3_add_u32 s{sSt}, s{sT2}, s{sT1}")
    a(f"s_mul_i32 s{sFt}, s{sT2}, 7")
    a(f"s_min_u32 s{sT0}, s{sT1}, 6")
    a(f"s_add_u32 s{sFt}, s{sFt}, s{sT0}")
    a(f"s_mov_b32 s{sIdle}, s{sT1}")
    a(f"v_lshlrev_b32 v{vLo}, 4, v{vL}")
    a(f"s_lshl_b32 s{sT0}, s{sTb}, 3")
    a(f"s_mul_i32 s{sT1}, s{sWave}, 6")
    a(f"s_add_u32 s{sT1}, s{sT1}, s{sT0}")
    a(f"s_lshl_b32 s{sT1}, s{sT1}, 10")
    a(f"s_mul_i32 s{sT2}, s{sH}, {HSTR}")
    a(f"s_add_u32 s{sT1}, s{sT1}, s{sT2}")
    a(f"s_lshl_b32 s{sT2}, s{sH}, 7")
    a(f"s_add_u32 s{sT0}, s{sT0}, s{sT2}")
    a(f"s_lshl1_add_u32 s{sT0}, s{sWave}, s{sT0}")
    a(f"s_lshl_b32 s{sT0}, s{sT0}, 10")
    a(f"s_mul_i32 s{sT2}, s{sWave}, 6144")
    a(f"s_mul_i32 s{sRing}, s{sWave}, {RINGW}")
    a(f"s_add_u32 s{sRing}, s{sRing}, {RING0}")
    a(f"s_add_u32 s{sO}, s{sT1}, {WS_KF}")
    a(f"s_mov_b32 m0, s{sT2}")
    a("s_waitcnt lgkmcnt(0)")
    srd(a, rWS, sWS, 16 * MB)
    wsr = f"s[{rWS}:{rWS+3}]"
    for t in range(2):
        T.ld("q", f"buffer_load_dwordx4 {v(vQ+4*t,4)}, v{vLo}, {wsr}, s{sT0} offen offset:{t*1024}")
    for kv, reg in (("k", WS_KF), ("v", WS_VF)):
        for i in range(6):
            if i == 4 or (i == 0 and kv == "v"):
                a(f"s_add_u32 m0, s{sT2}, {(kv == 'v')*24576 + i*1024}")
                a(f"s_add_u32 s{sO}, s{sT1}, {reg + i*1024}")
            T.ld(kv, f"buffer_load_dwordx4 v{vLo}, {wsr}, s{sO} offen offset:{(i&3)*1024} lds")
    a(f"v_lshrrev_b32 v{vX}, 3, v{vL}")
    a(f"v_lshrrev_b32 v{vX+1}, 2, v{vL}")
    a(f"v_and_b32 v{vX+1}, 4, v{vX+1}")
    a(f"v_and_b32 v{vX+2}, 7, v{vL}")
    a(f"v_xor_b32 v{vX+1}, v{vX+1}, v{vX+2}")
    a(f"v_lshlrev_b32 v{vX+1}, 4, v{vX+1}")
    def waddr(dst, pitch, rows, scol, colmul):
        a(f"s_mul_i32 s{sT0}, s{sWave}, {rows*pitch}")
        a(f"s_mul_i32 s{sT1}, s{scol}, {colmul}")
        a(f"s_add_u32 s{sT0}, s{sT0}, s{sT1}")
        a(f"v_mul_u32_u24 v{vX+2}, {pitch}, v{vX}")
        a(f"v_add3_u32 v{dst}, v{vX+2}, v{vX+1}, s{sT0}")
        for k in range(1, 4):
            a(f"v_add_u32 v{dst+k}, {k*(8*pitch-1024)}, v{dst}")
    waddr(vWa, P1, 512, sFt, 128)
    a(f"s_mov_b32 s{sP1}, s{rW1+2}"); a(f"s_mov_b32 s{sP1+1}, s{rW1+3}")
    a(f"s_mov_b32 s{sP2}, s{rW2+2}"); a(f"s_mov_b32 s{sP2+1}, s{rW2+3}")
    for r, nb in ((rW1, S * F * 2), (rW2, S * F * 2), (rWo, D * D * 2), (rOut, S * D * 2)):
        a(f"s_mov_b32 s{r+2}, {nb}"); a(f"s_mov_b32 s{r+3}, 0x00020000")
    WK = {"w1": (rW1, P1, vWa), "w2": (rW2, P2, vWa), "wo": (rWo, PO, vWb)}
    def wissue_ops(kind, gi, slot):
        r, pitch, va = WK[kind]
        n = 2 if (kind == "wo" and gi == 3) else 4
        ops = [lambda: (a(f"s_add_u32 m0, s{sRing}, {slot*4096}"), a(f"s_mov_b32 s{sO2}, {gi*32*pitch}"))]
        for k in range(n):
            ops.append(lambda k=k: T.ld((kind, gi), f"buffer_load_dwordx4 v{va+k}, s[{r}:{r+3}], s{sO2} offen offset:{k*1024} lds"))
        return ops
    def wdrain_ops(kind, gi, slot):
        ops = []
        for ss in range(2):
            for mt, va in ((0, vT0), (1, vT1)):
                for j in range(2):
                    def op(ss=ss, mt=mt, va=va, j=j):
                        T.wvm((kind, gi))
                        T.lds(("dr", slot), f"ds_read_b64_tr_b16 {acc(16*gi+8*ss+4*mt+2*j,2)}, v{va} offset:{slot*4096+ss*2048+j*1024}")
                    ops.append(op)
        return ops
    def wreuse_ops(kind, gi, slot):
        ops = wissue_ops(kind, gi, slot)
        first = ops[0]
        ops[0] = lambda: (T.wds(("dr", slot)), first())
        return ops
    def run(ops):
        for o in ops:
            o()
    for gi in range(7):
        run(wissue_ops("w1", gi, gi))
    waddr(vWb, PO, 112, sDt, 112)
    a(f"v_lshrrev_b32 v{vHi}, 5, v{vL}")
    a(f"v_and_b32 v{vDl}, 31, v{vL}")
    a(f"v_bfe_u32 v{vX}, v{vL}, 2, 2")
    a(f"v_mad_u32_u24 v{vX+1}, v{vHi}, 4, v{vX}")
    a(f"v_lshlrev_b32 v{vX+1}, 7, v{vX+1}")
    a(f"v_bfe_u32 v{vX+2}, v{vL}, 4, 1")
    a(f"v_lshlrev_b32 v{vX+2}, 5, v{vX+2}")
    a(f"v_and_b32 v{vX+3}, 3, v{vL}")
    a(f"v_lshl_add_u32 v{vX+2}, v{vX+3}, 3, v{vX+2}")
    a(f"v_bfe_u32 v{vX+3}, v{vL}, 3, 1")
    a(f"v_lshl_add_u32 v{vX+2}, v{vX+3}, 6, v{vX+2}")
    a(f"v_add3_u32 v{vT0}, v{vX+1}, v{vX+2}, s{sRing}")
    a(f"v_xor_b32 v{vT1}, 64, v{vT0}")
    a(f"s_lshl_b32 s{sT0}, s{sWave}, 11")
    a(f"v_add_u32 v{vKa}, s{sT0}, v{vLo}")
    a(f"v_add_u32 v{vVa}, 24576, v{vKa}")
    a(f"v_lshrrev_b32 v{vX}, 4, v{vL}")
    a(f"v_and_b32 v{vX+1}, 15, v{vL}")
    a(f"v_lshlrev_b32 v{vX+2}, 4, v{vX+1}")
    a(f"v_lshl_add_u32 v{vSt}, v{vX}, 9, v{vX+2}")
    a(f"v_lshlrev_b32 v{vX}, 2, v{vX}")
    a(f"v_sub_u32 v{vX}, v{vX+1}, v{vX}")
    a(f"v_mov_b32 v{vX+1}, 0xff800000")
    for r in range(4):
        a(f"v_cmp_gt_i32 vcc, {r}, v{vX}")
        a("s_nop 1")
        a(f"v_cndmask_b32 v{vMk+r}, v{vX+1}, 0, vcc")
        a(f"v_cndmask_b32 v{vMk+4+r}, 0, v{vX+1}, vcc")
    a(f"s_and_b32 s{sT1}, s{sH}, 1")
    a(f"s_cmp_eq_u32 s{sT1}, 1")
    a(f"s_cselect_b64 s[{mPar}:{mPar+1}], -1, 0")
    a(f"s_cselect_b32 s{mA}, 0xffff, 0")
    a(f"s_mov_b32 s{mA+1}, 0")
    a(f"s_mov_b32 s{mB}, 0")
    a(f"s_cselect_b32 s{mB+1}, 0, 0xffff0000")
    c1 = -2.0 * math.sqrt(2.0 / math.pi) * math.log2(math.e)
    a(f"s_mov_b32 s{sC1}, {hexf(c1)}")
    a(f"s_mov_b32 s{sC2}, {hexf(c1*0.044715)}")
    T.wvm("k")
    a("s_barrier")
    stp()
    def tiles(u):
        return [t for t in (0, 1) if (t == 0 and u <= 16) or (t == 1 and u >= 1)]
    def cmask(u, t):
        return vMk if u - t == 0 else (vMk + 4 if u - t == 16 else None)
    for u in range(8):
        T.lds(("k", u), f"ds_read_b128 {v(vK+4*u,4)}, v{vKa} offset:{u*1024}")
    mx = [vX, vX + 1]; seen = [False, False]
    def maxof(u):
        for t in tiles(u):
            s_ = vS + ((u & 3) * 2 + t) * 4
            if not seen[t]:
                a(f"v_max3_f32 v{mx[t]}, v{s_}, v{s_+1}, v{s_+2}")
                a(f"v_max_f32 v{mx[t]}, v{mx[t]}, v{s_+3}")
                seen[t] = True
            else:
                a(f"v_max3_f32 v{mx[t]}, v{mx[t]}, v{s_}, v{s_+1}")
                a(f"v_max3_f32 v{mx[t]}, v{mx[t]}, v{s_+2}, v{s_+3}")
    for u in range(18):
        if u + 8 < 18:
            T.lds(("k", u + 8), f"ds_read_b128 {v(vK+4*(u+8),4)}, v{vKa} offset:{(u+8)*1024}")
        T.wds(("k", u))
        for t in tiles(u):
            c = cmask(u, t)
            a(f"v_mfma_f32_16x16x32_bf16 {v(vS+((u&3)*2+t)*4,4)}, {v(vK+4*u,4)}, {v(vQ+4*t,4)}, {v(c,4) if c else 0}")
        if u >= 2:
            maxof(u - 2)
    T.wvm("v")
    a("s_barrier")
    def rdv(p):
        for dt_ in range(2):
            T.lds(("v", p), f"ds_read_b128 {v(vV+(p%3)*8+4*dt_,4)}, v{vVa} offset:{p*2048+dt_*1024}")
    rdv(0); rdv(1)
    maxof(16)
    a("s_nop 3")
    maxof(17)
    for sw in ("v_permlane32_swap_b32", "v_permlane16_swap_b32"):
        for t in range(2):
            a(f"v_mov_b32 v{vX+2+t}, v{mx[t]}")
        a("s_nop 0")
        for t in range(2):
            a(f"{sw} v{mx[t]}, v{vX+2+t}")
        a("s_nop 0")
        for t in range(2):
            a(f"v_max_f32 v{mx[t]}, v{mx[t]}, v{vX+2+t}")
    for t in range(2):
        for r in range(4):
            a(f"v_sub_f32 v{vNm+4*t+r}, 0, v{mx[t]}")
    Sr = lambda p, k, t: vS + (p & 1) * 16 + (k * 2 + t) * 4
    Pr = lambda p, t: vP + (p & 1) * 8 + t * 4
    def s2_ops(p):
        ops = []
        for k in range(2):
            u = 2 * p + k
            for t in tiles(u):
                def op(k=k, u=u, t=t):
                    c = cmask(u, t); d = Sr(p, k, t)
                    if c:
                        for r in range(4):
                            a(f"v_add_f32 v{d+r}, v{c+r}, v{vNm+4*t}")
                        a("s_nop 1")
                    a(f"v_mfma_f32_16x16x32_bf16 {v(d,4)}, {v(vK+4*u,4)}, {v(vQ+4*t,4)}, {v(d if c else vNm+4*t,4)}")
                ops.append(op)
        return ops
    def pv_ops(p):
        ops = []
        for t in range(2):
            for dt_ in range(2):
                def op(t=t, dt_=dt_):
                    T.wds(("v", p))
                    d = vO + 8 * t + 4 * dt_
                    a(f"v_mfma_f32_16x16x32_bf16 {v(d,4)}, {v(vV+(p%3)*8+4*dt_,4)}, {v(Pr(p,t),4)}, {v(d,4) if p else 0}")
                ops.append(op)
        return ops
    bg = []
    for gi in range(7):
        bg += wdrain_ops("w1", gi, gi)
        if gi >= 1:
            sl = gi - 1
            bg += wreuse_ops("w1", 7 + sl, sl) if sl < 3 else wreuse_ops("wo", sl - 3, sl)
    bg += wreuse_ops("wo", 3, 6)
    nbg = -(-len(bg) // 9)
    a("s_nop 0")
    run(s2_ops(0))
    a("s_nop 7")
    for p in range(9):
        mf = (pv_ops(p - 1) if p else []) + (s2_ops(p + 1) if p < 8 else [])
        npv = 4 if p else 0
        regs = [(k, t) for k in range(2) for t in tiles(2 * p + k)]
        mybg = [bg.pop(0) for _ in range(min(nbg, len(bg)))]
        ex = [Sr(p, k, t) + r for k, t in regs for r in range(4)]
        i_m = 0
        for i, r in enumerate(ex):
            a(f"v_exp_f32 v{r}, v{r}")
            if i % 2 == 1 and mf:
                mf.pop(0)(); i_m += 1
                if i_m == npv and p + 2 < 9:
                    rdv(p + 2)
            elif mybg:
                mybg.pop(0)()
        run(mf)
        if p == 0:
            rdv(2)
            a(f"v_mov_b32 v{Pr(0,1)}, 0"); a(f"v_mov_b32 v{Pr(0,1)+1}, 0")
        if p == 8:
            a(f"v_mov_b32 v{Pr(8,0)+2}, 0"); a(f"v_mov_b32 v{Pr(8,0)+3}, 0")
        for k, t in regs:
            a(f"v_cvt_pk_bf16_f32 v{Pr(p,t)+2*k}, v{Sr(p,k,t)}, v{Sr(p,k,t)+1}")
            if mybg: mybg.pop(0)()
            a(f"v_cvt_pk_bf16_f32 v{Pr(p,t)+2*k+1}, v{Sr(p,k,t)+2}, v{Sr(p,k,t)+3}")
            if mybg: mybg.pop(0)()
        run(mybg)
    a("s_nop 1")
    run(pv_ops(8))
    a(f"s_lshl2_add_u32 s{sT0}, s{sTb}, s{sWave}")
    a(f"s_lshl4_add_u32 s{sT0}, s{sT0}, s{sH}")
    a(f"s_lshl_b32 s{sT0}, s{sT0}, 11")
    a(f"s_add_u32 s{sT0}, s{sT0}, {WS_O}")
    a("s_nop 3")
    stp()
    mp = f"s[{mPar}:{mPar+1}]"
    for t in range(2):
        a(f"v_cndmask_b32 v{vX+2*t}, v{vO+8*t+4}, v{vO+8*t}, {mp}")
    for sw in ("v_permlane32_swap_b32", "v_permlane16_swap_b32"):
        for t in range(2):
            a(f"v_mov_b32 v{vX+2*t+1}, v{vX+2*t}")
        a("s_nop 0")
        for t in range(2):
            a(f"{sw} v{vX+2*t}, v{vX+2*t+1}")
        a("s_nop 0")
        for t in range(2):
            a(f"v_cndmask_b32 v{vX+2*t}, v{vX+2*t+1}, v{vX+2*t}, {mp}")
    for t in range(2):
        a(f"v_rcp_f32 v{vX+2*t}, v{vX+2*t}")
    for t in range(2):
        for r in range(8):
            a(f"v_mul_f32 v{vO+8*t+r}, v{vO+8*t+r}, v{vX+2*t}")
        for r in range(4):
            a(f"v_cvt_pk_bf16_f32 v{vQ+4*t+r}, v{vO+8*t+2*r}, v{vO+8*t+2*r+1}")
        for r in range(2):
            a(f"v_cndmask_b32 v{vQ+4*t+r}, v{vQ+4*t+r}, 0, s[{mA}:{mA+1}]")
            a(f"v_cndmask_b32 v{vQ+4*t+2+r}, v{vQ+4*t+2+r}, 0, s[{mB}:{mB+1}]")
        a(f"buffer_store_dwordx4 {v(vQ+4*t,4)}, v{vSt}, {wsr}, s{sT0} offen offset:{t*256} sc1")
    a(f"s_lshr_b32 s{sT0}, s{sWave}, 1")
    a(f"s_lshl_b32 s{sT0}, s{sT0}, 5")
    a(f"v_add_u32 v{vX+3}, s{sT0}, v{vDl}")
    a(f"s_lshl_b32 s{sT1}, s{sSt}, 6")
    a(f"v_add_u32 v{vX}, s{sT1}, v{vX+3}")
    a(f"v_lshlrev_b32 v{vX+2}, 1, v{vX}")
    a(f"s_and_b32 s{sT0}, s{sWave}, 1")
    a(f"s_lshl_b32 s{sT0}, s{sT0}, 6")
    a(f"s_mul_i32 s{sT1}, s{sDt}, 112")
    a(f"s_add_u32 s{sT0}, s{sT0}, s{sT1}")
    a(f"v_mul_u32_u24 v{vX}, 896, v{vX}")
    a(f"v_add_u32 v{vX}, s{sT0}, v{vX}")
    a(f"v_lshl_add_u32 v{vX+1}, v{vHi}, 3, v{vX}")
    a(f"v_lshl_add_u32 v{vOs}, v{vHi}, 4, v{vX}")
    srd(a, rT, sPo, S * D * 2)
    for j in range(4):
        T.ld("x", f"buffer_load_dwordx2 {v(vXr+2*j,2)}, v{vX+1}, s[{rT}:{rT+3}], 0 offen offset:{16*j}")
    srd(a, rT, sP2, S * 2)
    T.ld("x", f"buffer_load_ushort v{vB2}, v{vX+2}, s[{rT}:{rT+3}], 0 offen")
    srd(a, rT, sP1, F * 2)
    a(f"s_lshl2_add_u32 s{sT0}, s{sFt}, s{sWave}")
    a(f"s_lshl_b32 s{sT0}, s{sT0}, 5")
    a(f"v_lshlrev_b32 v{vX+2}, 3, v{vHi}")
    for j in range(2):
        T.ld("x", f"buffer_load_dwordx2 {v(vB1+2*j,2)}, v{vX+2}, s[{rT}:{rT+3}], s{sT0} offen offset:{16*j}")
    for k in range(3):
        run(wdrain_ops("w1", 7 + k, k))
    for k in range(3):
        run(wreuse_ops("w1", 10 + k, k))
    a(f"s_lshl_b32 s{sT0}, s{sSt}, 13")
    a(f"s_add_u32 s{sT0}, s{sT0}, {WS_FL}")
    a(f"v_lshl_add_u32 v{vX+3}, v{vX+3}, 4, s{sT0}")
    a(f"v_lshl_add_u32 v{vSr}, v{vHi}, 12, v{vX+3}")
    a(f"s_lshl_b32 s{sT0}, s{sDt}, 10")
    a(f"s_and_b32 s{sT1}, s{sWave}, 1")
    a(f"s_lshl3_add_u32 s{sT0}, s{sT1}, s{sT0}")
    a(f"v_add_u32 v{vSw}, s{sT0}, v{vX+3}")
    a(f"v_mad_u32_u24 v{vN1}, v{vHi}, 24, v{vDl}")
    a(f"v_lshlrev_b32 v{vN1}, 4, v{vN1}")
    a(f"v_lshlrev_b32 v{vX}, 2, v{vHi}")
    a(f"v_sub_u32 v{vX}, v{vDl}, v{vX}")
    a(f"v_mov_b32 v{vX+1}, 0x3f80")
    for ks in range(2):
        for i in range(4):
            dd = 16 * ks + ((2 * i) & 3) + 8 * (i >> 1)
            a(f"v_subrev_u32 v{vX+2}, {dd}, v{vX}")
            a(f"v_cmp_gt_u32 vcc, 2, v{vX+2}")
            a(f"v_lshlrev_b32 v{vX+2}, 4, v{vX+2}")
            a(f"v_lshlrev_b32 v{vX+2}, v{vX+2}, v{vX+1}")
            a(f"v_cndmask_b32 v{vId+4*ks+i}, 0, v{vX+2}, vcc")
    a(f"s_lshl3_add_u32 s{sT0}, s{sSt}, s{sWave}")
    a(f"s_lshl_b32 s{sT0}, s{sT0}, 13")
    a(f"s_add_u32 s{sT0}, s{sT0}, {WS_O}")
    a(f"s_mov_b32 s{sCnt}, 0")
    def trwo(st):
        hq, j = st >> 1, st & 1
        row = 56 * (hq >> 1) + 24 * (hq & 1) + 8 * j
        for mt, va in ((0, vT0), (1, vT1)):
            for p in range(2):
                T.lds(("wo", st), f"ds_read_b64_tr_b16 {v(vWf+(st&1)*8+mt*4+2*p,2)}, v{va} offset:{3*4096+(row+16*p)*128}")
    if g_("ack", 1):
        T.vm0()
    else:
        T.wvm(("wo", 3))
    a("s_barrier")
    stp()
    trwo(0)
    lp, ok = f"{name}_po", f"{name}_oo"
    a(f"{lp}:")
    for st in range(8):
        for nt in range(2):
            if st % 4 == 0:
                a(f"s_add_u32 s{sO+nt}, s{sT0}, {nt*32768 + (st//4)*4096}")
            a(f"buffer_load_dwordx4 {v(vAct+st*8+nt*4,4)}, v{vLo}, {wsr}, s{sO+nt} offen offset:{(st%4)*1024} sc1")
    a(f"s_add_u32 s{sCnt}, s{sCnt}, 1")
    def allmax(regs, d):
        a(f"v_max3_u32 v{d}, v{regs[0]}, v{regs[1]}, v{regs[2]}")
        rest = regs[3:]
        while len(rest) >= 2:
            a(f"v_max3_u32 v{d}, v{d}, v{rest[0]}, v{rest[1]}"); rest = rest[2:]
        if rest:
            a(f"v_max_u32 v{d}, v{d}, v{rest[0]}")
    a("s_waitcnt vmcnt(8)")
    allmax([vAct + 4 * i + 3 for i in range(8)], vX)
    T.vm0()
    allmax([vX] + [vAct + 4 * i + 3 for i in range(8, 16)], vX)
    a(f"v_cmp_eq_u32 vcc, -1, v{vX}")
    a(f"s_cbranch_vccz {ok}")
    a(f"s_cmp_lt_u32 s{sCnt}, {SPIN}")
    a(f"s_cbranch_scc1 {lp}")
    a(f"{ok}:")
    stp()
    bg = []
    for k in range(3):
        bg += wdrain_ops("w1", 10 + k, k)
    for st in range(8):
        if st + 1 < 8:
            trwo(st + 1)
        T.wds(("wo", st))
        for nt in range(2):
            for mt in range(2):
                d = vAcc + (nt * 2 + mt) * 16
                a(f"v_mfma_f32_32x32x16_bf16 {v(d,16)}, {v(vWf+(st&1)*8+mt*4,4)}, {v(vAct+st*8+nt*4,4)}, {v(d,16) if st else 0}")
                if bg: bg.pop(0)()
    for k in range(3):
        run(wreuse_ops("w1", 13 + k, k))
    stp()
    join = lambda n: f"{name}_j{n}"
    def branch4(tag):
        labs = [f"{name}_{tag}{w}" for w in range(4)]
        for w in range(1, 4):
            a(f"s_cmp_eq_u32 s{sWave}, {w}")
            a(f"s_cbranch_scc1 {labs[w]}")
        return labs
    def reduce4(w, part, dst, pre=None):
        for j in [(w + 1) & 3, (w + 2) & 3, (w + 3) & 3]:
            i = (w - j - 1) & 3
            for q, r in enumerate(part(j)):
                a(f"ds_write_b128 v{vLo}, {v(r,4)} offset:{(j*3+i)*4096+q*1024}")
        own = part(w); n = len(own)
        if pre: pre(own)
        a("s_waitcnt lgkmcnt(0)")
        a("s_barrier")
        for i in range(3):
            for q in range(n):
                a(f"ds_read_b128 {v(vAct+i*16+q*4,4)}, v{vLo} offset:{(w*3+i)*4096+q*1024}")
        for i in range(3):
            a(f"s_waitcnt lgkmcnt({(2-i)*n})")
            for q in range(n):
                for e in range(4):
                    d = dst[q] + e if i == 2 else own[q] + e
                    a(f"v_add_f32 v{d}, v{own[q]+e}, v{vAct+i*16+q*4+e}")
        return n
    def part3(j):
        b = vAcc + j * 16
        return [b, b + 4, b + 8] + ([b + 12] if (j & 1) == 0 else [])
    labs = branch4("e3")
    for w in range(4):
        a(f"{labs[w]}:")
        def addx(own):
            t = vAct + 48
            for q in range(len(own)):
                a(f"v_lshlrev_b32 v{t+4*q}, 16, v{vXr+2*q}")
                a(f"v_and_b32 v{t+4*q+1}, 0xffff0000, v{vXr+2*q}")
                a(f"v_lshlrev_b32 v{t+4*q+2}, 16, v{vXr+2*q+1}")
                a(f"v_and_b32 v{t+4*q+3}, 0xffff0000, v{vXr+2*q+1}")
            for q in range(len(own)):
                for e in range(4):
                    a(f"v_add_f32 v{own[q]+e}, v{own[q]+e}, v{t+4*q+e}")
        n = reduce4(w, part3, [vH + 4 * q for q in range(4)], addx)
        xs = [vH + k for k in range(4 * n)]
        s1, s2 = vX, vX + 1
        a(f"v_add_f32 v{s1}, v{xs[0]}, v{xs[1]}")
        a(f"v_mul_f32 v{s2}, v{xs[0]}, v{xs[0]}")
        a(f"v_add_f32 v{vX+2}, v{xs[2]}, v{xs[3]}")
        a(f"v_mul_f32 v{vX+3}, v{xs[1]}, v{xs[1]}")
        for k_ in range(2, len(xs)):
            if k_ >= 4:
                a(f"v_add_f32 v{s1+2*(k_&1)}, v{s1+2*(k_&1)}, v{xs[k_]}")
            a(f"v_fmac_f32 v{s2+2*(k_&1)}, v{xs[k_]}, v{xs[k_]}")
        a(f"v_add_f32 v{s1}, v{s1}, v{vX+2}")
        a(f"v_add_f32 v{s2}, v{s2}, v{vX+3}")
        a(f"v_mov_b32 v{vX+2}, v{s1}")
        a(f"v_mov_b32 v{vX+3}, v{s2}")
        a("s_nop 1")
        a(f"v_permlane32_swap_b32 v{s1}, v{vX+2}")
        a(f"v_permlane32_swap_b32 v{s2}, v{vX+3}")
        a("s_nop 0")
        a(f"v_add_f32 v{s1}, v{s1}, v{vX+2}")
        a(f"v_add_f32 v{s2}, v{s2}, v{vX+3}")
        a("s_mov_b32 exec_hi, 0")
        a(f"buffer_store_dwordx2 {v(s1,2)}, v{vSw}, {wsr}, 0 offen sc1")
        a("s_mov_b64 exec, -1")
        if n == 3:
            for k in range(12, 16):
                a(f"v_mov_b32 v{vH+k}, 0")
        a(f"s_branch {join(3)}")
    a(f"{join(3)}:")
    T.dd = len(T.ds)
    a(f"s_mov_b32 s{sCnt}, 0")
    a(f"v_lshrrev_b32 v{vX}, 3, v{vL}")
    a(f"v_lshrrev_b32 v{vX+1}, 2, v{vL}")
    a(f"v_and_b32 v{vX+1}, 4, v{vX+1}")
    a(f"v_and_b32 v{vX+2}, 7, v{vL}")
    a(f"v_xor_b32 v{vX+1}, v{vX+1}, v{vX+2}")
    a(f"v_lshlrev_b32 v{vX+1}, 4, v{vX+1}")
    waddr(vWa, P2, 448, sSt, 128)
    for k in range(3):
        run(wdrain_ops("w1", 13 + k, k))
    def actaddr(region, steps):
        a(f"s_lshl2_add_u32 s{sT0}, s{sDt}, s{sWave}")
        a(f"s_mul_i32 s{sT0}, s{sT0}, {steps*1792}")
        a(f"s_add_u32 s{sT0}, s{sT0}, {region}")
        a(f"v_add_u32 v{vA0}, s{sT0}, v{vLo}")
        a(f"v_min_u32 v{vX}, 23, v{vDl}")
        a(f"v_mad_u32_u24 v{vX}, v{vHi}, 24, v{vX}")
        a(f"v_lshl_add_u32 v{vA1}, v{vX}, 4, s{sT0}")
        a(f"v_add_u32 v{vA1}, 1024, v{vA1}")
    actaddr(WS_HN, 32)
    if g_("ack", 1):
        T.vm0()
    stp()
    tmp = vAct
    lp, ok = f"{name}_ps", f"{name}_os"
    a(f"{lp}:")
    for i in range(4):
        a(f"buffer_load_dwordx4 {v(tmp+4*i,4)}, v{vSr}, {wsr}, 0 offen offset:{i*1024} sc1")
    a(f"s_add_u32 s{sCnt}, s{sCnt}, 1")
    T.vm0()
    allmax([tmp + 2 * i + 1 for i in range(8)], vX + 2)
    a(f"v_cmp_eq_u32 vcc, -1, v{vX+2}")
    a(f"s_cbranch_vccz {ok}")
    a(f"s_cmp_lt_u32 s{sCnt}, {SPIN}")
    a(f"s_cbranch_scc1 {lp}")
    a(f"{ok}:")
    stp()
    for e in range(2):
        a(f"v_add_f32 v{tmp+e}, v{tmp+e}, v{tmp+2+e}")
        a(f"v_add_f32 v{tmp+4+e}, v{tmp+4+e}, v{tmp+6+e}")
        a(f"v_add_f32 v{tmp+8+e}, v{tmp+8+e}, v{tmp+10+e}")
        a(f"v_add_f32 v{tmp+12+e}, v{tmp+12+e}, v{tmp+14+e}")
    for e in range(2):
        a(f"v_add_f32 v{tmp+e}, v{tmp+e}, v{tmp+4+e}")
        a(f"v_add_f32 v{tmp+8+e}, v{tmp+8+e}, v{tmp+12+e}")
    for e in range(2):
        a(f"v_add_f32 v{tmp+e}, v{tmp+e}, v{tmp+8+e}")
    a(f"v_mov_b32 v{tmp+2}, v{tmp}")
    a(f"v_mov_b32 v{tmp+3}, v{tmp+1}")
    a(f"v_mov_b32 v{tmp+4}, {hexf(1.0/448)}")
    a(f"v_mov_b32 v{tmp+5}, {hexf(1e-5)}")
    a(f"v_permlane32_swap_b32 v{tmp}, v{tmp+2}")
    a(f"v_permlane32_swap_b32 v{tmp+1}, v{tmp+3}")
    a("s_nop 0")
    a(f"v_add_f32 v{tmp}, v{tmp}, v{tmp+2}")
    a(f"v_add_f32 v{tmp+1}, v{tmp+1}, v{tmp+3}")
    a(f"v_mul_f32 v{tmp}, v{tmp}, v{tmp+4}")
    a(f"v_mul_f32 v{tmp+2}, v{tmp}, v{tmp}")
    a(f"v_fma_f32 v{tmp+1}, v{tmp+1}, v{tmp+4}, -v{tmp+2}")
    a(f"v_max_f32 v{tmp+1}, 0, v{tmp+1}")
    a(f"v_add_f32 v{tmp+2}, v{tmp+1}, v{tmp+5}")
    a(f"v_rsq_f32 v{tmp+2}, v{tmp+2}")
    a(f"s_lshl_b32 s{sT0}, s{sDt}, 5")
    a(f"v_mul_f32 v{tmp+3}, v{tmp+2}, v{tmp+2}")
    a(f"v_fma_f32 v{tmp+3}, v{tmp+3}, v{tmp+1}, v{tmp+5}")
    a(f"v_rsq_f32 v{tmp+3}, v{tmp+3}")
    a(f"s_add_u32 s{sT0}, s{sT0}, s{sSt}")
    a(f"v_mul_f32 v{tmp+2}, v{tmp+2}, v{tmp+3}")
    a(f"v_mul_f32 v{tmp}, v{tmp}, v{tmp+2}")
    hn = vAct + 32
    for k in range(16):
        a(f"v_fma_f32 v{hn+k}, v{vH+k}, v{tmp+2}, -v{tmp}")
    pk2 = vWf + 8
    for k in range(8):
        a(f"v_cvt_pk_bf16_f32 v{pk2+k}, v{hn+2*k}, v{hn+2*k+1}")
    tr = vAct + 16
    a(f"s_lshr_b32 s{sT1}, s{sWave}, 1")
    a(f"s_lshl1_add_u32 s{sT0}, s{sT0}, s{sT1}")
    a(f"v_mfma_f32_32x32x16_bf16 {v(tr,16)}, {v(pk2,4)}, {v(vId,4)}, 0")
    a(f"v_mfma_f32_32x32x16_bf16 {v(tr,16)}, {v(pk2+4,4)}, {v(vId+4,4)}, {v(tr,16)}")
    a(f"s_mul_i32 s{sT0}, s{sT0}, 3584")
    a(f"s_add_u32 s{sT0}, s{sT0}, {WS_HN}")
    a(f"s_bitcmp1_b32 s{sWave}, 0")
    a(f"s_cselect_b32 s{sT1}, 0x00ffffff, -1")
    a(f"s_cselect_b64 vcc, -1, 0")
    a(f"v_add_u32 v{vX}, 1024, v{vN1}")
    a("s_nop 0")
    a(f"v_cndmask_b32 v{vX}, v{vLo}, v{vX}, vcc")
    a("s_nop 5")
    for k in range(8):
        a(f"v_cvt_pk_bf16_f32 v{tmp+k}, v{tr+2*k}, v{tr+2*k+1}")
    a(f"s_mov_b32 exec_lo, s{sT1}")
    a(f"s_mov_b32 exec_hi, s{sT1}")
    a(f"buffer_store_dwordx4 {v(tmp,4)}, v{vX}, {wsr}, s{sT0} offen sc1")
    a(f"buffer_store_dwordx4 {v(tmp+4,4)}, v{vX}, {wsr}, s{sT0} offen offset:1792 sc1")
    a("s_mov_b64 exec, -1")
    stp()
    T.ds0()
    NW2 = g_("nw2", 7)
    for gi in range(NW2):
        run(wissue_ops("w2", gi, gi))
    a("s_barrier")
    a(f"s_cmp_eq_u32 s{sIdle}, 7")
    a(f"s_cbranch_scc1 {name}_idle")
    slow = []
    def gemm(which, steps, bgf):
        tg = f"g{which}"
        a(f"s_mov_b32 s{sCnt}, 0")
        if g_("ack", 1):
            T.vm0()
        stp()
        def issue_ops(st):
            sl = st % DEPTH
            def o1():
                if st % 2 == 0:
                    a(f"s_mov_b32 s{sO}, {st*1792}")
                T.ld((tg, st), f"buffer_load_dwordx4 {v(vAct+sl*8,4)}, v{vA0}, {wsr}, s{sO} offen offset:{(st&1)*1792} sc1")
            def o2():
                T.ld((tg, st), f"buffer_load_dwordx4 {v(vAct+sl*8+4,4)}, v{vA1}, {wsr}, s{sO} offen offset:{(st&1)*1792} sc1")
            return [o1, o2]
        issued = 0
        for st in range(INIT):
            run(issue_ops(st)); issued += 1
        for st in range(steps):
            af = vAct + (st % DEPTH) * 8
            T.wvm((tg, st))
            a(f"v_max_u32 v{vX}, v{af+3}, v{af+7}")
            a(f"v_cmp_eq_u32 vcc, -1, v{vX}")
            a(f"s_cbranch_vccnz {name}_{tg}s{st}")
            a(f"{name}_{tg}r{st}:")
            slow.append((tg, st))
            if st == 0:
                stp()
            ops = []
            n = 0
            while issued <= min(st + DEPTH - 1, steps - 1) and n < RAMP:
                ops += issue_ops(issued); issued += 1; n += 1
            ops += bgf(st, issued == steps and n == 0)
            per = -(-len(ops) // 4)
            for nt in range(2):
                for mt in range(2):
                    d = vAcc + (mt * 2 + nt) * 16
                    c = v(d, 16) if st else "0"
                    wf = acc(8 * st + 4 * mt, 4)
                    if which == 1:
                        a(f"v_mfma_f32_32x32x16_bf16 {v(d,16)}, {wf}, {v(af+nt*4,4)}, {c}")
                    else:
                        a(f"v_mfma_f32_32x32x16_bf16 {v(d,16)}, {v(af+nt*4,4)}, {wf}, {c}")
                    for _ in range(per):
                        if ops: ops.pop(0)()
        stp()
    late = []
    for gi in range(7, 14):
        late.append(wreuse_ops("w2", gi, gi - 7))
    early = [wissue_ops("w2", gi, gi) for gi in range(NW2, 7)]
    drs = {}
    def bg4(st, free):
        ops = []
        if st >= 3 and early:
            ops += early.pop(0)
        k = st - 12
        if 0 <= k < 14:
            if k % 2 == 0:
                drs[0] = wdrain_ops("w2", k // 2, k // 2)
            ops += drs[0][(k % 2) * 4:(k % 2) * 4 + 4]
        if free and late and st >= 12 + 2 * (7 - len(late)) + 2:
            ops += late.pop(0)
        return ops
    gemm(1, 32, bg4)
    while late:
        run(late.pop(0))
    def part4(j):
        mt, t = j >> 1, j & 1
        return [vAcc + (mt * 2) * 16 + 8 * t, vAcc + (mt * 2) * 16 + 8 * t + 4,
                vAcc + (mt * 2 + 1) * 16 + 8 * t, vAcc + (mt * 2 + 1) * 16 + 8 * t + 4]
    labs = branch4("e4")
    for w in range(4):
        a(f"{labs[w]}:")
        t = vAct + 48
        def addb(own):
            for e in range(4):
                a(f"v_lshlrev_b32 v{t+2*e}, 16, v{vB1+e}")
                a(f"v_and_b32 v{t+2*e+1}, 0xffff0000, v{vB1+e}")
            for i_, x in enumerate([own[q] + e for q in range(4) for e in range(4)]):
                a(f"v_add_f32 v{x}, v{x}, v{t+(i_&7)}")
        a("s_nop 7")
        reduce4(w, part4, [vAct + 64 + 4 * q for q in range(4)], addb)
        if w < 3:
            a(f"s_branch {join(4)}")
    a(f"{join(4)}:")
    T.dd = len(T.ds)
    xs = [vAct + 64 + k for k in range(16)]
    z = vAct
    a(f"v_mov_b32 v{vX}, s{sC1}")
    for i_, x in enumerate(xs):
        a(f"v_mul_f32 v{z+i_}, v{x}, v{x}")
    for i_, x in enumerate(xs):
        a(f"v_fma_f32 v{z+i_}, v{z+i_}, s{sC2}, v{vX}")
    for i_, x in enumerate(xs):
        a(f"v_mul_f32 v{z+i_}, v{z+i_}, v{x}")
    for i_, x in enumerate(xs):
        a(f"v_exp_f32 v{z+i_}, v{z+i_}")
    for i_, x in enumerate(xs):
        a(f"v_add_f32 v{z+i_}, 1.0, v{z+i_}")
    for i_, x in enumerate(xs):
        a(f"v_rcp_f32 v{z+i_}, v{z+i_}")
    a(f"s_mul_i32 s{sT0}, s{sDt}, 28")
    a(f"s_add_u32 s{sT0}, s{sT0}, s{sFt}")
    a(f"s_lshl2_add_u32 s{sT0}, s{sT0}, s{sWave}")
    a(f"s_mul_i32 s{sT0}, s{sT0}, 1792")
    a(f"s_add_u32 s{sT0}, s{sT0}, {WS_UF}")
    for i_, x in enumerate(xs):
        a(f"v_mul_f32 v{x}, v{x}, v{z+i_}")
    pk = vWf
    for i_ in range(8):
        a(f"v_cvt_pk_bf16_f32 v{pk+i_}, v{xs[2*i_]}, v{xs[2*i_+1]}")
    a(f"buffer_store_dwordx4 {v(pk,4)}, v{vLo}, {wsr}, s{sT0} offen sc1")
    a("s_mov_b32 exec_lo, 0x00ffffff")
    a("s_mov_b32 exec_hi, 0x00ffffff")
    a(f"buffer_store_dwordx4 {v(pk+4,4)}, v{vN1}, {wsr}, s{sT0} offen offset:1024 sc1")
    a("s_mov_b64 exec, -1")
    a(f"{join(5)}:")
    actaddr(WS_UF, 28)
    a("s_barrier")
    drs.clear()
    def bg5(st, free):
        if st < 14:
            if st % 2 == 0:
                drs[0] = wdrain_ops("w2", 7 + st // 2, st // 2)
            return drs[0][(st % 2) * 4:(st % 2) * 4 + 4]
        if st == 13 + 1:
            pass
        return []
    T.vm0()
    class G5:
        pass
    _bg5 = bg5
    def bg5w(st, free):
        ops = _bg5(st, free)
        if st == 13:
            ops = ops + [T.ds0]
        return ops
    gemm(2, 28, bg5w)
    def part5(j):
        b = vAcc + j * 16
        return [b, b + 4, b + 8] + ([b + 12] if (j & 1) == 0 else [])
    labs = branch4("e5")
    for w in range(4):
        a(f"{labs[w]}:")
        def addh(own):
            a(f"v_lshlrev_b32 v{vB2}, 16, v{vB2}")
            for q in range(len(own)):
                for e in range(4):
                    a(f"v_add_f32 v{vH+4*q+e}, v{vH+4*q+e}, v{vB2}")
            for q in range(len(own)):
                for e in range(4):
                    a(f"v_add_f32 v{own[q]+e}, v{own[q]+e}, v{vH+4*q+e}")
        a("s_nop 7")
        n = reduce4(w, part5, [vH + 4 * q for q in range(4)], addh)
        for q in range(n):
            a(f"v_cvt_pk_bf16_f32 v{pk+2*q}, v{vH+4*q}, v{vH+4*q+1}")
            a(f"v_cvt_pk_bf16_f32 v{pk+2*q+1}, v{vH+4*q+2}, v{vH+4*q+3}")
        a("s_nop 1")
        for p in range(2):
            a(f"v_permlane32_swap_b32 v{pk+4*p}, v{pk+4*p+2}")
            a(f"v_permlane32_swap_b32 v{pk+4*p+1}, v{pk+4*p+3}")
        a(f"buffer_store_dwordx4 {v(pk,4)}, v{vOs}, s[{rOut}:{rOut+3}], 0 offen")
        if n == 3:
            a("s_mov_b32 exec_hi, 0")
        a(f"buffer_store_dwordx4 {v(pk+4,4)}, v{vOs}, s[{rOut}:{rOut+3}], 0 offen offset:32")
        if diag:
            a("s_mov_b64 exec, -1")
            a("s_waitcnt vmcnt(0)")
            stamp(a, st_n[0], sTS, diag, kidx)
            stamp_flush(a, st_n[0] + 1, sTS, sWS, sWave, kidx, vX, diag)
        a("s_endpgm")
    a(f"{name}_idle:")
    T2 = T
    T.vm = []; T.vd = 0; T.ds = []; T.dd = 0
    a("s_waitcnt vmcnt(0)")
    for gi in range(NW2, 7):
        run(wissue_ops("w2", gi, gi))
    T.vm += [("w2", gi) for gi in range(7)]
    for gi in range(7):
        run(wdrain_ops("w2", gi, gi))
    for gi in range(7):
        run(wreuse_ops("w2", 7 + gi, gi))
    if diag:
        for k in range(9, 12):
            stamp(a, k, sTS, diag, kidx)
    a("s_barrier")
    a(f"s_branch {join(5)}")
    for tg, st in slow:
        af = vAct + (st % DEPTH) * 8
        a(f"{name}_{tg}s{st}:")
        a(f"s_mov_b32 s{sT0}, {st*1792}")
        a(f"buffer_load_dwordx4 {v(af,4)}, v{vA0}, {wsr}, s{sT0} offen sc1")
        a(f"buffer_load_dwordx4 {v(af+4,4)}, v{vA1}, {wsr}, s{sT0} offen sc1")
        a(f"s_add_u32 s{sCnt}, s{sCnt}, 1")
        a(f"s_cmp_ge_u32 s{sCnt}, {SPIN}")
        a("s_waitcnt vmcnt(0)")
        a(f"s_cbranch_scc1 {name}_{tg}r{st}")
        a(f"v_max_u32 v{vX}, v{af+3}, v{af+7}")
        a(f"v_cmp_eq_u32 vcc, -1, v{vX}")
        a(f"s_cbranch_vccnz {name}_{tg}s{st}")
        a(f"s_branch {name}_{tg}r{st}")
    a(f"{done}:")
    a("s_endpgm")
    print("fused: vgprs", R.hi, "stamps", st_n[0] + 1)
    return dict(name=name, grid=256, block=256, lds=LDS, vgprs=256, agprs=256)
```

```python
import math
from asmlib import *
from layout import *
from gemm import stamp, stamp_flush, pf_setup, pf_issue

def qkv_kernel(a, name, diag=False, kidx=0, opts={}):
    NWG = 256
    CH = 12800
    XB = 7 * CH
    CSB = XB + 4 * 16384
    PRV = CSB + 1536
    LDS = PRV + 4 * 512
    PITCH = 2688
    tbx = int(opts.get("k1tb", 4))
    rot = int(opts.get("k1rot", 1))
    sX, sW, sWS = 4, 6, 8
    rX, rW, rQ, rF = 12, 16, 20, 24
    sWave, sH, sTb, sWb, sXb, sT0, sT1 = 28, 29, 30, 31, 32, 33, 34
    sOX, sOW = 36, 44
    mPar, mA, mB, mEx, mPadV = 52, 54, 56, 58, 70
    mb = [72, 74, 76, 78, 80]
    sTS = 60
    R = Regs(1)
    vL = R.get(); vHi = R.get(); vTok = R.get()
    vWo = R.get(); vXo = R.get(4)
    vXa = R.get(4); vQa = R.get(4); vKa = R.get()
    vT = R.get(8, 2)
    vSel = R.get(4, 4)
    vCs = R.get(12, 4)
    vQ = R.get(16, 4); vK = R.get(16, 4); vV = R.get(16, 4); vG = R.get(16, 4)
    vXf = R.get(32, 4)
    vWf = R.get(24, 4)
    vE = R.get(64, 4)
    pf = [x for x in opts.get('pf1', '').split(',') if x]
    pfat = int(opts.get('pf1at', 16))
    vPf = R.get(8)
    vPo = R.get(6, 4)
    done = f"{name}_done"
    kernel_header(a, name)
    a(f"s_cmp_ge_u32 s2, {NWG}")
    a(f"s_cbranch_scc1 {done}")
    stamp(a, 0, sTS, diag, kidx)
    a(f"s_load_dwordx4 s[{sX}:{sX+3}], s[0:1], {KA_X}")
    a(f"s_load_dwordx2 s[{sWS}:{sWS+1}], s[0:1], {KA_WS}")
    for i, w_ in enumerate(pf):
        pf_setup(a, w_, 82 + 2 * i)
    a(f"v_lshrrev_b32 v{vT}, 6, v0")
    a(f"v_and_b32 v{vL}, 63, v0")
    a(f"v_readfirstlane_b32 s{sWave}, v{vT}")
    nx = 16 // tbx
    hx = 8 // nx
    lg = lambda n: n.bit_length() - 1
    a(f"s_and_b32 s{sT0}, s2, 7")
    a(f"s_lshr_b32 s{sT1}, s2, 3")
    a(f"s_lshr_b32 s{sTb}, s{sT0}, {lg(hx)}")
    a(f"s_lshl_b32 s{sTb}, s{sTb}, {lg(tbx)}")
    a(f"s_and_b32 s{sH}, s{sT1}, {tbx-1}")
    a(f"s_add_u32 s{sTb}, s{sTb}, s{sH}")
    a(f"s_and_b32 s{sH}, s{sT0}, {hx-1}")
    a(f"s_lshl_b32 s{sH}, s{sH}, {lg(16//hx)}")
    a(f"s_lshr_b32 s{sT1}, s{sT1}, {lg(tbx)}")
    a(f"s_add_u32 s{sH}, s{sH}, s{sT1}")
    if rot:
        a(f"s_and_b32 s{sT0}, s{sH}, 7")
        a(f"s_cmp_eq_u32 s{sT0}, 7")
        a(f"s_cselect_b32 s{sT0}, 3, s{sT0}")
    else:
        a(f"s_mov_b32 s{sT0}, 0")
    for c in range(7):
        a(f"s_lshl_b32 s{sOX+c}, s{sT0}, 7")
        a(f"s_mul_i32 s{sOW+c}, s{sT0}, {64*PITCH}")
        if c < 6:
            a(f"s_add_u32 s{sT0}, s{sT0}, 1")
            a(f"s_cmp_eq_u32 s{sT0}, 7")
            a(f"s_cselect_b32 s{sT0}, 0, s{sT0}")
    a(f"s_mul_i32 s{sT0}, s{sH}, 56")
    a(f"s_and_b32 s{sT1}, s{sH}, 1")
    a(f"s_lshl_b32 s{sT1}, s{sT1}, 3")
    a(f"s_sub_u32 s{sT0}, s{sT0}, s{sT1}")
    a(f"s_mul_i32 s{sT1}, s{sWave}, {16*PITCH}")
    a(f"s_add_u32 s{sT0}, s{sT0}, s{sT1}")
    a(f"v_lshrrev_b32 v{vT}, 2, v{vL}")
    a(f"v_mul_u32_u24 v{vT}, {PITCH}, v{vT}")
    a(f"v_and_b32 v{vT+1}, 3, v{vL}")
    a(f"v_lshlrev_b32 v{vT+1}, 4, v{vT+1}")
    a(f"v_add3_u32 v{vWo}, v{vT}, v{vT+1}, s{sT0}")
    a(f"s_lshl_b32 s{sT0}, s{sTb}, 2")
    a(f"s_add_u32 s{sT0}, s{sT0}, s{sWave}")
    a(f"s_mul_i32 s{sT0}, s{sT0}, {32*896}")
    a(f"v_lshrrev_b32 v{vT}, 3, v{vL}")
    a(f"v_mul_u32_u24 v{vT}, 896, v{vT}")
    a(f"v_lshrrev_b32 v{vT+1}, 4, v{vL}")
    a(f"v_and_b32 v{vT+2}, 7, v{vL}")
    a(f"v_xor_b32 v{vT+1}, v{vT+1}, v{vT+2}")
    a(f"v_lshlrev_b32 v{vT+1}, 4, v{vT+1}")
    a(f"v_add3_u32 v{vXo}, v{vT}, v{vT+1}, s{sT0}")
    a(f"v_xor_b32 v{vT+1}, 64, v{vT+1}")
    a(f"v_add3_u32 v{vXo+1}, v{vT}, v{vT+1}, s{sT0}")
    a(f"v_add_u32 v{vXo+2}, {2*(8*896-1024)}, v{vXo}")
    a(f"v_add_u32 v{vXo+1}, {8*896-1024}, v{vXo+1}")
    a(f"v_add_u32 v{vXo+3}, {2*(8*896-1024)}, v{vXo+1}")
    a(f"s_mul_i32 s{sWb}, s{sWave}, 3072")
    a(f"s_lshl_b32 s{sXb}, s{sWave}, 14")
    a(f"s_add_u32 s{sXb}, s{sXb}, {XB}")
    a("s_waitcnt lgkmcnt(0)")
    srd(a, rX, sX, S * D * 2)
    srd(a, rW, sW, D * 3 * D * 2)

    order = []
    def issueW(c):
        for t in range(3):
            a(f"s_add_u32 m0, s{sWb}, {c*CH + t*128}")
            a("s_nop 0")
            a(f"buffer_load_dwordx4 v{vWo}, s[{rW}:{rW+3}], s{sOW+c} offen offset:{t*896} lds")
            order.append(c)
    def issueX(c):
        a(f"s_add_u32 m0, s{sXb}, {(c&3)*4096}")
        a("s_nop 0")
        for i in range(4):
            a(f"buffer_load_dwordx4 v{vXo+i}, s[{rX}:{rX+3}], s{sOX+c} offen offset:{i*1024} lds")
            order.append(c)
    def waitchunk(c):
        last = max(i for i, t in enumerate(order) if t == c)
        a(f"s_waitcnt vmcnt({len(order)-1-last})")
    for c in range(4):
        issueX(c); issueW(c)
    for c in range(4, 7):
        issueW(c)
    stamp(a, 1, sTS, diag)
    srd(a, rQ, sWS, 16 * MB)
    a(f"v_lshrrev_b32 v{vHi}, 5, v{vL}")
    a(f"v_and_b32 v{vTok}, 31, v{vL}")
    a(f"v_lshrrev_b32 v{vT}, 5, v0")
    a(f"v_mul_u32_u24 v{vT}, {CH}, v{vT}")
    a(f"v_lshl_add_u32 v{vT}, v{vTok}, 4, v{vT}")
    for e in range(4):
        a(f"v_mov_b32 v{vSel+e}, 0x3f803f80")
    a(f"v_cmp_gt_u32 vcc, 224, v0")
    a(f"s_and_saveexec_b64 s[{mEx}:{mEx+1}], vcc")
    a(f"ds_write_b128 v{vT}, {v(vSel,4)} offset:12288")
    a(f"s_mov_b64 exec, s[{mEx}:{mEx+1}]")
    a(f"v_bfe_u32 v{vT}, v{vL}, 1, 3")
    a(f"v_xor_b32 v{vT}, v{vT}, v{vHi}")
    a(f"v_lshlrev_b32 v{vT}, 4, v{vT}")
    a(f"v_lshl_add_u32 v{vT+1}, v{vTok}, 7, s{sXb}")
    for j in range(4):
        a(f"v_xor_b32 v{vT+2}, {32*j}, v{vT}")
        a(f"v_add_u32 v{vXa+j}, v{vT+2}, v{vT+1}")
    a(f"v_bfe_u32 v{vT}, v{vL}, 2, 2")
    a(f"v_lshlrev_b32 v{vT}, 6, v{vT}")
    a(f"v_bfe_u32 v{vT+1}, v{vL}, 4, 1")
    a(f"v_and_b32 v{vT+2}, 3, v{vL}")
    a(f"v_lshlrev_b32 v{vT+2}, 3, v{vT+2}")
    a(f"v_lshl_add_u32 v{vT+1}, v{vT+1}, 5, v{vT+2}")
    a(f"v_add_u32 v{vT}, v{vT}, v{vT+1}")
    a(f"v_lshl_add_u32 v{vKa}, v{vHi}, 9, v{vT}")
    a(f"v_add_u32 v{vT}, 12288, v{vT}")
    a(f"s_and_b32 s{sT0}, s{sH}, 1")
    a(f"s_cmp_eq_u32 s{sT0}, 1")
    a(f"s_cselect_b32 s{sT1}, 0, 0x13")
    a(f"s_cselect_b64 s[{mPar}:{mPar+1}], -1, 0")
    a(f"s_cselect_b32 s{mA}, -1, 0")
    a(f"s_mov_b32 s{mA+1}, 0")
    a(f"s_mov_b32 s{mB}, 0")
    a(f"s_cselect_b32 s{mB+1}, 0, -1")
    a(f"s_cselect_b32 s{mPadV}, 0x0000000f, 0xf0000000")
    a(f"s_mov_b32 s{mPadV+1}, s{mPadV}")
    a(f"v_and_b32 v{vT+1}, 0x13, v{vL}")
    a(f"v_cmp_eq_u32 vcc, s{sT1}, v{vT+1}")
    a("s_nop 0")
    for j in range(4):
        a(f"v_add_u32 v{vT+2}, {j*3072}, v{vKa}")
        a(f"v_cndmask_b32 v{vQa+j}, v{vT+2}, v{vT}, vcc")
    a(f"v_and_b32 v{vT}, 15, v{vL}")
    a(f"v_bfe_u32 v{vT+1}, v{vL}, 4, 1")
    a(f"v_cmp_eq_u32 vcc, v{vT}, v{vT+1}")
    a("s_waitcnt lgkmcnt(0)")
    a("s_nop 1")
    for e in range(4):
        a(f"v_cndmask_b32 v{vSel+e}, 0, v{vSel+e}, vcc")
    for i, bit in enumerate((0, 1, 3, 4, 2)):
        pat = sum(1 << l for l in range(32) if (l >> bit) & 1)
        a(f"s_mov_b32 s{mb[i]}, 0x{pat:08x}")
        a(f"s_mov_b32 s{mb[i]+1}, 0x{pat:08x}")
    def rd_x(c, j):
        a(f"ds_read_b128 {v(vXf+(c&1)*16+4*j,4)}, v{vXa+j} offset:{(c&3)*4096}")
    def rd_w(s_, t, p):
        c, j = s_ >> 2, s_ & 3
        cc = c if c < 5 else c - 5
        d = vWf + (s_ & 1) * 12 + t * 4 + 2 * p
        if t == 0:
            a(f"ds_read_b64_tr_b16 {v(d,2)}, v{vQa+j} offset:{cc*CH+p*256}")
        else:
            a(f"ds_read_b64_tr_b16 {v(d,2)}, v{vKa} offset:{cc*CH+j*3072+t*1024+p*256}")
    PO0 = int(opts.get("po0", 12))
    sPo = 82 + 6
    a(f"s_lshl_b32 s{sPo+8}, s2, 2")
    a(f"s_add_u32 s{sPo+8}, s{sPo+8}, s{sWave}")
    for e in range(4):
        a(f"v_mov_b32 v{vPo+e}, -1")
    a(f"v_lshlrev_b32 v{vPo+4}, 4, v{vL}")
    a(f"v_lshlrev_b32 v{vPo+5}, 2, v{vL}")
    def po(base, per, offs):
        r = [f"s_mul_i32 s{sPo+9}, s{sPo+8}, {per}", f"s_add_u32 s{sPo+9}, s{sPo+9}, {base}"]
        return r + [f"buffer_store_dwordx4 {v(vPo,4)}, v{vPo+4}, s[{rQ}:{rQ+3}], s{sPo+9} offen offset:{o} sc1" for o in offs]
    polist = [po(WS_O, 2048, (0, 1024)), po(WS_HN, 1792, (0, 768)), po(WS_UF, 1568, (0, 544))]
    polist.append(["s_mov_b64 exec, 0xffff"] + po(WS_FL, 256, (0,)) + ["s_mov_b64 exec, -1"])
    waitchunk(0)
    a("s_barrier")
    stamp(a, 2, sTS, diag)
    rd_x(0, 0); rd_x(0, 1)
    for t in range(3):
        rd_w(0, t, 0); rd_w(0, t, 1)
    rd_x(0, 2); rd_x(0, 3)
    for s_ in range(28):
        c, j = s_ >> 2, s_ & 3
        xf = v(vXf + (c & 1) * 16 + 4 * j, 4)
        wf = [v(vWf + (s_ & 1) * 12 + 4 * t, 4) for t in range(3)]
        cz = lambda r, n=16: "0" if s_ == 0 else v(r, n)
        nxt = s_ + 1 < 28
        newc = nxt and j == 3
        if j == 0:
            a("s_waitcnt lgkmcnt(8)")
        a(f"v_mfma_f32_32x32x16_bf16 {v(vG,16)}, {xf}, {xf}, {cz(vG)}")
        if newc:
            waitchunk(c + 1)
            if c + 1 == 5:
                for r in [vKa] + [vQa + i for i in range(4)]:
                    a(f"v_add_u32 v{r}, {5*CH}, v{r}")
            a("s_waitcnt lgkmcnt(0)")
            a("s_barrier")
            rd_x(c + 1, 0); rd_x(c + 1, 1)
        else:
            a(f"s_waitcnt lgkmcnt({2 if j == 0 else 0})")
        if nxt:
            rd_w(s_ + 1, 0, 0); rd_w(s_ + 1, 0, 1)
        a(f"v_mfma_f32_32x32x16_bf16 {v(vQ,16)}, {wf[0]}, {xf}, {cz(vQ)}")
        if nxt:
            rd_w(s_ + 1, 1, 0); rd_w(s_ + 1, 1, 1)
        if j == 1 and c + 4 < 7:
            issueX(c + 4)
        a(f"v_mfma_f32_32x32x16_bf16 {v(vK,16)}, {wf[1]}, {xf}, {cz(vK)}")
        if nxt:
            rd_w(s_ + 1, 2, 0); rd_w(s_ + 1, 2, 1)
        if newc:
            rd_x(c + 1, 2); rd_x(c + 1, 3)
        a(f"v_mfma_f32_32x32x16_bf16 {v(vV,16)}, {xf}, {wf[2]}, {cz(vV)}")
        if s_ == pfat:
            for i, w_ in enumerate(pf):
                n_ = pf_issue(a, w_, 82 + 2 * i, 88, 92, sWave, vL, vPf, vPf + 2 + 2 * i)
                order.extend([-1] * n_)
        if s_ >= PO0 and polist:
            for x_ in polist.pop(0):
                a(x_)
        lab = a.label("k1cs")
        a(f"s_cmp_lg_u32 s{sWave}, {j}")
        a(f"s_cbranch_scc1 {lab}")
        for t in range(3):
            cs = "0" if c == 0 else v(vCs + 4 * t, 4)
            a(f"v_mfma_f32_16x16x32_bf16 {v(vCs+4*t,4)}, {v(vSel,4)}, {wf[t]}, {cs}")
        a(f"{lab}:")
    stamp(a, 3, sTS, diag)
    a(f"s_lshl_b32 s{sT0}, s{sWave}, 2")
    a(f"s_add_u32 s{sT0}, s{sT0}, {CSB}")
    a(f"v_lshl_add_u32 v{vT}, v{vL}, 4, s{sT0}")
    a(f"v_lshlrev_b32 v{vT+1}, 4, v{vL}")
    a(f"v_add_u32 v{vT+1}, {CSB}, v{vT+1}")
    a(f"v_lshlrev_b32 v{vT+2}, 4, v{vTok}")
    a(f"v_add_u32 v{vT+2}, {CSB+1024}, v{vT+2}")
    a(f"s_lshl_b32 s{sT0}, s{sWave}, 9")
    a(f"s_add_u32 s{sT0}, s{sT0}, {PRV}")
    a(f"v_lshl_add_u32 v{vT+3}, v{vL}, 2, s{sT0}")
    a(f"v_lshl_add_u32 v{vT+4}, v{vTok}, 2, s{sT0}")
    a(f"v_lshl_add_u32 v{vT+5}, v{vHi}, 4, s{sT0}")
    a("s_mov_b64 exec, 0xffff")
    for t in range(3):
        a(f"ds_write_b32 v{vT}, v{vCs+4*t} offset:{t*512}")
        a(f"ds_write_b32 v{vT}, v{vCs+4*t+1} offset:{t*512+256}")
    a("s_mov_b64 exec, -1")
    g = vG
    for i in range(8):
        a(f"v_cndmask_b32 v{g+2*i}, v{g+2*i}, v{g+2*i+1}, s[{mb[0]}:{mb[0]+1}]")
    for i in range(4):
        a(f"v_cndmask_b32 v{g+4*i}, v{g+4*i}, v{g+4*i+2}, s[{mb[1]}:{mb[1]+1}]")
    a("s_waitcnt lgkmcnt(0)")
    a("s_barrier")
    a(f"ds_read_b128 {v(vE,4)}, v{vT+1}")
    a(f"ds_read_b128 {v(vE+4,4)}, v{vT+2}")
    for i in range(2):
        a(f"v_cndmask_b32 v{g+8*i}, v{g+8*i}, v{g+8*i+4}, s[{mb[2]}:{mb[2]+1}]")
    a(f"v_cndmask_b32 v{g}, v{g}, v{g+8}, s[{mb[3]}:{mb[3]+1}]")
    a(f"v_cndmask_b32 v{g+2}, v{vQ+12}, v{vQ}, s[{mPar}:{mPar+1}]")
    a(f"v_mov_b32 v{g+1}, v{g}")
    a(f"v_mov_b32 v{g+3}, v{g+2}")
    a("s_nop 1")
    a(f"v_permlane32_swap_b32 v{g}, v{g+1}")
    a(f"v_permlane32_swap_b32 v{g+2}, v{g+3}")
    a("s_nop 1")
    a(f"v_cndmask_b32 v{g}, v{g}, v{g+1}, s[{mb[4]}:{mb[4]+1}]")
    a(f"v_cndmask_b32 v{g+2}, v{g+3}, v{g+2}, s[{mPar}:{mPar+1}]")
    a(f"v_mul_f32 v{g+2}, {hexf(1.0/448)}, v{g+2}")
    a(f"v_mul_f32 v{g+1}, v{g+2}, v{g+2}")
    a(f"v_mov_b32 v{g+3}, {hexf(1.0/448)}")
    a(f"v_fma_f32 v{g}, v{g}, v{g+3}, -v{g+1}")
    a(f"v_max_f32 v{g}, 0, v{g}")
    a(f"v_add_f32 v{g}, {hexf(1e-5)}, v{g}")
    a(f"v_rsq_f32 v{g}, v{g}")
    a("s_waitcnt lgkmcnt(1)")
    a(f"v_add_f32 v{vE}, v{vE}, v{vE+1}")
    a(f"v_add_f32 v{vE+2}, v{vE+2}, v{vE+3}")
    a(f"v_mul_f32 v{g+1}, v{g}, v{g+2}")
    a(f"v_add_f32 v{vE}, v{vE}, v{vE+2}")
    a(f"v_sub_f32 v{g+1}, 0, v{g+1}")
    a(f"ds_write_b32 v{vT+3}, v{vE}")
    a(f"ds_write_b32 v{vT+4}, v{g} offset:256")
    a(f"ds_write_b32 v{vT+4}, v{g+1} offset:384")
    a("s_waitcnt lgkmcnt(3)")
    a(f"v_add_f32 v{vE+4}, v{vE+4}, v{vE+5}")
    a(f"v_add_f32 v{vE+6}, v{vE+6}, v{vE+7}")
    qs = 28 ** -0.5 * math.log2(math.e)
    a(f"v_mul_f32 v{g+4}, {hexf(qs)}, v{g}")
    a(f"v_mul_f32 v{g+5}, {hexf(qs)}, v{g+1}")
    a(f"v_add_f32 v{g+6}, v{vE+4}, v{vE+6}")
    a("s_waitcnt lgkmcnt(0)")
    def rdb(i):
        a(f"ds_read_b128 {v(vE+4*i,4)}, v{vT+5} offset:{(i >> 2) * 128 + (i & 3) * 32}")
    for i in range(12):
        rdb(i)
    a(f"s_lshl_b32 s{sT0}, s{sH}, 4")
    a(f"s_add_u32 s{sT0}, s{sT0}, s{sTb}")
    a(f"s_lshl_b32 s{sT0}, s{sT0}, 2")
    a(f"s_add_u32 s{sT0}, s{sT0}, s{sWave}")
    a(f"s_lshl_b32 s{sT0}, s{sT0}, 11")
    a(f"s_lshl_b32 s{sOX+1}, s{sH}, 14")
    a(f"s_add_u32 s{sT1}, s{sT0}, s{sOX+1}")
    a(f"s_add_u32 s{sOX}, s{sT1}, {WS_VF + 16384}")
    a(f"s_add_u32 s{sT1}, s{sT1}, {WS_KF + 16384}")
    a(f"s_mul_i32 s{sOX+1}, s{sH}, {HSTR}")
    a(f"s_lshl_b32 s{sOX+2}, s{sTb}, 10")
    a(f"s_add_u32 s{sOX+1}, s{sOX+1}, s{sOX+2}")
    a(f"s_add_u32 s{sOX+2}, s{sOX+1}, {WS_VF}")
    a(f"s_add_u32 s{sOX+1}, s{sOX+1}, {WS_KF}")
    a(f"v_bfe_u32 v{vT}, v{vL}, 4, 1")
    a(f"v_and_b32 v{vT+1}, 15, v{vL}")
    a(f"v_lshlrev_b32 v{vT+1}, 4, v{vT+1}")
    a(f"v_lshl_add_u32 v{vT}, v{vT}, 10, v{vT+1}")
    a(f"v_lshl_add_u32 v{vT+1}, v{vHi}, 8, v{vT}")
    a(f"v_lshl_add_u32 v{vT}, v{vHi}, 9, v{vT}")
    pk = vXf
    a(f"v_mov_b32 v{g+7}, 0x3f803f80")
    for t, (A_, B_, acc_) in enumerate(((g + 4, g + 5, vQ), (g, g + 1, vK))):
        a(f"s_waitcnt lgkmcnt(8)")
        if t == 0:
            for i in range(12, 16):
                rdb(i)
        for r in range(16):
            a(f"v_mul_f32 v{vE+16*t+r}, v{B_}, v{vE+16*t+r}")
        for r in range(16):
            a(f"v_fma_f32 v{acc_+r}, v{A_}, v{acc_+r}, v{vE+16*t+r}")
        for r in range(8):
            a(f"v_cvt_pk_bf16_f32 v{pk+8*t+r}, v{acc_+2*r}, v{acc_+2*r+1}")
        pad = f"v{g+7}" if t == 0 else "0"
        for r in (0, 1):
            a(f"v_cndmask_b32 v{pk+8*t+r}, v{pk+8*t+r}, {pad}, s[{mA}:{mA+1}]")
        for r in (6, 7):
            a(f"v_cndmask_b32 v{pk+8*t+r}, v{pk+8*t+r}, {pad}, s[{mB}:{mB+1}]")
        so = sT0 if t == 0 else sT1
        a(f"buffer_store_dwordx4 {v(pk+8*t,4)}, v{vT}, s[{rQ}:{rQ+3}], s{so} offen")
        a(f"buffer_store_dwordx4 {v(pk+8*t+4,4)}, v{vT}, s[{rQ}:{rQ+3}], s{so} offen offset:256")
    a("s_waitcnt lgkmcnt(0)")
    for r in range(16):
        a(f"v_mul_f32 v{vE+48+r}, v{g+6}, v{vE+48+r}")
    for r in range(16):
        a(f"v_fma_f32 v{vV+r}, v{vE+32+r}, v{vV+r}, v{vE+48+r}")
    for jj in range(2):
        for e, r in enumerate((4*jj, 4*jj+2, 8+4*jj, 8+4*jj+2)):
            a(f"v_cvt_pk_bf16_f32 v{pk+16+4*jj+e}, v{vV+r}, v{vV+r+1}")
    for r in range(8):
        a(f"v_cndmask_b32 v{pk+16+r}, v{pk+16+r}, v{g+7}, s[{mPadV}:{mPadV+1}]")
    a(f"buffer_store_dwordx4 {v(pk+16,4)}, v{vT+1}, s[{rQ}:{rQ+3}], s{sOX} offen")
    a(f"buffer_store_dwordx4 {v(pk+20,4)}, v{vT+1}, s[{rQ}:{rQ+3}], s{sOX} offen offset:512")
    lab = a.label("k1neg")
    a(f"s_cmp_lg_u32 s{sWave}, 0")
    a(f"s_cbranch_scc1 {lab}")
    a(f"v_mov_b32 v{vE+8}, 0xfb80fb80")
    for r in range(8):
        if r in (0, 1, 6, 7):
            m_ = mA if r < 2 else mB
            a(f"v_cndmask_b32 v{vE+r}, 0, v{vE+8}, s[{m_}:{m_+1}]")
        else:
            a(f"v_mov_b32 v{vE+r}, 0")
    for r in range(4):
        a(f"v_mov_b32 v{vE+12+r}, 0")
    a(f"buffer_store_dwordx4 {v(vE+12,4)}, v{vPo+4}, s[{rQ}:{rQ+3}], s{sOX+2} offen")
    a("s_mov_b32 exec_lo, 0xffff")
    a("s_mov_b32 exec_hi, 0xffff")
    a(f"buffer_store_dwordx4 {v(vE,4)}, v{vT}, s[{rQ}:{rQ+3}], s{sOX+1} offen")
    a(f"buffer_store_dwordx4 {v(vE+4,4)}, v{vT}, s[{rQ}:{rQ+3}], s{sOX+1} offen offset:256")
    a("s_mov_b64 exec, -1")
    a(f"{lab}:")
    if pf and not diag:
        a("s_waitcnt vmcnt(0)")
    if diag:
        a("s_waitcnt vmcnt(0)")
        stamp(a, 4, sTS, diag)
        stamp_flush(a, 5, sTS, sWS, sWave, kidx, vT, diag)
    a(f"{done}:")
    a("s_endpgm")
    return dict(name=name, grid=NWG, block=256, lds=LDS, vgprs=R.hi)
```

```python
import sys, os
sys.path.insert(0, os.path.dirname(os.path.abspath(__file__)))
from asmlib import *
from layout import *
import gemm

NAME = "sequential_preLN__sliding_block__mixer_token_mlp__prompt"

def empty_kernel(a, name):
    kernel_header(a, name)
    a("s_endpgm")
    return dict(name=name, grid=256, block=256, lds=0, vgprs=8)

def build(opts):
    a = Asm()
    ks = []
    diag = int(opts.get("diag", 0))
    only = opts.get("only", "1F")
    if "spin" in opts:
        gemm.MARK[0] = 1
    if "1" in only:
        import qkv
        ks.append(qkv.qkv_kernel(a, "qkv_kernel", diag=diag, kidx=0, opts=opts))
    if "F" in only:
        import fused
        ks.append(fused.fused_kernel(a, "attn_mix_kernel", diag=diag, kidx=1, opts=opts))
    if "2" in only:
        import attn
        ks.append(attn.attn_kernel(a, "attn_kernel", diag=diag, kidx=1, opts=opts))
    if "3" in only:
        import proj
        ks.append(proj.proj_kernel(a, "proj_kernel", diag=diag, kidx=2, opts=opts))
    if "4" in only:
        ks.append(gemm.gemm_kernel(a, "mix1_kernel", 1, DEPTH=int(opts.get("d4", 12)), diag=diag, kidx=3, opts=opts))
    if "5" in only:
        ks.append(gemm.gemm_kernel(a, "mix2_kernel", 2, DEPTH=int(opts.get("d5", 12)), diag=diag, kidx=4, opts=opts))
    if "spin" in opts:
        i, j, m = map(int, opts["spin"].split(","))
        ks.append(gemm.spin_kernel(a, "spin_kernel", i, j, m))
    launches = list(ks)
    nempty = int(opts.get("empty", 0))
    if nempty:
        e = empty_kernel(a, "nop_kernel")
        ks.append(e)
        launches += [e] * nempty
    for k in ks:
        kernel_desc(a, k["name"], k["vgprs"], k.get("agprs", 0))
    hdr = ["; hand-written generator output (gen/*.py): LN+QKV, sliding-window attention, Wo+LN, token-mixing MLP",
           "; kernarg: 0 x, 8 wqkv, 16 wo, 24 (unused), 32 w1, 40 b1, 48 w2, 56 b2, 64 out, 72 debug, 80 ws"]
    for k in launches:
        hdr.append(f"; @launch kernel={k['name']} grid=({k['grid']},1,1) block=({k['block']},1,1) lds={k['lds']}")
    hdr.append('.amdgcn_target "amdgcn-amd-amdhsa--gfx950"')
    return "\n".join(hdr) + "\n" + a.text()

if __name__ == "__main__":
    args = sys.argv[1:]
    out = f"cdna_kernels/{NAME}.s"
    opts = {}
    for x in args:
        if "=" in x:
            k, v_ = x.split("=", 1); opts[k] = v_
        else:
            out = x
    t = build(opts)
    open(out, "w").write(t)
    print("wrote", out, len(t), "bytes")
```

```python
import math
from asmlib import *
from layout import *
from gemm import stamp, stamp_flush

class Trk:
    def __init__(self, a):
        self.a = a; self.vm = []; self.vd = 0; self.ds = []; self.dd = 0
    def ld(self, tag, txt):
        self.a(txt); self.vm.append(tag)
    def lds(self, tag, txt):
        self.a(txt); self.ds.append(tag)
    def wvm(self, tag):
        i = max(k for k, t in enumerate(self.vm) if t == tag) + 1
        if i > self.vd:
            n = min(len(self.vm) - i, 63)
            self.a(f"s_waitcnt vmcnt({n})"); self.vd = len(self.vm) - n
    def wds(self, tag):
        i = max(k for k, t in enumerate(self.ds) if t == tag) + 1
        if i > self.dd:
            n = min(len(self.ds) - i, 15)
            self.a(f"s_waitcnt lgkmcnt({n})"); self.dd = len(self.ds) - n
    def vm0(self):
        self.a("s_waitcnt vmcnt(0)"); self.vd = len(self.vm)
    def ds0(self):
        self.a("s_waitcnt lgkmcnt(0)"); self.dd = len(self.ds)

def fused_kernel(a, name, diag=False, kidx=1, opts={}):
    g_ = lambda k, d: int(opts.get(k, d))
    RING0, RINGW = 48 * 1024, 28 * 1024
    LDS = 160 * 1024
    P1, P2, PO = F * 2, S * 2, D * 2
    DEPTH, INIT, RAMP = g_("dep", 12), g_("init", 3), g_("ramp", 2)
    SPIN = 20000
    sWS, sP1, sP2, sPo = 4, 6, 8, 10
    rWS, rW1, rW2, rWo, rOut, rT = 12, 16, 20, 24, 28, 32
    sWave, sDt, sSt, sFt, sH, sTb = 36, 37, 38, 39, 40, 41
    sT0, sT1, sT2, sT3, sO, sO2 = 42, 43, 44, 45, 46, 47
    sRing, sCnt, sIdle, sT4 = 48, 49, 50, 51
    sR1, sR2, sOb = 92, 93, 94
    mPar, mA, mB, sC1, sC2 = 52, 54, 56, 58, 59
    sTS = 60
    R = Regs(1)
    vL = R.get(); vLo = R.get(); vHi = R.get(); vDl = R.get()
    vT0 = R.get(); vT1 = R.get(); vA0 = R.get(); vA1 = R.get()
    vSw = R.get(); vSr = R.get(); vN1 = R.get(); vOs = R.get(); vB2 = R.get()
    vWa = R.get(4); vWb = R.get(4)
    vX = R.get(8, 2)
    vB1 = R.get(4, 2)
    vXr = R.get(8, 2)
    vH = R.get(16, 4)
    vId = R.get(8, 4)
    base = R.mark()
    vKa = R.get(); vVa = R.get(); vSt = R.get()
    vQ = R.get(8, 4); vO = R.get(16, 4); vMk = R.get(8, 4); vNm = R.get(8, 4)
    vK = R.get(72, 4); vV = R.get(24, 4); vS = R.get(32, 4); vP = R.get(16, 4)
    R.reset(base)
    vAcc = R.get(64, 4); vAct = R.get(DEPTH * 8, 4); vWf = R.get(16, 4)
    T = Trk(a)
    done = f"{name}_done"
    st_n = [0]
    STS = opts.get("st", "k,att,oack,od,p3,sack,sok,hn,g1,g1d,g1e,g2,g2d,g2e").split(",")
    used = []
    def stp(nm=None):
        if nm is None or nm in STS:
            stamp(a, st_n[0], sTS, diag, kidx); st_n[0] += 1; used.append(nm)
    kernel_header(a, name)
    a("s_cmp_ge_u32 s2, 256")
    a(f"s_cbranch_scc1 {done}")
    stp()
    a(f"s_load_dwordx2 s[{sWS}:{sWS+1}], s[0:1], {KA_WS}")
    a(f"s_load_dwordx4 s[{rW1}:{rW1+3}], s[0:1], {KA_W1}")
    a(f"s_load_dwordx4 s[{rW2}:{rW2+3}], s[0:1], {KA_W2}")
    a(f"s_load_dwordx2 s[{rWo}:{rWo+1}], s[0:1], {KA_WO}")
    a(f"s_load_dwordx2 s[{rOut}:{rOut+1}], s[0:1], {KA_OUT}")
    a(f"s_load_dwordx2 s[{sPo}:{sPo+1}], s[0:1], {KA_X}")
    a(f"v_lshrrev_b32 v{vX}, 6, v0")
    a(f"v_and_b32 v{vL}, 63, v0")
    a(f"v_readfirstlane_b32 s{sWave}, v{vX}")
    a(f"s_and_b32 s{sT0}, s2, 7")
    a(f"s_lshr_b32 s{sT1}, s2, 3")
    a(f"s_lshr_b32 s{sT2}, s{sT0}, 1")
    a(f"s_and_b32 s{sT0}, s{sT0}, 1")
    a(f"s_and_b32 s{sT3}, s{sT1}, 3")
    a(f"s_lshr_b32 s{sT1}, s{sT1}, 2")
    a(f"s_lshl2_add_u32 s{sTb}, s{sT2}, s{sT3}")
    a(f"s_lshl3_add_u32 s{sH}, s{sT0}, s{sT1}")
    a(f"s_lshl2_add_u32 s{sDt}, s{sT0}, s{sT3}")
    a(f"s_lshl3_add_u32 s{sSt}, s{sT2}, s{sT1}")
    a(f"s_mul_i32 s{sFt}, s{sT2}, 7")
    a(f"s_min_u32 s{sT0}, s{sT1}, 6")
    a(f"s_add_u32 s{sFt}, s{sFt}, s{sT0}")
    a(f"s_mov_b32 s{sIdle}, s{sT1}")
    a(f"s_mul_i32 s{sR1}, s{sT0}, {37 if g_('rot', 0) else 0}")
    a(f"s_lshr_b32 s{sR1}, s{sR1}, 4")
    a(f"s_mul_i32 s{sR2}, s{sT1}, {7 if g_('rot', 0) else 0}")
    a(f"s_lshr_b32 s{sR2}, s{sR2}, 2")
    a(f"v_lshlrev_b32 v{vLo}, 4, v{vL}")
    a(f"s_lshl_b32 s{sT0}, s{sTb}, 3")
    a(f"s_mul_i32 s{sT1}, s{sWave}, 6")
    a(f"s_add_u32 s{sT1}, s{sT1}, s{sT0}")
    a(f"s_lshl_b32 s{sT1}, s{sT1}, 10")
    a(f"s_mul_i32 s{sT2}, s{sH}, {HSTR}")
    a(f"s_add_u32 s{sT1}, s{sT1}, s{sT2}")
    a(f"s_lshl_b32 s{sT2}, s{sH}, 7")
    a(f"s_add_u32 s{sT0}, s{sT0}, s{sT2}")
    a(f"s_lshl1_add_u32 s{sT0}, s{sWave}, s{sT0}")
    a(f"s_lshl_b32 s{sT0}, s{sT0}, 10")
    a(f"s_mul_i32 s{sT2}, s{sWave}, 6144")
    a(f"s_mul_i32 s{sRing}, s{sWave}, {RINGW}")
    a(f"s_add_u32 s{sRing}, s{sRing}, {RING0}")
    a(f"s_add_u32 s{sO}, s{sT1}, {WS_KF}")
    a(f"s_mov_b32 m0, s{sT2}")
    a("s_waitcnt lgkmcnt(0)")
    stp("ka")
    srd(a, rWS, sWS, 16 * MB)
    wsr = f"s[{rWS}:{rWS+3}]"
    for kv, reg in (("k", WS_KF), ("v", WS_VF)):
        if kv == "v":
            for t in range(2):
                T.ld("k", f"buffer_load_dwordx4 {v(vQ+4*t,4)}, v{vLo}, {wsr}, s{sT0} offen offset:{t*1024}")
        for i in range(6):
            if i == 4 or (i == 0 and kv == "v"):
                a(f"s_add_u32 m0, s{sT2}, {(kv == 'v')*24576 + i*1024}")
                a(f"s_add_u32 s{sO}, s{sT1}, {reg + i*1024}")
            T.ld(kv, f"buffer_load_dwordx4 v{vLo}, {wsr}, s{sO} offen offset:{(i&3)*1024} lds")
    stp("kvi")
    a(f"v_lshrrev_b32 v{vX}, 3, v{vL}")
    a(f"v_lshrrev_b32 v{vX+1}, 2, v{vL}")
    a(f"v_and_b32 v{vX+1}, 4, v{vX+1}")
    a(f"v_and_b32 v{vX+2}, 7, v{vL}")
    a(f"v_xor_b32 v{vX+1}, v{vX+1}, v{vX+2}")
    a(f"v_lshlrev_b32 v{vX+1}, 4, v{vX+1}")
    def waddr(dst, pitch, rows, scol, colmul):
        a(f"s_mul_i32 s{sT0}, s{sWave}, {rows*pitch}")
        a(f"s_mul_i32 s{sT1}, s{scol}, {colmul}")
        a(f"s_add_u32 s{sT0}, s{sT0}, s{sT1}")
        a(f"v_mul_u32_u24 v{vX+2}, {pitch}, v{vX}")
        a(f"v_add3_u32 v{dst}, v{vX+2}, v{vX+1}, s{sT0}")
        for k in range(1, 4):
            a(f"v_add_u32 v{dst+k}, {k*(8*pitch-1024)}, v{dst}")
    waddr(vWb, PO, 112, sDt, 112)
    a(f"s_mov_b32 s{sP1}, s{rW1+2}"); a(f"s_mov_b32 s{sP1+1}, s{rW1+3}")
    a(f"s_mov_b32 s{sP2}, s{rW2+2}"); a(f"s_mov_b32 s{sP2+1}, s{rW2+3}")
    for r, nb in ((rW1, S * F * 2), (rW2, S * F * 2), (rWo, D * D * 2), (rOut, S * D * 2)):
        a(f"s_mov_b32 s{r+2}, {nb}"); a(f"s_mov_b32 s{r+3}, 0x00020000")
    WK = {"w1": (rW1, P1, vWa), "w2": (rW2, P2, vWb), "wo": (rWo, PO, vWb)}
    def rotoff(dst, kind, gi, unit):
        sr, ng = (sR1, 16) if kind == "w1" else (sR2, 14)
        a(f"s_add_u32 s{dst}, s{sr}, {gi}")
        if ng == 16:
            a(f"s_and_b32 s{dst}, s{dst}, 15")
        else:
            a(f"s_sub_u32 s{sT4}, s{dst}, 14")
            a(f"s_min_u32 s{dst}, s{dst}, s{sT4}")
        a(f"s_mul_i32 s{dst}, s{dst}, {unit}")
    def wissue_ops(kind, gi, slot):
        r, pitch, va = WK[kind]
        n = 2 if (kind == "wo" and gi == 3) else 4
        def first():
            if kind == "wo":
                a(f"s_mov_b32 s{sO2}, {gi*32*pitch}")
            else:
                rotoff(sO2, kind, gi, 32 * pitch)
            a(f"s_add_u32 m0, s{sRing}, {slot*4096}")
            a("s_nop 0")
        ops = [first]
        for k in range(n):
            ops.append(lambda k=k: T.ld((kind, gi), f"buffer_load_dwordx4 v{va+k}, s[{r}:{r+3}], s{sO2} offen offset:{k*1024} lds"))
        return ops
    def wdrain_ops(kind, gi, slot):
        ops = []
        for ss in range(2):
            for mt, va in ((0, vT0), (1, vT1)):
                for j in range(2):
                    def op(ss=ss, mt=mt, va=va, j=j):
                        T.wvm((kind, gi))
                        T.lds(("dr", slot), f"ds_read_b64_tr_b16 {acc(16*gi+8*ss+4*mt+2*j,2)}, v{va} offset:{slot*4096+ss*2048+j*1024}")
                    ops.append(op)
        return ops
    def wodrain_ops(st):
        hq, j = st >> 1, st & 1
        row = 56 * (hq >> 1) + 24 * (hq & 1) + 8 * j
        ops = []
        for mt, va in ((0, vT0), (1, vT1)):
            for p in range(2):
                def op(mt=mt, va=va, p=p):
                    T.wvm(("wo", (row + 23) >> 5))
                    T.lds(("wod", st), f"ds_read_b64_tr_b16 {acc(192+8*st+4*mt+2*p,2)}, v{va} offset:{(row+16*p)*128}")
                ops.append(op)
        return ops
    def wreuse_ops(kind, gi, slot, tag=None):
        ops = wissue_ops(kind, gi, slot)
        first = ops[0]
        ops[0] = lambda: (T.wds(tag or ("dr", slot)), first())
        return ops
    def run(ops):
        for o in ops:
            o()
    N0 = g_("n0", 0)
    t1 = [wissue_ops("wo", gi, gi) for gi in range(4)] + [wissue_ops("w1", gi, 4 + gi) for gi in range(3)]
    for ops in t1[:min(N0, 4)]:
        run(ops)
    waddr(vWa, P1, 512, sFt, 128)
    for ops in t1[4:N0]:
        run(ops)
    bg1 = sum(t1[N0:], [])
    stp("woi")
    a(f"v_lshrrev_b32 v{vHi}, 5, v{vL}")
    a(f"v_and_b32 v{vDl}, 31, v{vL}")
    a(f"v_bfe_u32 v{vX}, v{vL}, 2, 2")
    a(f"v_mad_u32_u24 v{vX+1}, v{vHi}, 4, v{vX}")
    a(f"v_lshlrev_b32 v{vX+1}, 7, v{vX+1}")
    a(f"v_bfe_u32 v{vX+2}, v{vL}, 4, 1")
    a(f"v_lshlrev_b32 v{vX+2}, 5, v{vX+2}")
    a(f"v_and_b32 v{vX+3}, 3, v{vL}")
    a(f"v_lshl_add_u32 v{vX+2}, v{vX+3}, 3, v{vX+2}")
    a(f"v_bfe_u32 v{vX+3}, v{vL}, 3, 1")
    a(f"v_lshl_add_u32 v{vX+2}, v{vX+3}, 6, v{vX+2}")
    a(f"v_add3_u32 v{vT0}, v{vX+1}, v{vX+2}, s{sRing}")
    a(f"v_xor_b32 v{vT1}, 64, v{vT0}")
    a(f"s_lshl_b32 s{sT0}, s{sWave}, 11")
    a(f"v_add_u32 v{vKa}, s{sT0}, v{vLo}")
    a(f"v_add_u32 v{vVa}, 24576, v{vKa}")
    a(f"v_lshrrev_b32 v{vX}, 4, v{vL}")
    a(f"v_and_b32 v{vX+1}, 15, v{vL}")
    a(f"v_lshlrev_b32 v{vX+2}, 4, v{vX+1}")
    a(f"v_lshl_add_u32 v{vSt}, v{vX}, 9, v{vX+2}")
    a(f"v_lshlrev_b32 v{vX}, 2, v{vX}")
    a(f"v_sub_u32 v{vX}, v{vX+1}, v{vX}")
    a(f"v_mov_b32 v{vX+1}, 0xff800000")
    for r in range(4):
        a(f"v_cmp_gt_i32 vcc, {r}, v{vX}")
        a("s_nop 1")
        a(f"v_cndmask_b32 v{vMk+r}, v{vX+1}, 0, vcc")
        a(f"v_cndmask_b32 v{vMk+4+r}, 0, v{vX+1}, vcc")
    a(f"s_and_b32 s{sT1}, s{sH}, 1")
    a(f"s_cmp_eq_u32 s{sT1}, 1")
    a(f"s_cselect_b64 s[{mPar}:{mPar+1}], -1, 0")
    a(f"s_cselect_b32 s{mA}, 0xffff, 0")
    a(f"s_mov_b32 s{mA+1}, 0")
    a(f"s_mov_b32 s{mB}, 0")
    a(f"s_cselect_b32 s{mB+1}, 0, 0xffff0000")
    c1 = -2.0 * math.sqrt(2.0 / math.pi) * math.log2(math.e)
    a(f"s_mov_b32 s{sC1}, {hexf(c1)}")
    a(f"s_mov_b32 s{sC2}, {hexf(c1*0.044715)}")
    a(f"s_lshr_b32 s{sT0}, s{sWave}, 1")
    a(f"s_lshl_b32 s{sT0}, s{sT0}, 5")
    a(f"v_add_u32 v{vX+3}, s{sT0}, v{vDl}")
    a(f"s_lshl_b32 s{sT1}, s{sSt}, 6")
    a(f"v_add_u32 v{vX}, s{sT1}, v{vX+3}")
    a(f"v_lshlrev_b32 v{vX+2}, 1, v{vX}")
    a(f"s_and_b32 s{sT0}, s{sWave}, 1")
    a(f"s_lshl_b32 s{sT0}, s{sT0}, 6")
    a(f"s_mul_i32 s{sT1}, s{sDt}, 112")
    a(f"s_add_u32 s{sT0}, s{sT0}, s{sT1}")
    a(f"v_mul_u32_u24 v{vX}, 896, v{vX}")
    a(f"v_add_u32 v{vX}, s{sT0}, v{vX}")
    a(f"v_lshl_add_u32 v{vH}, v{vHi}, 5, v{vX}")
    a(f"v_lshl_add_u32 v{vOs}, v{vHi}, 4, v{vX}")
    a(f"v_mov_b32 v{vH+1}, v{vX+2}")
    a(f"v_lshlrev_b32 v{vH+2}, 3, v{vHi}")
    def xload():
        srd(a, rT, sPo, S * D * 2)
        for j in range(2):
            T.ld("x", f"buffer_load_dwordx4 {v(vXr+4*j,4)}, v{vH}, s[{rT}:{rT+3}], 0 offen offset:{16*j}")
    def bload():
        srd(a, rT, sP2, S * 2)
        T.ld("x", f"buffer_load_ushort v{vB2}, v{vH+1}, s[{rT}:{rT+3}], 0 offen")
        srd(a, rT, sP1, F * 2)
        a(f"s_lshl2_add_u32 s{sT0}, s{sFt}, s{sWave}")
        a(f"s_lshl_b32 s{sT0}, s{sT0}, 5")
        for j in range(2):
            T.ld("x", f"buffer_load_dwordx2 {v(vB1+2*j,2)}, v{vH+2}, s[{rT}:{rT+3}], s{sT0} offen offset:{16*j}")
    def touch(half):
        a(f"s_lshl_b32 s{sT0}, s{sR2}, 5")
        a(f"s_mul_i32 s{sT1}, s{sWave}, 56")
        a(f"s_add_u32 s{sT0}, s{sT0}, s{sT1}")
        a(f"s_add_u32 s{sT0}, s{sT0}, {224*half}")
        a(f"v_min_u32 v{vH+4}, 55, v{vL}")
        a(f"v_add_u32 v{vH+4}, s{sT0}, v{vH+4}")
        a(f"v_subrev_u32 v{vH+5}, 448, v{vH+4}")
        a(f"v_min_u32 v{vH+4}, v{vH+4}, v{vH+5}")
        a(f"s_and_b32 s{sT0}, s{sDt}, 3")
        a(f"s_mul_i32 s{sT0}, s{sT0}, {448*P2}")
        a(f"s_lshl_b32 s{sT1}, s{sSt}, 7")
        a(f"s_add_u32 s{sT0}, s{sT0}, s{sT1}")
        a(f"v_lshlrev_b32 v{vH+4}, 12, v{vH+4}")
        T.ld("pf", f"buffer_load_dword v{vH+6+half}, v{vH+4}, s[{rW2}:{rW2+3}], s{sT0} offen")
    TA = opts.get("ta", "xx")
    a(f"s_lshl_b32 s{sT0}, s{sSt}, 13")
    a(f"s_add_u32 s{sT0}, s{sT0}, {WS_FL}")
    a(f"v_lshl_add_u32 v{vX+3}, v{vX+3}, 4, s{sT0}")
    a(f"v_lshl_add_u32 v{vSr}, v{vHi}, 12, v{vX+3}")
    a(f"s_lshl_b32 s{sT0}, s{sDt}, 10")
    a(f"s_and_b32 s{sT1}, s{sWave}, 1")
    a(f"s_lshl3_add_u32 s{sT0}, s{sT1}, s{sT0}")
    a(f"v_add_u32 v{vSw}, s{sT0}, v{vX+3}")
    a(f"v_mad_u32_u24 v{vN1}, v{vHi}, 24, v{vDl}")
    a(f"v_lshlrev_b32 v{vN1}, 4, v{vN1}")
    a(f"v_lshlrev_b32 v{vX}, 2, v{vHi}")
    a(f"v_sub_u32 v{vX}, v{vDl}, v{vX}")
    a(f"v_mov_b32 v{vX+1}, 0x3f80")
    for ks in range(2):
        for i in range(4):
            dd = 16 * ks + ((2 * i) & 3) + 8 * (i >> 1)
            a(f"v_subrev_u32 v{vX+2}, {dd}, v{vX}")
            a(f"v_cmp_gt_u32 vcc, 2, v{vX+2}")
            a(f"v_lshlrev_b32 v{vX+2}, 4, v{vX+2}")
            a(f"v_lshlrev_b32 v{vX+2}, v{vX+2}, v{vX+1}")
            a(f"v_cndmask_b32 v{vId+4*ks+i}, 0, v{vX+2}, vcc")
    a(f"s_lshl3_add_u32 s{sOb}, s{sSt}, s{sWave}")
    a(f"s_lshl_b32 s{sOb}, s{sOb}, 13")
    a(f"s_add_u32 s{sOb}, s{sOb}, {WS_O}")
    for hf in range(2):
        if TA[hf] == "0": touch(hf)
        if TA[hf] == "1": bg1.append(lambda hf=hf: touch(hf))
    stp("set")
    T.wvm("k")
    stp("kw")
    a("s_barrier")
    stp("k")
    def tiles(u):
        return [t for t in (0, 1) if (t == 0 and u <= 16) or (t == 1 and u >= 1)]
    def cmask(u, t):
        return vMk if u - t == 0 else (vMk + 4 if u - t == 16 else None)
    for u in range(8):
        T.lds(("k", u), f"ds_read_b128 {v(vK+4*u,4)}, v{vKa} offset:{u*1024}")
    mx = [vX, vX + 1]; seen = [False, False]
    def maxof(u):
        for t in tiles(u):
            s_ = vS + ((u & 3) * 2 + t) * 4
            if not seen[t]:
                a(f"v_max3_f32 v{mx[t]}, v{s_}, v{s_+1}, v{s_+2}")
                a(f"v_max_f32 v{mx[t]}, v{mx[t]}, v{s_+3}")
                seen[t] = True
            else:
                a(f"v_max3_f32 v{mx[t]}, v{mx[t]}, v{s_}, v{s_+1}")
                a(f"v_max3_f32 v{mx[t]}, v{mx[t]}, v{s_+2}, v{s_+3}")
    for u in range(18):
        if u + 8 < 18:
            T.lds(("k", u + 8), f"ds_read_b128 {v(vK+4*(u+8),4)}, v{vKa} offset:{(u+8)*1024}")
        T.wds(("k", u))
        for t in tiles(u):
            c = cmask(u, t)
            a(f"v_mfma_f32_16x16x32_bf16 {v(vS+((u&3)*2+t)*4,4)}, {v(vK+4*u,4)}, {v(vQ+4*t,4)}, {v(c,4) if c else 0}")
        for _ in range(-(-len(bg1) // (18 - u))):
            bg1.pop(0)()
        if u >= 2:
            maxof(u - 2)
    stp("p1")
    T.wvm("v")
    a("s_barrier")
    def rdv(p):
        for dt_ in range(2):
            T.lds(("v", p), f"ds_read_b128 {v(vV+(p%3)*8+4*dt_,4)}, v{vVa} offset:{p*2048+dt_*1024}")
    rdv(0); rdv(1)
    maxof(16)
    a("s_nop 3")
    maxof(17)
    for sw in ("v_permlane32_swap_b32", "v_permlane16_swap_b32"):
        for t in range(2):
            a(f"v_mov_b32 v{vX+2+t}, v{mx[t]}")
        a("s_nop 0")
        for t in range(2):
            a(f"{sw} v{mx[t]}, v{vX+2+t}")
        a("s_nop 0")
        for t in range(2):
            a(f"v_max_f32 v{mx[t]}, v{mx[t]}, v{vX+2+t}")
    for t in range(2):
        for r in range(4):
            a(f"v_sub_f32 v{vNm+4*t+r}, 0, v{mx[t]}")
    Sr = lambda p, k, t: vS + (p & 1) * 16 + (k * 2 + t) * 4
    Pr = lambda p, t: vP + (p & 1) * 8 + t * 4
    def s2_ops(p):
        ops = []
        for k in range(2):
            u = 2 * p + k
            for t in tiles(u):
                def op(k=k, u=u, t=t):
                    c = cmask(u, t); d = Sr(p, k, t)
                    if c:
                        for r in range(4):
                            a(f"v_add_f32 v{d+r}, v{c+r}, v{vNm+4*t}")
                        a("s_nop 1")
                    a(f"v_mfma_f32_16x16x32_bf16 {v(d,4)}, {v(vK+4*u,4)}, {v(vQ+4*t,4)}, {v(d if c else vNm+4*t,4)}")
                ops.append(op)
        return ops
    def pv_ops(p):
        ops = []
        for t in range(2):
            for dt_ in range(2):
                def op(t=t, dt_=dt_):
                    T.wds(("v", p))
                    d = vO + 8 * t + 4 * dt_
                    a(f"v_mfma_f32_16x16x32_bf16 {v(d,4)}, {v(vV+(p%3)*8+4*dt_,4)}, {v(Pr(p,t),4)}, {v(d,4) if p else 0}")
                ops.append(op)
        return ops
    bg = [lambda hf=hf: touch(hf) for hf in range(2) if TA[hf] == "2"]
    for st in range(8):
        bg += wodrain_ops(st)
        if st == 3: bg += wreuse_ops("w1", 3, 0, ("wod", 2))
        if st == 5: bg += wreuse_ops("w1", 4, 1, ("wod", 4))
    bg += [xload]
    bg += wdrain_ops("w1", 0, 4)
    bg += wreuse_ops("w1", 5, 2, ("wod", 7)) + wreuse_ops("w1", 6, 3, ("wod", 7))
    bg += wdrain_ops("w1", 1, 5) + wreuse_ops("w1", 7, 4) + wdrain_ops("w1", 2, 6) + wreuse_ops("w1", 8, 5)
    bg += [bload] + wreuse_ops("w1", 9, 6)
    bg += [lambda hf=hf: touch(hf) for hf in range(2) if TA[hf] == "3"]
    stp("p2")
    nbg = -(-len(bg) // 9)
    a("s_nop 0")
    run(s2_ops(0))
    a("s_nop 7")
    for p in range(9):
        mf = (pv_ops(p - 1) if p else []) + (s2_ops(p + 1) if p < 8 else [])
        npv = 4 if p else 0
        regs = [(k, t) for k in range(2) for t in tiles(2 * p + k)]
        mybg = [bg.pop(0) for _ in range(min(nbg, len(bg)))]
        ex = [Sr(p, k, t) + r for k, t in regs for r in range(4)]
        i_m = 0
        for i, r in enumerate(ex):
            a(f"v_exp_f32 v{r}, v{r}")
            if i % 2 == 1 and mf:
                mf.pop(0)(); i_m += 1
                if i_m == npv and p + 2 < 9:
                    rdv(p + 2)
            elif mybg:
                mybg.pop(0)()
        run(mf)
        if p == 0:
            rdv(2)
            a(f"v_mov_b32 v{Pr(0,1)}, 0"); a(f"v_mov_b32 v{Pr(0,1)+1}, 0")
        if p == 8:
            a(f"v_mov_b32 v{Pr(8,0)+2}, 0"); a(f"v_mov_b32 v{Pr(8,0)+3}, 0")
        for k, t in regs:
            a(f"v_cvt_pk_bf16_f32 v{Pr(p,t)+2*k}, v{Sr(p,k,t)}, v{Sr(p,k,t)+1}")
            if mybg: mybg.pop(0)()
            a(f"v_cvt_pk_bf16_f32 v{Pr(p,t)+2*k+1}, v{Sr(p,k,t)+2}, v{Sr(p,k,t)+3}")
            if mybg: mybg.pop(0)()
        run(mybg)
    a("s_nop 1")
    run(pv_ops(8))
    a(f"s_lshl2_add_u32 s{sT0}, s{sTb}, s{sWave}")
    a(f"s_lshl4_add_u32 s{sT0}, s{sT0}, s{sH}")
    a(f"s_lshl_b32 s{sT0}, s{sT0}, 11")
    a(f"s_add_u32 s{sT0}, s{sT0}, {WS_O}")
    a("s_nop 3")
    stp("att")
    mp = f"s[{mPar}:{mPar+1}]"
    for t in range(2):
        a(f"v_cndmask_b32 v{vX+2*t}, v{vO+8*t+4}, v{vO+8*t}, {mp}")
    for sw in ("v_permlane32_swap_b32", "v_permlane16_swap_b32"):
        for t in range(2):
            a(f"v_mov_b32 v{vX+2*t+1}, v{vX+2*t}")
        a("s_nop 0")
        for t in range(2):
            a(f"{sw} v{vX+2*t}, v{vX+2*t+1}")
        a("s_nop 0")
        for t in range(2):
            a(f"v_cndmask_b32 v{vX+2*t}, v{vX+2*t+1}, v{vX+2*t}, {mp}")
    for t in range(2):
        a(f"v_rcp_f32 v{vX+2*t}, v{vX+2*t}")
    for t in range(2):
        for r in range(8):
            a(f"v_mul_f32 v{vO+8*t+r}, v{vO+8*t+r}, v{vX+2*t}")
        for r in range(4):
            a(f"v_cvt_pk_bf16_f32 v{vQ+4*t+r}, v{vO+8*t+2*r}, v{vO+8*t+2*r+1}")
        for r in range(2):
            a(f"v_cndmask_b32 v{vQ+4*t+r}, v{vQ+4*t+r}, 0, s[{mA}:{mA+1}]")
            a(f"v_cndmask_b32 v{vQ+4*t+2+r}, v{vQ+4*t+2+r}, 0, s[{mB}:{mB+1}]")
        a(f"buffer_store_dwordx4 {v(vQ+4*t,4)}, v{vSt}, {wsr}, s{sT0} offen offset:{t*256} sc1")
    stp("ost")
    def w2addr():
        a(f"v_lshrrev_b32 v{vX}, 3, v{vL}")
        a(f"v_lshrrev_b32 v{vX+1}, 2, v{vL}")
        a(f"v_and_b32 v{vX+1}, 4, v{vX+1}")
        a(f"v_and_b32 v{vX+2}, 7, v{vL}")
        a(f"v_xor_b32 v{vX+1}, v{vX+1}, v{vX+2}")
        a(f"v_lshlrev_b32 v{vX+1}, 4, v{vX+1}")
        waddr(vWb, P2, 448, sSt, 128)
    SL2 = [2, 0, 1, 3, 4, 5, 6]
    SL1 = [0, 1, 3, 4, 5, 6]
    NPRE = g_("npre", 3)
    t3 = [wreuse_ops("w1", 10, 0), wreuse_ops("w1", 11, 1), wreuse_ops("w2", 0, 2)] + [wreuse_ops("w1", 12 + k, 3 + k) for k in range(4)]
    w2addr()
    for k in range(7):
        run(wdrain_ops("w1", 3 + k, k))
        if 1 <= k <= NPRE:
            run(t3.pop(0))
    for r in range(2):
        a(f"v_permlane32_swap_b32 v{vXr+r}, v{vXr+2+r}")
        a(f"v_permlane32_swap_b32 v{vXr+4+r}, v{vXr+6+r}")
    if NPRE >= 7:
        run(t3.pop(0))
    def allmax(regs, d):
        a(f"v_max3_u32 v{d}, v{regs[0]}, v{regs[1]}, v{regs[2]}")
        rest = regs[3:]
        while len(rest) >= 2:
            a(f"v_max3_u32 v{d}, v{d}, v{rest[0]}, v{rest[1]}"); rest = rest[2:]
        if rest:
            a(f"v_max_u32 v{d}, v{d}, v{rest[0]}")
    slow = []
    def stream(tg, steps, init, addr, ld2, mf, bgf):
        a(f"s_mov_b32 s{sCnt}, 0")
        def issue_ops(st):
            l0, l1 = ld2(st, sO)
            return [lambda: (addr(st, sO, False), T.ld((tg, st), l0)), lambda: T.ld((tg, st), l1)]
        issued = 0
        for st in range(init):
            run(issue_ops(st)); issued += 1
        for st in range(steps):
            af = vAct + (st % DEPTH) * 8
            T.wvm((tg, st))
            a(f"v_max_u32 v{vX}, v{af+3}, v{af+7}")
            a(f"v_cmp_eq_u32 vcc, -1, v{vX}")
            a(f"s_cbranch_vccnz {name}_{tg}s{st}")
            a(f"{name}_{tg}r{st}:")
            slow.append((tg, st, issued, addr, ld2))
            if st == 0:
                stp(tg + "d")
            ops = []
            n = 0
            while issued <= min(st + DEPTH - 1, steps - 1) and n < RAMP:
                ops += issue_ops(issued); issued += 1; n += 1
            ops += bgf(st, issued == steps and n == 0)
            per = -(-len(ops) // 4)
            for nt in range(2):
                for mt in range(2):
                    mf(st, af, nt, mt)
                    for _ in range(per):
                        if ops: ops.pop(0)()
    if g_("ack", 1):
        T.vm0()
    a("s_barrier")
    stp("oack")
    def addr3(st, so, force):
        if force or st % 4 == 0:
            a(f"s_add_u32 s{so}, s{sOb}, {(st//4)*4096}")
            a(f"s_add_u32 s{so+1}, s{sOb}, {32768+(st//4)*4096}")
    def ld3(st, so):
        return [f"buffer_load_dwordx4 {v(vAct+st*8+nt*4,4)}, v{vLo}, {wsr}, s{so+nt} offen offset:{(st%4)*1024} sc1" for nt in range(2)]
    def mf3(st, af, nt, mt):
        d = vAcc + (nt * 2 + mt) * 16
        a(f"v_mfma_f32_32x32x16_bf16 {v(d,16)}, {acc(192+8*st+4*mt,4)}, {v(af+nt*4,4)}, {v(d,16) if st else 0}")
    def bg3(st, free):
        return t3.pop(0) if t3 and (st >= g_("s3", 4) or 8 - st <= len(t3)) else []
    T.ds0()
    stream("o", 8, 8, addr3, ld3, mf3, bg3)
    a("s_nop 7")
    a("s_nop 0")
    stp("p3")
    join = lambda n: f"{name}_j{n}"
    def branch4(tag):
        labs = [f"{name}_{tag}{w}" for w in range(4)]
        for w in range(1, 4):
            a(f"s_cmp_eq_u32 s{sWave}, {w}")
            a(f"s_cbranch_scc1 {labs[w]}")
        return labs
    def reduce4(w, part, dst, pre=None):
        for j in [(w + 1) & 3, (w + 2) & 3, (w + 3) & 3]:
            i = (w - j - 1) & 3
            for q, r in enumerate(part(j)):
                a(f"ds_write_b128 v{vLo}, {v(r,4)} offset:{(j*3+i)*4096+q*1024}")
        own = part(w); n = len(own)
        if pre: pre(own)
        a("s_waitcnt lgkmcnt(0)")
        a("s_barrier")
        for i in range(3):
            for q in range(n):
                a(f"ds_read_b128 {v(vAct+i*16+q*4,4)}, v{vLo} offset:{(w*3+i)*4096+q*1024}")
        for i in range(3):
            a(f"s_waitcnt lgkmcnt({(2-i)*n})")
            for q in range(n):
                for e in range(4):
                    d = dst[q] + e if i == 2 else own[q] + e
                    a(f"v_add_f32 v{d}, v{own[q]+e}, v{vAct+i*16+q*4+e}")
        return n
    def part3(j):
        b = vAcc + j * 16
        return [b, b + 4, b + 8] + ([b + 12] if (j & 1) == 0 else [])
    labs = branch4("e3")
    for w in range(4):
        a(f"{labs[w]}:")
        def addx(own):
            t = vAct + 48
            for q in range(len(own)):
                xr = vXr + (0, 4, 2, 6)[q]
                a(f"v_lshlrev_b32 v{t+4*q}, 16, v{xr}")
                a(f"v_and_b32 v{t+4*q+1}, 0xffff0000, v{xr}")
                a(f"v_lshlrev_b32 v{t+4*q+2}, 16, v{xr+1}")
                a(f"v_and_b32 v{t+4*q+3}, 0xffff0000, v{xr+1}")
            for q in range(len(own)):
                for e in range(4):
                    a(f"v_add_f32 v{own[q]+e}, v{own[q]+e}, v{t+4*q+e}")
        n = reduce4(w, part3, [vH + 4 * q for q in range(4)], addx)
        xs = [vH + k for k in range(4 * n)]
        s1, s2 = vX, vX + 1
        a(f"v_add_f32 v{s1}, v{xs[0]}, v{xs[1]}")
        a(f"v_mul_f32 v{s2}, v{xs[0]}, v{xs[0]}")
        a(f"v_add_f32 v{vX+2}, v{xs[2]}, v{xs[3]}")
        a(f"v_mul_f32 v{vX+3}, v{xs[1]}, v{xs[1]}")
        for k_ in range(2, len(xs)):
            if k_ >= 4:
                a(f"v_add_f32 v{s1+2*(k_&1)}, v{s1+2*(k_&1)}, v{xs[k_]}")
            a(f"v_fmac_f32 v{s2+2*(k_&1)}, v{xs[k_]}, v{xs[k_]}")
        a(f"v_add_f32 v{s1}, v{s1}, v{vX+2}")
        a(f"v_add_f32 v{s2}, v{s2}, v{vX+3}")
        a(f"v_mov_b32 v{vX+2}, v{s1}")
        a(f"v_mov_b32 v{vX+3}, v{s2}")
        a("s_nop 1")
        a(f"v_permlane32_swap_b32 v{s1}, v{vX+2}")
        a(f"v_permlane32_swap_b32 v{s2}, v{vX+3}")
        a("s_nop 0")
        a(f"v_add_f32 v{s1}, v{s1}, v{vX+2}")
        a(f"v_add_f32 v{s2}, v{s2}, v{vX+3}")
        a("s_mov_b32 exec_hi, 0")
        a(f"buffer_store_dwordx2 {v(s1,2)}, v{vSw}, {wsr}, 0 offen sc1")
        a("s_mov_b64 exec, -1")
        if n == 3:
            for k in range(12, 16):
                a(f"v_mov_b32 v{vH+k}, 0")
        a(f"s_branch {join(3)}")
    a(f"{join(3)}:")
    T.dd = len(T.ds)
    a(f"s_mov_b32 s{sCnt}, 0")
    stp("sst")
    NW2 = g_("nw2", 4)
    t4 = [wreuse_ops("w2", gi, SL2[gi]) for gi in range(1, 7)]
    for k in range(6):
        run(wdrain_ops("w1", 10 + k, SL1[k]))
        if 1 <= k < NW2:
            run(t4.pop(0))
    if NW2 >= 7:
        run(t4.pop(0))
    def actaddr(region, steps):
        a(f"s_lshl2_add_u32 s{sT0}, s{sDt}, s{sWave}")
        a(f"s_mul_i32 s{sT0}, s{sT0}, {steps*1792}")
        a(f"s_add_u32 s{sT0}, s{sT0}, {region}")
        a(f"v_add_u32 v{vA0}, s{sT0}, v{vLo}")
        a(f"v_min_u32 v{vX}, 23, v{vDl}")
        a(f"v_mad_u32_u24 v{vX}, v{vHi}, 24, v{vX}")
        a(f"v_lshl_add_u32 v{vA1}, v{vX}, 4, s{sT0}")
        a(f"v_add_u32 v{vA1}, 1024, v{vA1}")
    actaddr(WS_HN, 32)
    if g_("ack", 1):
        T.vm0()
    stp("sack")
    tmp = vAct
    lp, ok = f"{name}_ps", f"{name}_os"
    a(f"{lp}:")
    for i in range(4):
        a(f"buffer_load_dwordx4 {v(tmp+4*i,4)}, v{vSr}, {wsr}, 0 offen offset:{i*1024} sc1")
    a(f"s_add_u32 s{sCnt}, s{sCnt}, 1")
    T.vm0()
    allmax([tmp + 2 * i + 1 for i in range(8)], vX + 2)
    a(f"v_cmp_eq_u32 vcc, -1, v{vX+2}")
    a(f"s_cbranch_vccz {ok}")
    a(f"s_cmp_lt_u32 s{sCnt}, {SPIN}")
    a(f"s_cbranch_scc1 {lp}")
    a(f"{ok}:")
    stp("sok")
    for e in range(2):
        a(f"v_add_f32 v{tmp+e}, v{tmp+e}, v{tmp+2+e}")
        a(f"v_add_f32 v{tmp+4+e}, v{tmp+4+e}, v{tmp+6+e}")
        a(f"v_add_f32 v{tmp+8+e}, v{tmp+8+e}, v{tmp+10+e}")
        a(f"v_add_f32 v{tmp+12+e}, v{tmp+12+e}, v{tmp+14+e}")
    for e in range(2):
        a(f"v_add_f32 v{tmp+e}, v{tmp+e}, v{tmp+4+e}")
        a(f"v_add_f32 v{tmp+8+e}, v{tmp+8+e}, v{tmp+12+e}")
    for e in range(2):
        a(f"v_add_f32 v{tmp+e}, v{tmp+e}, v{tmp+8+e}")
    a(f"v_mov_b32 v{tmp+2}, v{tmp}")
    a(f"v_mov_b32 v{tmp+3}, v{tmp+1}")
    a(f"v_mov_b32 v{tmp+4}, {hexf(1.0/448)}")
    a(f"v_mov_b32 v{tmp+5}, {hexf(1e-5)}")
    a(f"v_permlane32_swap_b32 v{tmp}, v{tmp+2}")
    a(f"v_permlane32_swap_b32 v{tmp+1}, v{tmp+3}")
    a("s_nop 0")
    a(f"v_add_f32 v{tmp}, v{tmp}, v{tmp+2}")
    a(f"v_add_f32 v{tmp+1}, v{tmp+1}, v{tmp+3}")
    a(f"v_mul_f32 v{tmp}, v{tmp}, v{tmp+4}")
    a(f"v_mul_f32 v{tmp+2}, v{tmp}, v{tmp}")
    a(f"v_fma_f32 v{tmp+1}, v{tmp+1}, v{tmp+4}, -v{tmp+2}")
    a(f"v_max_f32 v{tmp+1}, 0, v{tmp+1}")
    a(f"v_add_f32 v{tmp+2}, v{tmp+1}, v{tmp+5}")
    a(f"v_rsq_f32 v{tmp+2}, v{tmp+2}")
    a(f"s_lshl_b32 s{sT0}, s{sDt}, 5")
    a(f"v_mul_f32 v{tmp+3}, v{tmp+2}, v{tmp+2}")
    a(f"v_fma_f32 v{tmp+3}, v{tmp+3}, v{tmp+1}, v{tmp+5}")
    a(f"v_rsq_f32 v{tmp+3}, v{tmp+3}")
    a(f"s_add_u32 s{sT0}, s{sT0}, s{sSt}")
    a(f"v_mul_f32 v{tmp+2}, v{tmp+2}, v{tmp+3}")
    a(f"v_mul_f32 v{tmp}, v{tmp}, v{tmp+2}")
    hn = vAct + 32
    for k in range(16):
        a(f"v_fma_f32 v{hn+k}, v{vH+k}, v{tmp+2}, -v{tmp}")
    pk2 = vWf + 8
    for k in range(8):
        a(f"v_cvt_pk_bf16_f32 v{pk2+k}, v{hn+2*k}, v{hn+2*k+1}")
    tr = vAct + 16
    a(f"s_lshr_b32 s{sT1}, s{sWave}, 1")
    a(f"s_lshl1_add_u32 s{sT0}, s{sT0}, s{sT1}")
    a(f"v_mfma_f32_32x32x16_bf16 {v(tr,16)}, {v(pk2,4)}, {v(vId,4)}, 0")
    a(f"v_mfma_f32_32x32x16_bf16 {v(tr,16)}, {v(pk2+4,4)}, {v(vId+4,4)}, {v(tr,16)}")
    a(f"s_mul_i32 s{sT0}, s{sT0}, 3584")
    a(f"s_add_u32 s{sT0}, s{sT0}, {WS_HN}")
    a(f"s_bitcmp1_b32 s{sWave}, 0")
    a(f"s_cselect_b32 s{sT1}, 0x00ffffff, -1")
    a(f"s_cselect_b64 vcc, -1, 0")
    a(f"v_add_u32 v{vX}, 1024, v{vN1}")
    a("s_nop 0")
    a(f"v_cndmask_b32 v{vX}, v{vLo}, v{vX}, vcc")
    a("s_nop 5")
    for k in range(8):
        a(f"v_cvt_pk_bf16_f32 v{tmp+k}, v{tr+2*k}, v{tr+2*k+1}")
    a(f"s_mov_b32 exec_lo, s{sT1}")
    a(f"s_mov_b32 exec_hi, s{sT1}")
    a(f"buffer_store_dwordx4 {v(tmp,4)}, v{vX}, {wsr}, s{sT0} offen sc1")
    a(f"buffer_store_dwordx4 {v(tmp+4,4)}, v{vX}, {wsr}, s{sT0} offen offset:1792 sc1")
    a("s_mov_b64 exec, -1")
    stp("hn")
    T.ds0()
    for ops in t4:
        run(ops)
    a("s_barrier")
    a(f"s_cmp_eq_u32 s{sIdle}, 7")
    a(f"s_cbranch_scc1 {name}_idle")
    idle_st = st_n[0]
    def gemm(which, steps, bgf):
        tg = f"g{which}"
        if g_("ack", 1):
            T.vm0()
        stp(tg)
        def addr(st, so, force):
            if force or st % 2 == 0:
                rotoff(so, f"w{which}", st >> 1, 3584)
        def ld2(st, so):
            return [f"buffer_load_dwordx4 {v(vAct+(st%DEPTH)*8+4*k,4)}, v{(vA0,vA1)[k]}, {wsr}, s{so} offen offset:{(st&1)*1792} sc1" for k in range(2)]
        def mf(st, af, nt, mt):
            d = vAcc + (mt * 2 + nt) * 16
            c = v(d, 16) if st else "0"
            wf = acc(8 * st + 4 * mt, 4)
            if which == 1:
                a(f"v_mfma_f32_32x32x16_bf16 {v(d,16)}, {wf}, {v(af+nt*4,4)}, {c}")
            else:
                a(f"v_mfma_f32_32x32x16_bf16 {v(d,16)}, {v(af+nt*4,4)}, {wf}, {c}")
        stream(tg, steps, INIT, addr, ld2, mf, bgf)
        stp(tg + "e")
    late = []
    for gi in range(7, 14):
        late.append(wreuse_ops("w2", gi, SL2[gi - 7]))
    drs = {}
    D0 = g_("d0", 12)
    def bg4(st, free):
        ops = []
        k = st - D0
        if 0 <= k < 14:
            if k % 2 == 0:
                drs[0] = wdrain_ops("w2", k // 2, SL2[k // 2])
            ops += drs[0][(k % 2) * 4:(k % 2) * 4 + 4]
        if free and late and st >= D0 + 2 * (7 - len(late)) + 2:
            ops += late.pop(0)
        return ops
    gemm(1, 32, bg4)
    while late:
        run(late.pop(0))
    def part4(j):
        mt, t = j >> 1, j & 1
        return [vAcc + (mt * 2) * 16 + 8 * t, vAcc + (mt * 2) * 16 + 8 * t + 4,
                vAcc + (mt * 2 + 1) * 16 + 8 * t, vAcc + (mt * 2 + 1) * 16 + 8 * t + 4]
    labs = branch4("e4")
    for w in range(4):
        a(f"{labs[w]}:")
        t = vAct + 48
        def addb(own):
            for e in range(4):
                a(f"v_lshlrev_b32 v{t+2*e}, 16, v{vB1+e}")
                a(f"v_and_b32 v{t+2*e+1}, 0xffff0000, v{vB1+e}")
            for i_, x in enumerate([own[q] + e for q in range(4) for e in range(4)]):
                a(f"v_add_f32 v{x}, v{x}, v{t+(i_&7)}")
        a("s_nop 7")
        reduce4(w, part4, [vAct + 64 + 4 * q for q in range(4)], addb)
        if w < 3:
            a(f"s_branch {join(4)}")
    a(f"{join(4)}:")
    T.dd = len(T.ds)
    xs = [vAct + 64 + k for k in range(16)]
    z = vAct
    a(f"v_mov_b32 v{vX}, s{sC1}")
    for i_, x in enumerate(xs):
        a(f"v_mul_f32 v{z+i_}, v{x}, v{x}")
    for i_, x in enumerate(xs):
        a(f"v_fma_f32 v{z+i_}, v{z+i_}, s{sC2}, v{vX}")
    for i_, x in enumerate(xs):
        a(f"v_mul_f32 v{z+i_}, v{z+i_}, v{x}")
    for i_, x in enumerate(xs):
        a(f"v_exp_f32 v{z+i_}, v{z+i_}")
    for i_, x in enumerate(xs):
        a(f"v_add_f32 v{z+i_}, 1.0, v{z+i_}")
    for i_, x in enumerate(xs):
        a(f"v_rcp_f32 v{z+i_}, v{z+i_}")
    a(f"s_mul_i32 s{sT0}, s{sDt}, 28")
    a(f"s_add_u32 s{sT0}, s{sT0}, s{sFt}")
    a(f"s_lshl2_add_u32 s{sT0}, s{sT0}, s{sWave}")
    a(f"s_mul_i32 s{sT0}, s{sT0}, 1792")
    a(f"s_add_u32 s{sT0}, s{sT0}, {WS_UF}")
    for i_, x in enumerate(xs):
        a(f"v_mul_f32 v{x}, v{x}, v{z+i_}")
    pk = vWf
    for i_ in range(8):
        a(f"v_cvt_pk_bf16_f32 v{pk+i_}, v{xs[2*i_]}, v{xs[2*i_+1]}")
    a(f"buffer_store_dwordx4 {v(pk,4)}, v{vLo}, {wsr}, s{sT0} offen sc1")
    a("s_mov_b32 exec_lo, 0x00ffffff")
    a("s_mov_b32 exec_hi, 0x00ffffff")
    a(f"buffer_store_dwordx4 {v(pk+4,4)}, v{vN1}, {wsr}, s{sT0} offen offset:1024 sc1")
    a("s_mov_b64 exec, -1")
    stp("ust")
    idle_e = st_n[0]
    a(f"{join(5)}:")
    actaddr(WS_UF, 28)
    a("s_barrier")
    drs.clear()
    def bg5(st, free):
        if st < 14:
            if st % 2 == 0:
                drs[0] = wdrain_ops("w2", 7 + st // 2, SL2[st // 2])
            return drs[0][(st % 2) * 4:(st % 2) * 4 + 4]
        if st == 13 + 1:
            pass
        return []
    T.vm0()
    class G5:
        pass
    _bg5 = bg5
    def bg5w(st, free):
        ops = _bg5(st, free)
        if st == 13:
            ops = ops + [T.ds0]
        return ops
    gemm(2, 28, bg5w)
    def part5(j):
        b = vAcc + j * 16
        return [b, b + 4, b + 8] + ([b + 12] if (j & 1) == 0 else [])
    labs = branch4("e5")
    for w in range(4):
        a(f"{labs[w]}:")
        def addh(own):
            a(f"v_lshlrev_b32 v{vB2}, 16, v{vB2}")
            for q in range(len(own)):
                for e in range(4):
                    a(f"v_add_f32 v{vH+4*q+e}, v{vH+4*q+e}, v{vB2}")
            for q in range(len(own)):
                for e in range(4):
                    a(f"v_add_f32 v{own[q]+e}, v{own[q]+e}, v{vH+4*q+e}")
        a("s_nop 7")
        n = reduce4(w, part5, [vH + 4 * q for q in range(4)], addh)
        for q in range(n):
            a(f"v_cvt_pk_bf16_f32 v{pk+2*q}, v{vH+4*q}, v{vH+4*q+1}")
            a(f"v_cvt_pk_bf16_f32 v{pk+2*q+1}, v{vH+4*q+2}, v{vH+4*q+3}")
        a("s_nop 1")
        for p in range(2):
            a(f"v_permlane32_swap_b32 v{pk+4*p}, v{pk+4*p+2}")
            a(f"v_permlane32_swap_b32 v{pk+4*p+1}, v{pk+4*p+3}")
        a(f"buffer_store_dwordx4 {v(pk,4)}, v{vOs}, s[{rOut}:{rOut+3}], 0 offen")
        if n == 3:
            a("s_mov_b32 exec_hi, 0")
        a(f"buffer_store_dwordx4 {v(pk+4,4)}, v{vOs}, s[{rOut}:{rOut+3}], 0 offen offset:32")
        if diag:
            a("s_mov_b64 exec, -1")
            a("s_waitcnt vmcnt(0)")
            stamp(a, st_n[0], sTS, diag, kidx)
            stamp_flush(a, st_n[0] + 1, sTS, sWS, sWave, kidx, vX, diag)
        a("s_endpgm")
    a(f"{name}_idle:")
    T2 = T
    T.vm = []; T.vd = 0; T.ds = []; T.dd = 0
    a("s_waitcnt vmcnt(0)")
    T.vm += [("w2", gi) for gi in range(7)]
    T.vd = 7
    IDT = g_("idt", 1)
    if IDT:
        a(f"s_and_b32 s{sT0}, s{sDt}, 3")
        a(f"s_mul_i32 s{sT0}, s{sT0}, 448")
        a(f"s_mul_i32 s{sT1}, s{sWave}, {28*IDT}")
        a(f"s_add_u32 s{sT0}, s{sT0}, s{sT1}")
        if IDT == 1:
            a(f"s_lshr_b32 s{sT1}, s{sDt}, 2")
            a(f"s_mul_i32 s{sT1}, s{sT1}, 112")
            a(f"s_add_u32 s{sT0}, s{sT0}, s{sT1}")
        a(f"s_add_u32 s{sT0}, s{sT0}, 224")
        a(f"s_lshl_b32 s{sT0}, s{sT0}, 2")
        a(f"s_lshr_b32 s{sT1}, s{sSt}, 3")
        a(f"s_add_u32 s{sT0}, s{sT0}, s{sT1}")
        a(f"s_lshl_b32 s{sT0}, s{sT0}, 10")
        a(f"v_lshrrev_b32 v{vX}, 3, v{vL}")
        a(f"v_lshlrev_b32 v{vX}, 12, v{vX}")
        a(f"v_and_b32 v{vX+1}, 7, v{vL}")
        a(f"v_lshl_add_u32 v{vX}, v{vX+1}, 7, v{vX}")
        for k, r0 in enumerate((0, 8, 16, 20) if IDT == 1 else range(0, 56, 8)):
            a(f"s_add_u32 s{sT1}, s{sT0}, {r0*P2}")
            T.ld("pf", f"buffer_load_dword v{vAct+k}, v{vX}, s[{rW2}:{rW2+3}], s{sT1} offen")
    for gi in range(7):
        run(wdrain_ops("w2", gi, SL2[gi]))
    for gi in range(7):
        run(wreuse_ops("w2", 7 + gi, SL2[gi]))
    if diag:
        for k in range(idle_st, idle_e):
            stamp(a, k, sTS, diag, kidx)
    a(f"s_branch {join(5)}")
    for tg, st, issued, addr, ld2 in slow:
        af = vAct + (st % DEPTH) * 8
        a(f"{name}_{tg}s{st}:")
        for s2 in range(st, min(issued, st + g_("nre", 12))):
            addr(s2, sT0, s2 == st)
            for l in ld2(s2, sT0):
                a(l)
        a(f"s_add_u32 s{sCnt}, s{sCnt}, 1")
        a(f"s_cmp_ge_u32 s{sCnt}, {SPIN}")
        a("s_waitcnt vmcnt(0)")
        a(f"s_cbranch_scc1 {name}_{tg}r{st}")
        a(f"v_max_u32 v{vX}, v{af+3}, v{af+7}")
        a(f"v_cmp_eq_u32 vcc, -1, v{vX}")
        a(f"s_cbranch_vccnz {name}_{tg}s{st}")
        a(f"s_branch {name}_{tg}r{st}")
    a(f"{done}:")
    a("s_endpgm")
    print("fused: vgprs", R.hi, "stamps", list(enumerate(used)))
    return dict(name=name, grid=256, block=256, lds=LDS, vgprs=256, agprs=256)
```

```python
import math
from asmlib import *
from layout import *

MARK = [None]
def mark(a, kidx):
    if MARK[0] is None:
        return
    lab = a.label("mk")
    a("s_cmp_lg_u32 s2, 0")
    a(f"s_cbranch_scc1 {lab}")
    a("s_memrealtime s[90:91]")
    a(f"s_load_dwordx2 s[92:93], s[0:1], {KA_WS}")
    a("s_waitcnt lgkmcnt(0)")
    srd(a, 96, 92, 4096, WS_TS)
    a("v_mov_b32 v1, s90")
    a(f"v_mov_b32 v2, {4*kidx}")
    a("buffer_store_dword v1, v2, s[96:99], 0 offen")
    a("s_waitcnt vmcnt(0)")
    a(f"{lab}:")

def spin_kernel(a, name, i, j, mult):
    kernel_header(a, name)
    a("s_cmp_lg_u32 s2, 0")
    a(f"s_cbranch_scc1 {name}_done")
    a("s_memrealtime s[10:11]")
    a(f"s_load_dwordx2 s[4:5], s[0:1], {KA_WS}")
    a("s_waitcnt lgkmcnt(0)")
    srd(a, 12, 4, 4096, WS_TS)
    a("v_lshlrev_b32 v1, 2, v0")
    a("buffer_load_dword v2, v1, s[12:15], 0 offen sc1")
    a("s_waitcnt vmcnt(0)")
    a(f"v_readlane_b32 s6, v2, {i}")
    if j >= 0:
        a(f"v_readlane_b32 s7, v2, {j}")
    else:
        a("s_mov_b32 s7, s10")
    a("s_nop 3")
    a("s_sub_u32 s6, s7, s6")
    a("s_min_u32 s6, s6, 10000")
    a(f"s_mul_i32 s6, s6, {mult}")
    a(f"{name}_lp:")
    a("s_memrealtime s[8:9]")
    a("s_waitcnt lgkmcnt(0)")
    a("s_sub_u32 s8, s8, s10")
    a("s_cmp_lt_u32 s8, s6")
    a(f"s_cbranch_scc1 {name}_lp")
    a(f"{name}_done:")
    a("s_endpgm")
    return dict(name=name, grid=1, block=64, lds=0, vgprs=8)

def stamp(a, idx, sTS, diag, kidx=0):
    if idx == 0:
        mark(a, kidx)
    if diag:
        a(f"s_memrealtime s[{sTS+2*idx}:{sTS+2*idx+1}]")

def stamp_flush(a, n, sTS, sWS, sWave, kidx, vtmp, diag, nwaves=4):
    if not diag:
        return
    a("s_waitcnt lgkmcnt(0)")
    srd(a, 96, sWS, 1 << 20, WS_TS + kidx * 65536 * 2)
    a(f"s_mul_i32 s100, s2, {nwaves}")
    a(f"s_add_u32 s100, s100, s{sWave}")
    a(f"s_lshl_b32 s100, s100, 6")
    for i in range(n):
        a(f"v_mov_b32 v{vtmp}, s{sTS+2*i}")
        a(f"v_mov_b32 v{vtmp+1}, 0")
        a(f"buffer_store_dword v{vtmp}, v{vtmp+1}, s[96:99], s100 offen offset:{4*i}")
    a("s_waitcnt vmcnt(0)")

def pf_setup(a, which, sP):
    a(f"s_load_dwordx2 s[{sP}:{sP+1}], s[0:1], {dict(w1=KA_W1, w2=KA_W2, w2a=KA_W2, wo=KA_WO)[which]}")

def pf_issue(a, which, sP, rP, sT, sWave, vL, vT, vD, nwaves=4, half=False):
    if which == "wo":
        srd(a, rP, sP, D * D * 2)
        a(f"s_lshr_b32 s{sT}, s2, 3")
        a(f"s_mul_i32 s{sT}, s{sT}, {nwaves}")
        a(f"s_add_u32 s{sT}, s{sT}, s{sWave}")
        a(f"s_lshl_b32 s{sT}, s{sT}, {12 if nwaves == 4 else 11}")
        a(f"v_lshlrev_b32 v{vT}, {6 if nwaves == 4 else 5}, v{vL}")
        a(f"buffer_load_dword v{vD}, v{vT}, s[{rP}:{rP+3}], s{sT} offen")
        return 1
    if which == "w2a":
        srd(a, rP, sP, S * F * 2)
        a(f"s_lshr_b32 s{sT}, s2, 6")
        a(f"s_mul_i32 s{sT}, s{sT}, 448")
        a(f"s_bfe_u32 s{sT+1}, s2, 0x30003")
        a(f"s_lshl2_add_u32 s{sT+1}, s{sT+1}, s{sWave}")
        a(f"s_mul_i32 s{sT+1}, s{sT+1}, 7")
        a(f"s_add_u32 s{sT}, s{sT}, s{sT+1}")
        a(f"s_lshl_b32 s{sT}, s{sT}, 2")
        a(f"s_bfe_u32 s{sT+1}, s2, 0x20001")
        a(f"s_add_u32 s{sT}, s{sT}, s{sT+1}")
        a(f"s_lshl_b32 s{sT}, s{sT}, 10")
        a(f"v_lshrrev_b32 v{vT}, 3, v{vL}")
        a(f"v_min_u32 v{vT}, 6, v{vT}")
        a(f"v_lshlrev_b32 v{vT}, 12, v{vT}")
        a(f"v_and_b32 v{vT+1}, 7, v{vL}")
        a(f"v_lshl_add_u32 v{vT}, v{vT+1}, 7, v{vT}")
        a(f"buffer_load_dword v{vD}, v{vT}, s[{rP}:{rP+3}], s{sT} offen")
        return 1
    pitch, nl, rows = (F * 2, 7, 64) if which == "w1" else (S * 2, 8, 56)
    srd(a, rP, sP, S * F * 2)
    per = 8 // nwaves
    a(f"s_lshr_b32 s{sT}, s2, 3")
    a(f"s_mul_i32 s{sT}, s{sT}, {rows*pitch}")
    a(f"s_mul_i32 s{sT+1}, s{sWave}, {per*8*pitch}")
    a(f"s_add_u32 s{sT}, s{sT}, s{sT+1}")
    a(f"s_bfe_u32 s{sT+1}, s2, 0x20001")
    a(f"s_mul_i32 s{sT+1}, s{sT+1}, {nl*128}")
    a(f"s_add_u32 s{sT}, s{sT}, s{sT+1}")
    a(f"v_lshrrev_b32 v{vT}, 3, v{vL}")
    a(f"v_mul_u32_u24 v{vT}, {pitch}, v{vT}")
    a(f"v_and_b32 v{vT+1}, 7, v{vL}")
    if nl == 7:
        a(f"v_min_u32 v{vT+1}, 6, v{vT+1}")
    a(f"v_lshl_add_u32 v{vT}, v{vT+1}, 7, v{vT}")
    if half:
        a(f"s_and_b32 s{sT+1}, s2, 1")
        a(f"s_mul_i32 s{sT+1}, s{sT+1}, {8*pitch}")
        a(f"s_add_u32 s{sT}, s{sT}, s{sT+1}")
        per = 1
    for k in range(per):
        if k:
            a(f"s_add_u32 s{sT}, s{sT}, {8*pitch}")
        a(f"buffer_load_dword v{vD+k}, v{vT}, s[{rP}:{rP+3}], s{sT} offen")
    return per

def gemm_kernel(a, name, which, DEPTH=12, diag=False, kperm_c=True, kidx=0, opts={}):
    if which == 1:
        NWG, PITCH, STEPS, KA_W, KA_B = 224, F * 2, 32, KA_W1, KA_B1
        WBYTES, BBYTES, WS_ACT = S * F * 2, F * 2, WS_HN
    else:
        NWG, PITCH, STEPS, KA_W, KA_B = 256, S * 2, 28, KA_W2, KA_B2
        WBYTES, BBYTES, WS_ACT = F * S * 2, S * 2, WS_UF
    TSTEPS = STEPS * 4
    RING = DEPTH * 2048
    RED = 4 * RING
    LDS = RED + 12 * 4096
    assert LDS <= 163840 and (DEPTH - 1) * 4 + 8 <= 63
    sW, sWS, sB, sO = 4, 6, 8, 10
    rW, rA, rB, rO, rH = 12, 16, 20, 24, 28
    sWave, sDt, sT, sLds, sOW, sOA, sTmp = 32, 33, 34, 35, 36, 37, 38
    sC1, sC2 = 40, 41
    sEx = 42
    sTS = 60
    R = Regs(1)
    vLane = R.get(); vHi = R.get(); vDl = R.get()
    vW0 = R.get(); vW1 = R.get(); vA0 = R.get(); vA1 = R.get()
    vT0 = R.get(); vT1 = R.get()
    vRed = R.get(); vX = R.get(4)
    vBias = R.get(4, 2)
    vH = R.get(8, 2)
    vAcc = R.get(64, 4)
    vWf = R.get(16, 4)
    vAct = R.get(DEPTH * 8, 4)
    done = f"{name}_done"
    kernel_header(a, name)
    a(f"s_cmp_ge_u32 s2, {NWG}")
    a(f"s_cbranch_scc1 {done}")
    stamp(a, 0, sTS, diag, kidx)
    a(f"s_load_dwordx2 s[{sW}:{sW+1}], s[0:1], {KA_W}")
    a(f"s_load_dwordx2 s[{sWS}:{sWS+1}], s[0:1], {KA_WS}")
    a(f"s_load_dwordx2 s[{sB}:{sB+1}], s[0:1], {KA_B}")
    if which == 2:
        a(f"s_load_dwordx2 s[{sO}:{sO+1}], s[0:1], {KA_OUT}")
    a(f"v_lshrrev_b32 v{vX}, 6, v0")
    a(f"v_and_b32 v{vLane}, 63, v0")
    a(f"v_readfirstlane_b32 s{sWave}, v{vX}")
    a(f"v_lshrrev_b32 v{vHi}, 5, v{vLane}")
    a(f"v_and_b32 v{vDl}, 31, v{vLane}")
    a(f"s_and_b32 s{sTmp}, s2, 7")
    a(f"s_lshr_b32 s{sTmp+1}, s2, 3")
    a(f"s_and_b32 s{sDt}, s{sTmp}, 1")
    a(f"s_lshl_b32 s{sDt}, s{sDt}, 2")
    a(f"s_and_b32 s{sT}, s{sTmp+1}, 3")
    a(f"s_add_u32 s{sDt}, s{sDt}, s{sT}")
    a(f"s_lshr_b32 s{sTmp}, s{sTmp}, 1")
    a(f"s_mul_i32 s{sTmp}, s{sTmp}, {7 if which == 1 else 8}")
    a(f"s_lshr_b32 s{sT}, s{sTmp+1}, 2")
    a(f"s_add_u32 s{sT}, s{sT}, s{sTmp}")
    a(f"v_lshrrev_b32 v{vX}, 3, v{vLane}")
    a(f"v_lshrrev_b32 v{vX+1}, 2, v{vLane}")
    a(f"v_and_b32 v{vX+1}, 4, v{vX+1}")
    a(f"v_and_b32 v{vX+2}, 7, v{vLane}")
    a(f"v_xor_b32 v{vX+1}, v{vX+1}, v{vX+2}")
    a(f"v_lshlrev_b32 v{vX+1}, 4, v{vX+1}")
    a(f"v_mul_u32_u24 v{vX}, {PITCH}, v{vX}")
    a(f"s_mul_i32 s{sTmp}, s{sWave}, {STEPS*16*PITCH}")
    a(f"s_lshl_b32 s{sTmp+1}, s{sT}, 7")
    a(f"s_add_u32 s{sTmp}, s{sTmp}, s{sTmp+1}")
    a(f"v_add3_u32 v{vW0}, v{vX}, v{vX+1}, s{sTmp}")
    a(f"v_add_u32 v{vW1}, {8*PITCH-1024}, v{vW0}")
    a(f"s_mul_i32 s{sTmp}, s{sDt}, {TSTEPS}")
    a(f"s_mul_i32 s{sTmp+1}, s{sWave}, {STEPS}")
    a(f"s_add_u32 s{sTmp}, s{sTmp}, s{sTmp+1}")
    a(f"s_mul_i32 s{sTmp}, s{sTmp}, 1792")
    a(f"v_lshl_add_u32 v{vA0}, v{vLane}, 4, s{sTmp}")
    a(f"v_min_u32 v{vX}, 23, v{vDl}")
    a(f"v_mad_u32_u24 v{vX}, v{vHi}, 24, v{vX}")
    a(f"v_lshl_add_u32 v{vA1}, v{vX}, 4, s{sTmp}")
    a(f"v_add_u32 v{vA1}, 1024, v{vA1}")
    a(f"s_mul_i32 s{sLds}, s{sWave}, {RING}")
    a("s_waitcnt lgkmcnt(0)")
    srd(a, rW, sW, WBYTES)
    srd(a, rA, sWS, 8 * TSTEPS * 1792, WS_ACT)
    srd(a, rB, sB, BBYTES)
    if which == 1:
        srd(a, rO, sWS, 8 * 112 * 1792, WS_UF)
    else:
        srd(a, rO, sO, S * D * 2)
        srd(a, rH, sWS, S * D * 2, WS_H)

    def issue(step):
        slot = step % DEPTH
        a(f"s_add_u32 m0, s{sLds}, {slot*2048}")
        a(f"s_mov_b32 s{sOW}, {step*16*PITCH}")
        a(f"s_mov_b32 s{sOA}, {step*1792}")
        a(f"buffer_load_dwordx4 v{vW0}, s[{rW}:{rW+3}], s{sOW} offen lds")
        a(f"buffer_load_dwordx4 v{vW1}, s[{rW}:{rW+3}], s{sOW} offen offset:1024 lds")
        a(f"buffer_load_dwordx4 {v(vAct+slot*8,4)}, v{vA0}, s[{rA}:{rA+3}], s{sOA} offen")
        a(f"buffer_load_dwordx4 {v(vAct+slot*8+4,4)}, v{vA1}, s[{rA}:{rA+3}], s{sOA} offen")

    for st in range(min(2, DEPTH)):
        issue(st)
    nside = 0
    if which == 1:
        a(f"s_lshl_b32 s{sTmp}, s{sT}, 2")
        a(f"s_add_u32 s{sTmp}, s{sTmp}, s{sWave}")
        a(f"s_lshl_b32 s{sTmp}, s{sTmp}, 5")
        a(f"v_lshlrev_b32 v{vX}, 3, v{vHi}")
        a(f"buffer_load_dwordx2 {v(vBias,2)}, v{vX}, s[{rB}:{rB+3}], s{sTmp} offen")
        a(f"buffer_load_dwordx2 {v(vBias+2,2)}, v{vX}, s[{rB}:{rB+3}], s{sTmp} offen offset:16")
        nside = 2
    else:
        a(f"s_lshr_b32 s{sTmp}, s{sWave}, 1")
        a(f"s_lshl_b32 s{sTmp+1}, s{sT}, 1")
        a(f"s_add_u32 s{sTmp}, s{sTmp}, s{sTmp+1}")
        a(f"s_lshl_b32 s{sTmp}, s{sTmp}, 5")
        a(f"v_add_u32 v{vX}, s{sTmp}, v{vDl}")
        a(f"v_lshlrev_b32 v{vX+1}, 1, v{vX}")
        a(f"buffer_load_ushort v{vBias}, v{vX+1}, s[{rB}:{rB+3}], 0 offen")
        a(f"s_and_b32 s{sTmp}, s{sWave}, 1")
        a(f"s_lshl_b32 s{sTmp}, s{sTmp}, 6")
        a(f"s_mul_i32 s{sTmp+1}, s{sDt}, 112")
        a(f"s_add_u32 s{sTmp}, s{sTmp}, s{sTmp+1}")
        a(f"v_mul_u32_u24 v{vX}, 896, v{vX}")
        a(f"v_add_u32 v{vX}, s{sTmp}, v{vX}")
        a(f"v_lshl_add_u32 v{vX+1}, v{vHi}, 3, v{vX}")
        a(f"v_lshl_add_u32 v{vBias+1}, v{vHi}, 4, v{vX}")
        for j in range(4):
            a(f"buffer_load_dwordx2 {v(vH+2*j,2)}, v{vX+1}, s[{rH}:{rH+3}], 0 offen offset:{16*j}")
        nside = 5
    INIT = int(opts.get(f"init{which+3}", DEPTH))
    RAMP = int(opts.get(f"ramp{which+3}", 2))
    for st in range(2, INIT):
        issue(st)
    rowsel = 4 if kperm_c else 8
    joff = (8 if kperm_c else 4) * 128
    a(f"v_bfe_u32 v{vX}, v{vLane}, 2, 2")
    a(f"v_mad_u32_u24 v{vX+1}, v{vHi}, {rowsel}, v{vX}")
    a(f"v_lshlrev_b32 v{vX+1}, 7, v{vX+1}")
    a(f"v_bfe_u32 v{vX+2}, v{vLane}, 4, 1")
    a(f"v_lshlrev_b32 v{vX+2}, 5, v{vX+2}")
    a(f"v_and_b32 v{vX+3}, 3, v{vLane}")
    a(f"v_lshl_add_u32 v{vX+2}, v{vX+3}, 3, v{vX+2}")
    a(f"v_bfe_u32 v{vX+3}, v{vLane}, 3, 1")
    a(f"v_lshl_add_u32 v{vX+2}, v{vX+3}, 6, v{vX+2}")
    a(f"v_add3_u32 v{vT0}, v{vX+1}, v{vX+2}, s{sLds}")
    a(f"v_xor_b32 v{vT1}, 64, v{vT0}")
    a(f"v_lshlrev_b32 v{vRed}, 4, v{vLane}")
    a(f"v_add_u32 v{vRed}, {RED}, v{vRed}")
    if which == 1:
        c1 = -2.0 * math.sqrt(2.0 / math.pi) * math.log2(math.e)
        a(f"s_mov_b32 s{sC1}, {hexf(c1)}")
        a(f"s_mov_b32 s{sC2}, {hexf(c1*0.044715)}")

    def trreads(step):
        slot = step % DEPTH
        b = vWf + (step & 1) * 8
        for mt, va in ((0, vT0), (1, vT1)):
            for j in range(2):
                a(f"ds_read_b64_tr_b16 {v(b+mt*4+2*j,2)}, v{va} offset:{slot*2048+j*joff}")

    def outstanding_after(step, issued_upto):
        n = (issued_upto - step) * 4
        if step < 2:
            n += nside if issued_upto >= 1 else 0
        return n

    stamp(a, 1, sTS, diag)
    a(f"s_waitcnt vmcnt({outstanding_after(0, INIT-1)})")
    issued = INIT - 1
    trreads(0)
    stamp(a, 2, sTS, diag)
    for st in range(STEPS):
        if st + 1 < STEPS:
            a(f"s_waitcnt vmcnt({outstanding_after(st+1, issued)})")
            trreads(st + 1)
            a("s_waitcnt lgkmcnt(4)")
        else:
            a("s_waitcnt lgkmcnt(0)")
        wf = vWf + (st & 1) * 8
        af = vAct + (st % DEPTH) * 8
        todo = list(range(issued + 1, min(issued + RAMP, st + DEPTH - 1, STEPS - 1) + 1))
        for nt in range(2):
            for mt in range(2):
                d = vAcc + (mt * 2 + nt) * 16
                c = "0" if st == 0 else v(d, 16)
                if todo and (nt, mt) in ((0, 1), (1, 1)):
                    issued = todo.pop(0)
                    issue(issued)
                if which == 1:
                    a(f"v_mfma_f32_32x32x16_bf16 {v(d,16)}, {v(wf+mt*4,4)}, {v(af+nt*4,4)}, {c}")
                else:
                    a(f"v_mfma_f32_32x32x16_bf16 {v(d,16)}, {v(af+nt*4,4)}, {v(wf+mt*4,4)}, {c}")
        while todo:
            issued = todo.pop(0)
            issue(issued)
    stamp(a, 3, sTS, diag)
    def part_regs(j):
        if which == 1:
            mt, t = j >> 1, j & 1
            return [vAcc + (mt * 2 + 0) * 16 + 8 * t, vAcc + (mt * 2 + 0) * 16 + 8 * t + 4,
                    vAcc + (mt * 2 + 1) * 16 + 8 * t, vAcc + (mt * 2 + 1) * 16 + 8 * t + 4]
        mt, nt = j >> 1, j & 1
        b = vAcc + (mt * 2 + nt) * 16
        return [b, b + 4, b + 8] + ([b + 12] if nt == 0 else [])
    labs = [f"{name}_ep{w}" for w in range(4)]
    for w in range(1, 4):
        a(f"s_cmp_eq_u32 s{sWave}, {w}")
        a(f"s_cbranch_scc1 {labs[w]}")
    for w in range(4):
        a(f"{labs[w]}:")
        a("s_nop 7")
        a("s_nop 3")
        for j in [(w + 1) & 3, (w + 2) & 3, (w + 3) & 3]:
            i = (w - j - 1) & 3
            for q, r in enumerate(part_regs(j)):
                a(f"ds_write_b128 v{vRed}, {v(r,4)} offset:{(j*3+i)*4096+q*1024}")
        a("s_waitcnt lgkmcnt(0)")
        a("s_barrier")
        own = part_regs(w)
        tmp = vAct
        for i in range(3):
            for q in range(len(own)):
                a(f"ds_read_b128 {v(tmp+i*16+q*4,4)}, v{vRed} offset:{(w*3+i)*4096+q*1024}")
        n = len(own)
        for i in range(3):
            a(f"s_waitcnt lgkmcnt({(2-i)*n})")
            for q in range(n):
                for e in range(4):
                    a(f"v_add_f32 v{own[q]+e}, v{own[q]+e}, v{tmp+i*16+q*4+e}")
        t = vAct + 48
        if which == 1:
            for e in range(4):
                a(f"v_lshlrev_b32 v{t+2*e}, 16, v{vBias+e}")
                a(f"v_and_b32 v{t+2*e+1}, 0xffff0000, v{vBias+e}")
            xs = [own[q] + e for q in range(4) for e in range(4)]
            z = t + 8
            a(f"v_mov_b32 v{t+24}, s{sC1}")
            for i_, x in enumerate(xs):
                a(f"v_add_f32 v{x}, v{x}, v{t+(i_&7)}")
            for i_, x in enumerate(xs):
                a(f"v_mul_f32 v{z+i_}, v{x}, v{x}")
            for i_, x in enumerate(xs):
                a(f"v_fma_f32 v{z+i_}, v{z+i_}, s{sC2}, v{t+24}")
            for i_, x in enumerate(xs):
                a(f"v_mul_f32 v{z+i_}, v{z+i_}, v{x}")
            for i_, x in enumerate(xs):
                a(f"v_exp_f32 v{z+i_}, v{z+i_}")
            for i_, x in enumerate(xs):
                a(f"v_add_f32 v{z+i_}, 1.0, v{z+i_}")
            for i_, x in enumerate(xs):
                a(f"v_rcp_f32 v{z+i_}, v{z+i_}")
            for i_, x in enumerate(xs):
                a(f"v_mul_f32 v{x}, v{x}, v{z+i_}")
            pk = vWf
            for i_ in range(8):
                a(f"v_cvt_pk_bf16_f32 v{pk+i_}, v{xs[2*i_]}, v{xs[2*i_+1]}")
            a(f"s_mul_i32 s{sTmp}, s{sDt}, 112")
            a(f"s_lshl_b32 s{sTmp+1}, s{sT}, 2")
            a(f"s_add_u32 s{sTmp}, s{sTmp}, s{sTmp+1}")
            a(f"s_add_u32 s{sTmp}, s{sTmp}, {w}")
            a(f"s_mul_i32 s{sTmp}, s{sTmp}, 1792")
            a(f"v_lshlrev_b32 v{vX}, 4, v{vLane}")
            a(f"v_mad_u32_u24 v{vX+1}, v{vHi}, 24, v{vDl}")
            a(f"v_lshlrev_b32 v{vX+1}, 4, v{vX+1}")
            a(f"buffer_store_dwordx4 {v(pk,4)}, v{vX}, s[{rO}:{rO+3}], s{sTmp} offen")
            a(f"v_cmp_gt_u32 vcc, 24, v{vDl}")
            a(f"s_and_saveexec_b64 s[{sEx}:{sEx+1}], vcc")
            a(f"buffer_store_dwordx4 {v(pk+4,4)}, v{vX+1}, s[{rO}:{rO+3}], s{sTmp} offen offset:1024")
        else:
            a(f"v_lshlrev_b32 v{vBias}, 16, v{vBias}")
            for q in range(n):
                a(f"v_lshlrev_b32 v{t+4*q}, 16, v{vH+2*q}")
                a(f"v_and_b32 v{t+4*q+1}, 0xffff0000, v{vH+2*q}")
                a(f"v_lshlrev_b32 v{t+4*q+2}, 16, v{vH+2*q+1}")
                a(f"v_and_b32 v{t+4*q+3}, 0xffff0000, v{vH+2*q+1}")
            for q in range(n):
                for e in range(4):
                    a(f"v_add_f32 v{own[q]+e}, v{own[q]+e}, v{vBias}")
            for q in range(n):
                for e in range(4):
                    a(f"v_add_f32 v{own[q]+e}, v{own[q]+e}, v{t+4*q+e}")
            pk = vWf
            for q in range(n):
                a(f"v_cvt_pk_bf16_f32 v{pk+2*q}, v{own[q]}, v{own[q]+1}")
                a(f"v_cvt_pk_bf16_f32 v{pk+2*q+1}, v{own[q]+2}, v{own[q]+3}")
            a("s_nop 1")
            for p in range(2):
                a(f"v_permlane32_swap_b32 v{pk+4*p}, v{pk+4*p+2}")
                a(f"v_permlane32_swap_b32 v{pk+4*p+1}, v{pk+4*p+3}")
            a(f"buffer_store_dwordx4 {v(pk,4)}, v{vBias+1}, s[{rO}:{rO+3}], 0 offen")
            if n == 3:
                a(f"v_cmp_eq_u32 vcc, 0, v{vHi}")
                a(f"s_and_saveexec_b64 s[{sEx}:{sEx+1}], vcc")
            a(f"buffer_store_dwordx4 {v(pk+4,4)}, v{vBias+1}, s[{rO}:{rO+3}], 0 offen offset:32")
        if diag:
            a("s_mov_b64 exec, -1")
            a("s_waitcnt vmcnt(0)")
            stamp(a, 4, sTS, diag)
            stamp_flush(a, 5, sTS, sWS, sWave, kidx, vX, diag)
        a("s_endpgm")
    a(f"{done}:")
    a("s_endpgm")
    return dict(name=name, grid=NWG, block=256, lds=LDS, vgprs=R.hi)
```

```python
import math
from asmlib import *
from layout import *
from gemm import stamp, stamp_flush, pf_setup, pf_issue

def qkv_kernel(a, name, diag=False, kidx=0, opts={}):
    NWG = 256
    CH = 12800
    XB = 7 * CH
    CSB = XB + 4 * 16384
    PRV = CSB + 1536
    LDS = PRV + 4 * 512
    PITCH = 2688
    tbx = int(opts.get("k1tb", 4))
    rot = int(opts.get("k1rot", 1))
    sX, sW, sWS = 4, 6, 8
    rX, rW, rQ, rF = 12, 16, 20, 24
    sWave, sH, sTb, sWb, sXb, sT0, sT1 = 28, 29, 30, 31, 32, 33, 34
    sOX, sOW = 36, 44
    mPar, mA, mB, mEx, mPadV = 52, 54, 56, 58, 70
    mb = [72, 74, 76, 78, 80]
    sTS = 60
    R = Regs(1)
    vL = R.get(); vHi = R.get(); vTok = R.get()
    vWo = R.get(); vXo = R.get(4)
    vXa = R.get(4); vQa = R.get(4); vKa = R.get()
    vT = R.get(8, 2)
    vSel = R.get(4, 4)
    vCs = R.get(12, 4)
    vQ = R.get(16, 4); vK = R.get(16, 4); vV = R.get(16, 4); vG = R.get(16, 4)
    vXf = R.get(32, 4)
    vWf = R.get(24, 4)
    vE = R.get(64, 4)
    pf = [x for x in opts.get('pf1', '').split(',') if x]
    pfat = [int(z) for z in str(opts.get('pf1at', 10)).split(",")]
    vPf = R.get(8)
    vPo = R.get(6, 4)
    done = f"{name}_done"
    kernel_header(a, name)
    a(f"s_cmp_ge_u32 s2, {NWG}")
    a(f"s_cbranch_scc1 {done}")
    stamp(a, 0, sTS, diag, kidx)
    a(f"s_load_dwordx4 s[{sX}:{sX+3}], s[0:1], {KA_X}")
    a(f"s_load_dwordx2 s[{sWS}:{sWS+1}], s[0:1], {KA_WS}")
    for i, w_ in enumerate(pf):
        pf_setup(a, w_, 82 + 2 * i)
    a(f"v_lshrrev_b32 v{vT}, 6, v0")
    a(f"v_and_b32 v{vL}, 63, v0")
    a(f"v_readfirstlane_b32 s{sWave}, v{vT}")
    nx = 16 // tbx
    hx = 8 // nx
    lg = lambda n: n.bit_length() - 1
    a(f"s_and_b32 s{sT0}, s2, 7")
    a(f"s_lshr_b32 s{sT1}, s2, 3")
    a(f"s_lshr_b32 s{sTb}, s{sT0}, {lg(hx)}")
    a(f"s_lshl_b32 s{sTb}, s{sTb}, {lg(tbx)}")
    a(f"s_and_b32 s{sH}, s{sT1}, {tbx-1}")
    a(f"s_add_u32 s{sTb}, s{sTb}, s{sH}")
    a(f"s_and_b32 s{sH}, s{sT0}, {hx-1}")
    a(f"s_lshl_b32 s{sH}, s{sH}, {lg(16//hx)}")
    a(f"s_lshr_b32 s{sT1}, s{sT1}, {lg(tbx)}")
    a(f"s_add_u32 s{sH}, s{sH}, s{sT1}")
    if rot:
        a(f"s_and_b32 s{sT0}, s{sH}, 7")
        a(f"s_cmp_eq_u32 s{sT0}, 7")
        a(f"s_cselect_b32 s{sT0}, 3, s{sT0}")
    else:
        a(f"s_mov_b32 s{sT0}, 0")
    for c in range(7):
        a(f"s_lshl_b32 s{sOX+c}, s{sT0}, 7")
        a(f"s_mul_i32 s{sOW+c}, s{sT0}, {64*PITCH}")
        if c < 6:
            a(f"s_add_u32 s{sT0}, s{sT0}, 1")
            a(f"s_cmp_eq_u32 s{sT0}, 7")
            a(f"s_cselect_b32 s{sT0}, 0, s{sT0}")
    a(f"s_mul_i32 s{sT0}, s{sH}, 56")
    a(f"s_and_b32 s{sT1}, s{sH}, 1")
    a(f"s_lshl_b32 s{sT1}, s{sT1}, 3")
    a(f"s_sub_u32 s{sT0}, s{sT0}, s{sT1}")
    a(f"s_mul_i32 s{sT1}, s{sWave}, {16*PITCH}")
    a(f"s_add_u32 s{sT0}, s{sT0}, s{sT1}")
    a(f"v_lshrrev_b32 v{vT}, 2, v{vL}")
    a(f"v_mul_u32_u24 v{vT}, {PITCH}, v{vT}")
    a(f"v_and_b32 v{vT+1}, 3, v{vL}")
    a(f"v_lshlrev_b32 v{vT+1}, 4, v{vT+1}")
    a(f"v_add3_u32 v{vWo}, v{vT}, v{vT+1}, s{sT0}")
    a(f"s_lshl_b32 s{sT0}, s{sTb}, 2")
    a(f"s_add_u32 s{sT0}, s{sT0}, s{sWave}")
    a(f"s_mul_i32 s{sT0}, s{sT0}, {32*896}")
    a(f"v_lshrrev_b32 v{vT}, 3, v{vL}")
    a(f"v_mul_u32_u24 v{vT}, 896, v{vT}")
    a(f"v_lshrrev_b32 v{vT+1}, 4, v{vL}")
    a(f"v_and_b32 v{vT+2}, 7, v{vL}")
    a(f"v_xor_b32 v{vT+1}, v{vT+1}, v{vT+2}")
    a(f"v_lshlrev_b32 v{vT+1}, 4, v{vT+1}")
    a(f"v_add3_u32 v{vXo}, v{vT}, v{vT+1}, s{sT0}")
    a(f"v_xor_b32 v{vT+1}, 64, v{vT+1}")
    a(f"v_add3_u32 v{vXo+1}, v{vT}, v{vT+1}, s{sT0}")
    a(f"v_add_u32 v{vXo+2}, {2*(8*896-1024)}, v{vXo}")
    a(f"v_add_u32 v{vXo+1}, {8*896-1024}, v{vXo+1}")
    a(f"v_add_u32 v{vXo+3}, {2*(8*896-1024)}, v{vXo+1}")
    a(f"s_mul_i32 s{sWb}, s{sWave}, 3072")
    a(f"s_lshl_b32 s{sXb}, s{sWave}, 14")
    a(f"s_add_u32 s{sXb}, s{sXb}, {XB}")
    a("s_waitcnt lgkmcnt(0)")
    srd(a, rX, sX, S * D * 2)
    srd(a, rW, sW, D * 3 * D * 2)

    order = []
    def issueW(c):
        for t in range(3):
            a(f"s_add_u32 m0, s{sWb}, {c*CH + t*128}")
            a("s_nop 0")
            a(f"buffer_load_dwordx4 v{vWo}, s[{rW}:{rW+3}], s{sOW+c} offen offset:{t*896} lds")
            order.append(c)
    def issueX(c):
        a(f"s_add_u32 m0, s{sXb}, {(c&3)*4096}")
        a("s_nop 0")
        for i in range(4):
            a(f"buffer_load_dwordx4 v{vXo+i}, s[{rX}:{rX+3}], s{sOX+c} offen offset:{i*1024} lds")
            order.append(c)
    def waitchunk(c):
        last = max(i for i, t in enumerate(order) if t == c)
        a(f"s_waitcnt vmcnt({len(order)-1-last})")
    for c in range(4):
        issueX(c); issueW(c)
    for c in range(4, 7):
        issueW(c)
    stamp(a, 1, sTS, diag)
    srd(a, rQ, sWS, 16 * MB)
    a(f"v_lshrrev_b32 v{vHi}, 5, v{vL}")
    a(f"v_and_b32 v{vTok}, 31, v{vL}")
    a(f"v_lshrrev_b32 v{vT}, 5, v0")
    a(f"v_mul_u32_u24 v{vT}, {CH}, v{vT}")
    a(f"v_lshl_add_u32 v{vT}, v{vTok}, 4, v{vT}")
    for e in range(4):
        a(f"v_mov_b32 v{vSel+e}, 0x3f803f80")
    a(f"v_cmp_gt_u32 vcc, 224, v0")
    a(f"s_and_saveexec_b64 s[{mEx}:{mEx+1}], vcc")
    a(f"ds_write_b128 v{vT}, {v(vSel,4)} offset:12288")
    a(f"s_mov_b64 exec, s[{mEx}:{mEx+1}]")
    a(f"v_bfe_u32 v{vT}, v{vL}, 1, 3")
    a(f"v_xor_b32 v{vT}, v{vT}, v{vHi}")
    a(f"v_lshlrev_b32 v{vT}, 4, v{vT}")
    a(f"v_lshl_add_u32 v{vT+1}, v{vTok}, 7, s{sXb}")
    for j in range(4):
        a(f"v_xor_b32 v{vT+2}, {32*j}, v{vT}")
        a(f"v_add_u32 v{vXa+j}, v{vT+2}, v{vT+1}")
    a(f"v_bfe_u32 v{vT}, v{vL}, 2, 2")
    a(f"v_lshlrev_b32 v{vT}, 6, v{vT}")
    a(f"v_bfe_u32 v{vT+1}, v{vL}, 4, 1")
    a(f"v_and_b32 v{vT+2}, 3, v{vL}")
    a(f"v_lshlrev_b32 v{vT+2}, 3, v{vT+2}")
    a(f"v_lshl_add_u32 v{vT+1}, v{vT+1}, 5, v{vT+2}")
    a(f"v_add_u32 v{vT}, v{vT}, v{vT+1}")
    a(f"v_lshl_add_u32 v{vKa}, v{vHi}, 9, v{vT}")
    a(f"v_add_u32 v{vT}, 12288, v{vT}")
    a(f"s_and_b32 s{sT0}, s{sH}, 1")
    a(f"s_cmp_eq_u32 s{sT0}, 1")
    a(f"s_cselect_b32 s{sT1}, 0, 0x13")
    a(f"s_cselect_b64 s[{mPar}:{mPar+1}], -1, 0")
    a(f"s_cselect_b32 s{mA}, -1, 0")
    a(f"s_mov_b32 s{mA+1}, 0")
    a(f"s_mov_b32 s{mB}, 0")
    a(f"s_cselect_b32 s{mB+1}, 0, -1")
    a(f"s_cselect_b32 s{mPadV}, 0x0000000f, 0xf0000000")
    a(f"s_mov_b32 s{mPadV+1}, s{mPadV}")
    a(f"v_and_b32 v{vT+1}, 0x13, v{vL}")
    a(f"v_cmp_eq_u32 vcc, s{sT1}, v{vT+1}")
    a("s_nop 0")
    for j in range(4):
        a(f"v_add_u32 v{vT+2}, {j*3072}, v{vKa}")
        a(f"v_cndmask_b32 v{vQa+j}, v{vT+2}, v{vT}, vcc")
    a(f"v_and_b32 v{vT}, 15, v{vL}")
    a(f"v_bfe_u32 v{vT+1}, v{vL}, 4, 1")
    a(f"v_cmp_eq_u32 vcc, v{vT}, v{vT+1}")
    a("s_waitcnt lgkmcnt(0)")
    a("s_nop 1")
    for e in range(4):
        a(f"v_cndmask_b32 v{vSel+e}, 0, v{vSel+e}, vcc")
    for i, bit in enumerate((0, 1, 3, 4, 2)):
        pat = sum(1 << l for l in range(32) if (l >> bit) & 1)
        a(f"s_mov_b32 s{mb[i]}, 0x{pat:08x}")
        a(f"s_mov_b32 s{mb[i]+1}, 0x{pat:08x}")
    def rd_x(c, j):
        a(f"ds_read_b128 {v(vXf+(c&1)*16+4*j,4)}, v{vXa+j} offset:{(c&3)*4096}")
    def rd_w(s_, t, p):
        c, j = s_ >> 2, s_ & 3
        cc = c if c < 5 else c - 5
        d = vWf + (s_ & 1) * 12 + t * 4 + 2 * p
        if t == 0:
            a(f"ds_read_b64_tr_b16 {v(d,2)}, v{vQa+j} offset:{cc*CH+p*256}")
        else:
            a(f"ds_read_b64_tr_b16 {v(d,2)}, v{vKa} offset:{cc*CH+j*3072+t*1024+p*256}")
    PO0 = int(opts.get("po0", 24))
    sPo = 82 + 6
    a(f"s_lshl_b32 s{sPo+8}, s2, 2")
    a(f"s_add_u32 s{sPo+8}, s{sPo+8}, s{sWave}")
    for e in range(4):
        a(f"v_mov_b32 v{vPo+e}, -1")
    a(f"v_lshlrev_b32 v{vPo+4}, 4, v{vL}")
    a(f"v_lshlrev_b32 v{vPo+5}, 2, v{vL}")
    def po(base, per, offs):
        r = [f"s_mul_i32 s{sPo+9}, s{sPo+8}, {per}", f"s_add_u32 s{sPo+9}, s{sPo+9}, {base}"]
        return r + [f"buffer_store_dwordx4 {v(vPo,4)}, v{vPo+4}, s[{rQ}:{rQ+3}], s{sPo+9} offen offset:{o} sc1" for o in offs]
    polist = [po(WS_O, 2048, (0, 1024)), po(WS_HN, 1792, (0, 768)), po(WS_UF, 1568, (0, 544))]
    polist.append(["s_mov_b64 exec, 0xffff"] + po(WS_FL, 256, (0,)) + ["s_mov_b64 exec, -1"])
    for i, w_ in enumerate(pf):
        if pfat[min(i, len(pfat) - 1)] == -1:
            order.extend([-1] * pf_issue(a, w_, 82 + 2 * i, 88, 92, sWave, vL, vPf, vPf + 2 + 2 * i))
    waitchunk(0)
    a("s_barrier")
    stamp(a, 2, sTS, diag)
    rd_x(0, 0); rd_x(0, 1)
    for t in range(3):
        rd_w(0, t, 0); rd_w(0, t, 1)
    rd_x(0, 2); rd_x(0, 3)
    for s_ in range(28):
        c, j = s_ >> 2, s_ & 3
        xf = v(vXf + (c & 1) * 16 + 4 * j, 4)
        wf = [v(vWf + (s_ & 1) * 12 + 4 * t, 4) for t in range(3)]
        cz = lambda r, n=16: "0" if s_ == 0 else v(r, n)
        nxt = s_ + 1 < 28
        newc = nxt and j == 3
        if j == 0:
            a("s_waitcnt lgkmcnt(8)")
        a(f"v_mfma_f32_32x32x16_bf16 {v(vG,16)}, {xf}, {xf}, {cz(vG)}")
        if newc:
            waitchunk(c + 1)
            if c + 1 == 5:
                for r in [vKa] + [vQa + i for i in range(4)]:
                    a(f"v_add_u32 v{r}, {5*CH}, v{r}")
            a("s_waitcnt lgkmcnt(0)")
            a("s_barrier")
            rd_x(c + 1, 0); rd_x(c + 1, 1)
        else:
            a(f"s_waitcnt lgkmcnt({2 if j == 0 else 0})")
        if nxt:
            rd_w(s_ + 1, 0, 0); rd_w(s_ + 1, 0, 1)
        a(f"v_mfma_f32_32x32x16_bf16 {v(vQ,16)}, {wf[0]}, {xf}, {cz(vQ)}")
        if nxt:
            rd_w(s_ + 1, 1, 0); rd_w(s_ + 1, 1, 1)
        if j == 1 and c + 4 < 7:
            issueX(c + 4)
        a(f"v_mfma_f32_32x32x16_bf16 {v(vK,16)}, {wf[1]}, {xf}, {cz(vK)}")
        if nxt:
            rd_w(s_ + 1, 2, 0); rd_w(s_ + 1, 2, 1)
        if newc:
            rd_x(c + 1, 2); rd_x(c + 1, 3)
        a(f"v_mfma_f32_32x32x16_bf16 {v(vV,16)}, {xf}, {wf[2]}, {cz(vV)}")
        for i, w_ in enumerate(pf):
            if s_ == pfat[min(i, len(pfat) - 1)]:
                n_ = pf_issue(a, w_, 82 + 2 * i, 88, 92, sWave, vL, vPf, vPf + 2 + 2 * i, half=w_ in opts.get("pfh", "").split(","))
                order.extend([-1] * n_)
        if s_ >= PO0 and polist:
            for x_ in polist.pop(0):
                a(x_)
        lab = a.label("k1cs")
        a(f"s_cmp_lg_u32 s{sWave}, {j}")
        a(f"s_cbranch_scc1 {lab}")
        for t in range(3):
            cs = "0" if c == 0 else v(vCs + 4 * t, 4)
            a(f"v_mfma_f32_16x16x32_bf16 {v(vCs+4*t,4)}, {v(vSel,4)}, {wf[t]}, {cs}")
        a(f"{lab}:")
    stamp(a, 3, sTS, diag)
    a(f"s_lshl_b32 s{sT0}, s{sWave}, 2")
    a(f"s_add_u32 s{sT0}, s{sT0}, {CSB}")
    a(f"v_lshl_add_u32 v{vT}, v{vL}, 4, s{sT0}")
    a(f"v_lshlrev_b32 v{vT+1}, 4, v{vL}")
    a(f"v_add_u32 v{vT+1}, {CSB}, v{vT+1}")
    a(f"v_lshlrev_b32 v{vT+2}, 4, v{vTok}")
    a(f"v_add_u32 v{vT+2}, {CSB+1024}, v{vT+2}")
    a(f"s_lshl_b32 s{sT0}, s{sWave}, 9")
    a(f"s_add_u32 s{sT0}, s{sT0}, {PRV}")
    a(f"v_lshl_add_u32 v{vT+3}, v{vL}, 2, s{sT0}")
    a(f"v_lshl_add_u32 v{vT+4}, v{vTok}, 2, s{sT0}")
    a(f"v_lshl_add_u32 v{vT+5}, v{vHi}, 4, s{sT0}")
    a("s_mov_b64 exec, 0xffff")
    for t in range(3):
        a(f"ds_write_b32 v{vT}, v{vCs+4*t} offset:{t*512}")
        a(f"ds_write_b32 v{vT}, v{vCs+4*t+1} offset:{t*512+256}")
    a("s_mov_b64 exec, -1")
    g = vG
    for i in range(8):
        a(f"v_cndmask_b32 v{g+2*i}, v{g+2*i}, v{g+2*i+1}, s[{mb[0]}:{mb[0]+1}]")
    for i in range(4):
        a(f"v_cndmask_b32 v{g+4*i}, v{g+4*i}, v{g+4*i+2}, s[{mb[1]}:{mb[1]+1}]")
    a("s_waitcnt lgkmcnt(0)")
    a("s_barrier")
    a(f"ds_read_b128 {v(vE,4)}, v{vT+1}")
    a(f"ds_read_b128 {v(vE+4,4)}, v{vT+2}")
    for i in range(2):
        a(f"v_cndmask_b32 v{g+8*i}, v{g+8*i}, v{g+8*i+4}, s[{mb[2]}:{mb[2]+1}]")
    a(f"v_cndmask_b32 v{g}, v{g}, v{g+8}, s[{mb[3]}:{mb[3]+1}]")
    a(f"v_cndmask_b32 v{g+2}, v{vQ+12}, v{vQ}, s[{mPar}:{mPar+1}]")
    a(f"v_mov_b32 v{g+1}, v{g}")
    a(f"v_mov_b32 v{g+3}, v{g+2}")
    a("s_nop 1")
    a(f"v_permlane32_swap_b32 v{g}, v{g+1}")
    a(f"v_permlane32_swap_b32 v{g+2}, v{g+3}")
    a("s_nop 1")
    a(f"v_cndmask_b32 v{g}, v{g}, v{g+1}, s[{mb[4]}:{mb[4]+1}]")
    a(f"v_cndmask_b32 v{g+2}, v{g+3}, v{g+2}, s[{mPar}:{mPar+1}]")
    a(f"v_mul_f32 v{g+2}, {hexf(1.0/448)}, v{g+2}")
    a(f"v_mul_f32 v{g+1}, v{g+2}, v{g+2}")
    a(f"v_mov_b32 v{g+3}, {hexf(1.0/448)}")
    a(f"v_fma_f32 v{g}, v{g}, v{g+3}, -v{g+1}")
    a(f"v_max_f32 v{g}, 0, v{g}")
    a(f"v_add_f32 v{g}, {hexf(1e-5)}, v{g}")
    a(f"v_rsq_f32 v{g}, v{g}")
    a("s_waitcnt lgkmcnt(1)")
    a(f"v_add_f32 v{vE}, v{vE}, v{vE+1}")
    a(f"v_add_f32 v{vE+2}, v{vE+2}, v{vE+3}")
    a(f"v_mul_f32 v{g+1}, v{g}, v{g+2}")
    a(f"v_add_f32 v{vE}, v{vE}, v{vE+2}")
    a(f"v_sub_f32 v{g+1}, 0, v{g+1}")
    a(f"ds_write_b32 v{vT+3}, v{vE}")
    a(f"ds_write_b32 v{vT+4}, v{g} offset:256")
    a(f"ds_write_b32 v{vT+4}, v{g+1} offset:384")
    a("s_waitcnt lgkmcnt(3)")
    a(f"v_add_f32 v{vE+4}, v{vE+4}, v{vE+5}")
    a(f"v_add_f32 v{vE+6}, v{vE+6}, v{vE+7}")
    qs = 28 ** -0.5 * math.log2(math.e)
    a(f"v_mul_f32 v{g+4}, {hexf(qs)}, v{g}")
    a(f"v_mul_f32 v{g+5}, {hexf(qs)}, v{g+1}")
    a(f"v_add_f32 v{g+6}, v{vE+4}, v{vE+6}")
    a("s_waitcnt lgkmcnt(0)")
    def rdb(i):
        a(f"ds_read_b128 {v(vE+4*i,4)}, v{vT+5} offset:{(i >> 2) * 128 + (i & 3) * 32}")
    for i in range(12):
        rdb(i)
    a(f"s_lshl_b32 s{sT0}, s{sH}, 4")
    a(f"s_add_u32 s{sT0}, s{sT0}, s{sTb}")
    a(f"s_lshl_b32 s{sT0}, s{sT0}, 2")
    a(f"s_add_u32 s{sT0}, s{sT0}, s{sWave}")
    a(f"s_lshl_b32 s{sT0}, s{sT0}, 11")
    a(f"s_lshl_b32 s{sOX+1}, s{sH}, 14")
    a(f"s_add_u32 s{sT1}, s{sT0}, s{sOX+1}")
    a(f"s_add_u32 s{sOX}, s{sT1}, {WS_VF + 16384}")
    a(f"s_add_u32 s{sT1}, s{sT1}, {WS_KF + 16384}")
    a(f"s_mul_i32 s{sOX+1}, s{sH}, {HSTR}")
    a(f"s_lshl_b32 s{sOX+2}, s{sTb}, 10")
    a(f"s_add_u32 s{sOX+1}, s{sOX+1}, s{sOX+2}")
    a(f"s_add_u32 s{sOX+2}, s{sOX+1}, {WS_VF}")
    a(f"s_add_u32 s{sOX+1}, s{sOX+1}, {WS_KF}")
    a(f"v_bfe_u32 v{vT}, v{vL}, 4, 1")
    a(f"v_and_b32 v{vT+1}, 15, v{vL}")
    a(f"v_lshlrev_b32 v{vT+1}, 4, v{vT+1}")
    a(f"v_lshl_add_u32 v{vT}, v{vT}, 10, v{vT+1}")
    a(f"v_lshl_add_u32 v{vT+1}, v{vHi}, 8, v{vT}")
    a(f"v_lshl_add_u32 v{vT}, v{vHi}, 9, v{vT}")
    pk = vXf
    a(f"v_mov_b32 v{g+7}, 0x3f803f80")
    for t, (A_, B_, acc_) in enumerate(((g + 4, g + 5, vQ), (g, g + 1, vK))):
        a(f"s_waitcnt lgkmcnt(8)")
        if t == 0:
            for i in range(12, 16):
                rdb(i)
        for r in range(16):
            a(f"v_mul_f32 v{vE+16*t+r}, v{B_}, v{vE+16*t+r}")
        for r in range(16):
            a(f"v_fma_f32 v{acc_+r}, v{A_}, v{acc_+r}, v{vE+16*t+r}")
        for r in range(8):
            a(f"v_cvt_pk_bf16_f32 v{pk+8*t+r}, v{acc_+2*r}, v{acc_+2*r+1}")
        pad = f"v{g+7}" if t == 0 else "0"
        for r in (0, 1):
            a(f"v_cndmask_b32 v{pk+8*t+r}, v{pk+8*t+r}, {pad}, s[{mA}:{mA+1}]")
        for r in (6, 7):
            a(f"v_cndmask_b32 v{pk+8*t+r}, v{pk+8*t+r}, {pad}, s[{mB}:{mB+1}]")
        so = sT0 if t == 0 else sT1
        a(f"buffer_store_dwordx4 {v(pk+8*t,4)}, v{vT}, s[{rQ}:{rQ+3}], s{so} offen")
        a(f"buffer_store_dwordx4 {v(pk+8*t+4,4)}, v{vT}, s[{rQ}:{rQ+3}], s{so} offen offset:256")
    a("s_waitcnt lgkmcnt(0)")
    for r in range(16):
        a(f"v_mul_f32 v{vE+48+r}, v{g+6}, v{vE+48+r}")
    for r in range(16):
        a(f"v_fma_f32 v{vV+r}, v{vE+32+r}, v{vV+r}, v{vE+48+r}")
    for jj in range(2):
        for e, r in enumerate((4*jj, 4*jj+2, 8+4*jj, 8+4*jj+2)):
            a(f"v_cvt_pk_bf16_f32 v{pk+16+4*jj+e}, v{vV+r}, v{vV+r+1}")
    for r in range(8):
        a(f"v_cndmask_b32 v{pk+16+r}, v{pk+16+r}, v{g+7}, s[{mPadV}:{mPadV+1}]")
    a(f"buffer_store_dwordx4 {v(pk+16,4)}, v{vT+1}, s[{rQ}:{rQ+3}], s{sOX} offen")
    a(f"buffer_store_dwordx4 {v(pk+20,4)}, v{vT+1}, s[{rQ}:{rQ+3}], s{sOX} offen offset:512")
    lab = a.label("k1neg")
    a(f"s_cmp_lg_u32 s{sWave}, 0")
    a(f"s_cbranch_scc1 {lab}")
    a(f"v_mov_b32 v{vE+8}, 0xfb80fb80")
    for r in range(8):
        if r in (0, 1, 6, 7):
            m_ = mA if r < 2 else mB
            a(f"v_cndmask_b32 v{vE+r}, 0, v{vE+8}, s[{m_}:{m_+1}]")
        else:
            a(f"v_mov_b32 v{vE+r}, 0")
    for r in range(4):
        a(f"v_mov_b32 v{vE+12+r}, 0")
    a(f"buffer_store_dwordx4 {v(vE+12,4)}, v{vPo+4}, s[{rQ}:{rQ+3}], s{sOX+2} offen")
    a("s_mov_b32 exec_lo, 0xffff")
    a("s_mov_b32 exec_hi, 0xffff")
    a(f"buffer_store_dwordx4 {v(vE,4)}, v{vT}, s[{rQ}:{rQ+3}], s{sOX+1} offen")
    a(f"buffer_store_dwordx4 {v(vE+4,4)}, v{vT}, s[{rQ}:{rQ+3}], s{sOX+1} offen offset:256")
    a("s_mov_b64 exec, -1")
    a(f"{lab}:")
    if pf and not diag:
        a("s_waitcnt vmcnt(0)")
    if diag:
        a("s_waitcnt vmcnt(0)")
        stamp(a, 4, sTS, diag)
        stamp_flush(a, 5, sTS, sWS, sWave, kidx, vT, diag)
    a(f"{done}:")
    a("s_endpgm")
    return dict(name=name, grid=NWG, block=256, lds=LDS, vgprs=R.hi)
```

```python
import math
from asmlib import *
from layout import *
from gemm import stamp, stamp_flush, pf_issue

class Trk:
    def __init__(self, a):
        self.a = a; self.vm = []; self.vd = 0; self.ds = []; self.dd = 0
    def ld(self, tag, txt):
        self.a(txt); self.vm.append(tag)
    def lds(self, tag, txt):
        self.a(txt); self.ds.append(tag)
    def wvm(self, tag):
        i = max(k for k, t in enumerate(self.vm) if t == tag) + 1
        if i > self.vd:
            n = min(len(self.vm) - i, 63)
            self.a(f"s_waitcnt vmcnt({n})"); self.vd = len(self.vm) - n
    def wds(self, tag):
        i = max(k for k, t in enumerate(self.ds) if t == tag) + 1
        if i > self.dd:
            n = min(len(self.ds) - i, 15)
            self.a(f"s_waitcnt lgkmcnt({n})"); self.dd = len(self.ds) - n
    def vm0(self):
        self.a("s_waitcnt vmcnt(0)"); self.vd = len(self.vm)
    def ds0(self):
        self.a("s_waitcnt lgkmcnt(0)"); self.dd = len(self.ds)

def fused_kernel(a, name, diag=False, kidx=1, opts={}):
    g_ = lambda k, d: int(opts.get(k, d))
    RING0, RINGW = 48 * 1024, 28 * 1024
    LDS = 160 * 1024
    P1, P2, PO = F * 2, S * 2, D * 2
    DEPTH, INIT, RAMP = g_("dep", 12), g_("init", 3), g_("ramp", 2)
    SPIN = 20000
    sWS, sP1, sP2, sPo = 4, 6, 8, 10
    MG = g_("mg", 0)
    if MG:
        sP2, sPo = 10, 8
    rWS, rW1, rW2, rWo, rOut, rT = 12, 16, 20, 24, 28, 32
    sWave, sDt, sSt, sFt, sH, sTb = 36, 37, 38, 39, 40, 41
    sT0, sT1, sT2, sT3, sO, sO2 = 42, 43, 44, 45, 46, 47
    sRing, sCnt, sIdle, sT4 = 48, 49, 50, 51
    sR1, sR2, sOb = 92, 93, 94
    mPar, mA, mB, sC1, sC2 = 52, 54, 56, 58, 59
    sTS = 60
    R = Regs(1)
    vL = R.get(); vLo = R.get(); vHi = R.get(); vDl = R.get()
    vT0 = R.get(); vT1 = R.get(); vA0 = R.get(); vA1 = R.get()
    vSw = R.get(); vSr = R.get(); vN1 = R.get(); vOs = R.get(); vB2 = R.get()
    vWa = R.get(4); vWb = R.get(4)
    vX = R.get(8, 2)
    vB1 = R.get(4, 2)
    vXr = R.get(8, 2)
    vH = R.get(16, 4)
    vId = R.get(8, 4)
    base = R.mark()
    vKa = R.get(); vVa = R.get(); vSt = R.get(); vKw = R.get()
    vQ = R.get(8, 4); vO = R.get(16, 4); vMk = R.get(8, 4); vNm = R.get(8, 4)
    vK = R.get(72, 4); vV = R.get(24, 4); vS = R.get(32, 4); vP = R.get(16, 4)
    R.reset(base)
    vAcc = R.get(64, 4); vAct = R.get(DEPTH * 8, 4); vWf = R.get(16, 4)
    T = Trk(a)
    done = f"{name}_done"
    st_n = [0]
    STS = opts.get("st", "k,att,oack,od,p3,sack,sok,hn,g1,g1d,g1e,g2,g2d,g2e").split(",")
    used = []
    def stp(nm=None):
        if nm is None or nm in STS:
            stamp(a, st_n[0], sTS, diag, kidx); st_n[0] += 1; used.append(nm)
    kernel_header(a, name)
    a("s_cmp_ge_u32 s2, 256")
    a(f"s_cbranch_scc1 {done}")
    stp()
    if MG:
        import qkv
        qkv.qkv_kernel(a, name, diag=diag, opts=opts, mg=stp)
        stp("fl")
        a(f"s_mov_b32 s{rOut}, s96"); a(f"s_mov_b32 s{rOut+1}, s97")
    else:
        a(f"s_load_dwordx2 s[{sWS}:{sWS+1}], s[0:1], {KA_WS}")
        a(f"s_load_dwordx4 s[{rW1}:{rW1+3}], s[0:1], {KA_W1}")
        a(f"s_load_dwordx4 s[{rW2}:{rW2+3}], s[0:1], {KA_W2}")
        a(f"s_load_dwordx2 s[{rWo}:{rWo+1}], s[0:1], {KA_WO}")
        a(f"s_load_dwordx2 s[{rOut}:{rOut+1}], s[0:1], {KA_OUT}")
        a(f"s_load_dwordx2 s[{sPo}:{sPo+1}], s[0:1], {KA_X}")
        a(f"v_lshrrev_b32 v{vX}, 6, v0")
        a(f"v_and_b32 v{vL}, 63, v0")
        a(f"v_readfirstlane_b32 s{sWave}, v{vX}")
    a(f"s_and_b32 s{sT0}, s2, 7")
    a(f"s_lshr_b32 s{sT1}, s2, 3")
    a(f"s_lshr_b32 s{sT2}, s{sT0}, 1")
    a(f"s_and_b32 s{sT0}, s{sT0}, 1")
    a(f"s_and_b32 s{sT3}, s{sT1}, 3")
    a(f"s_lshr_b32 s{sT1}, s{sT1}, 2")
    a(f"s_lshl2_add_u32 s{sTb}, s{sT2}, s{sT3}")
    a(f"s_lshl3_add_u32 s{sH}, s{sT0}, s{sT1}")
    a(f"s_lshl2_add_u32 s{sDt}, s{sT0}, s{sT3}")
    a(f"s_lshl3_add_u32 s{sSt}, s{sT2}, s{sT1}")
    a(f"s_mul_i32 s{sFt}, s{sT2}, 7")
    a(f"s_min_u32 s{sT0}, s{sT1}, 6")
    a(f"s_add_u32 s{sFt}, s{sFt}, s{sT0}")
    a(f"s_mov_b32 s{sIdle}, s{sT1}")
    a(f"s_mul_i32 s{sR1}, s{sT0}, {37 if g_('rot', 0) else 0}")
    a(f"s_lshr_b32 s{sR1}, s{sR1}, 4")
    a(f"s_mul_i32 s{sR2}, s{sT1}, {7 if g_('rot', 0) else 0}")
    a(f"s_lshr_b32 s{sR2}, s{sR2}, 2")
    a(f"v_lshlrev_b32 v{vLo}, 4, v{vL}")
    def run(ops):
        for o in ops:
            o()
    wsr = f"s[{rWS}:{rWS+3}]"
    a(f"s_mul_i32 s{sRing}, s{sWave}, {RINGW}")
    a(f"s_add_u32 s{sRing}, s{sRing}, {RING0}")
    sKn, sVn = 95, 100
    nbk = [f"buffer_load_dwordx4 {v(vK+4*i,4)}, v{vLo}, {wsr}, s{sKn} offen offset:{i*1024} sc1" for i in range(4)]
    nbv = [f"buffer_load_dwordx4 {v(vV+4*i,4)}, v{vLo}, {wsr}, s{sVn} offen offset:{i*1024} sc1" for i in range(4)]
    nbslow = []
    def nbload():
        for l in nbk: T.ld("k", l)
        for l in nbv: T.ld("v", l)
        stp("nb")
        for i, w_ in enumerate(x for x in opts.get("pf2", "").split(",") if x):
            T.vm += ["pf"] * pf_issue(a, w_, dict(w1=rW1, w2=rW2, w2a=rW2, wo=rWo)[w_], rT, sT0, sWave, vL, vX, vP + 2 * i, half=w_ in opts.get("pfh", "").split(","))
    def nbtake(kv):
        r0 = vK if kv == "k" else vV
        T.wvm(kv)
        a(f"s_lshl_b32 s{sT0}, s{sTb}, 1")
        a(f"s_add_u32 s{sT0}, s{sT0}, s{sWave}")
        a(f"s_cmp_lt_u32 s{sT0}, 4")
        a(f"s_cbranch_scc0 {name}_pre{kv}")
        a(f"v_mov_b32 v{vX+4}, 0xfb80fb80")
        for r in range(16):
            if kv == "k":
                m_ = mA if (r & 3) < 2 else mB
                a(f"v_cndmask_b32 v{r0+r}, 0, v{vX+4}, s[{m_}:{m_+1}]")
            else:
                a(f"v_mov_b32 v{r0+r}, 0")
        a(f"{name}_pre{kv}:")
        a(f"v_max3_u32 v{vX+4}, v{r0+3}, v{r0+7}, v{r0+11}")
        a(f"v_max_u32 v{vX+4}, v{vX+4}, v{r0+15}")
        a(f"v_cmp_eq_u32 vcc, -1, v{vX+4}")
        a(f"s_cbranch_vccnz {name}_nb{kv}")
        a(f"{name}_nr{kv}:")
        for i in range(4):
            T.lds("nb" + kv, f"ds_write_b128 v{vKw}, {v(r0+4*i,4)} offset:{(kv == 'v')*24576+i*1024}")
        nbslow.append((kv, r0))
    PH2 = MG and g_("p2", 1)
    FS = g_("fs", 64); GF2 = WS_FL + 512 * 1024 + 256 * FS
    def poison2_ops():
        def po(base, per, offs, own=False):
            def f():
                if own:
                    a(f"s_lshl2_add_u32 s{sT1}, s{sTb}, s{sWave}")
                    a(f"s_lshl4_add_u32 s{sT1}, s{sT1}, s{sH}")
                else:
                    a(f"s_lshl2_add_u32 s{sT1}, s2, s{sWave}")
                a(f"s_mul_i32 s{sT1}, s{sT1}, {per}")
                a(f"s_add_u32 s{sT1}, s{sT1}, {base}")
                if per == 256: a("s_mov_b64 exec, 0xffff")
                for o in offs:
                    T.ld("po", f"buffer_store_dwordx4 {v(vNm,4)}, v{vLo}, {wsr}, s{sT1} offen offset:{o} sc1")
                if per == 256: a("s_mov_b64 exec, -1")
            return f
        return [po(WS_O, 2048, (0, 1024), True), po(WS_HN, 1792, (0, 768)), po(WS_UF, 1568, (0, 544)), po(WS_FL, 256, (0,))]
    if MG:
        for e in range(4):
            a(f"v_mov_b32 v{vNm+e}, -1")
        if PH2 and g_("p2at", 1) == 0:
            run(poison2_ops())
        a(f"s_lshl_b32 s{sT0}, s{sWave}, 12")
        a(f"v_add_u32 v{vKw}, s{sT0}, v{vLo}")
        a(f"s_lshl_b32 s{sT1}, s{sTb}, 13")
        a(f"s_add_u32 s{sT0}, s{sT0}, s{sT1}")
        a(f"s_mul_i32 s{sT1}, s{sH}, {HSTR}")
        a(f"s_add_u32 s{sT0}, s{sT0}, s{sT1}")
        a(f"s_lshl1_add_u32 s{sT1}, s{sTb}, s{sWave}")
        a(f"s_cmp_lt_u32 s{sT1}, 4")
        a(f"s_cselect_b32 s{sT1}, 16384, 0")
        a(f"s_add_u32 s{sT0}, s{sT0}, s{sT1}")
        a(f"s_add_u32 s{sKn}, s{sT0}, {WS_KF}")
        a(f"s_add_u32 s{sVn}, s{sT0}, {WS_VF}")
        a("s_waitcnt lgkmcnt(0)")
        for t in range(2):
            T.lds("q", f"ds_read_b128 {v(vQ+4*t,4)}, v{vKw} offset:{24576+t*1024}")
        if g_("nbp", 1) == 0:
            nbload()
    else:
        a(f"s_lshl_b32 s{sT0}, s{sTb}, 3")
        a(f"s_mul_i32 s{sT1}, s{sWave}, 6")
        a(f"s_add_u32 s{sT1}, s{sT1}, s{sT0}")
        a(f"s_lshl_b32 s{sT1}, s{sT1}, 10")
        a(f"s_mul_i32 s{sT2}, s{sH}, {HSTR}")
        a(f"s_add_u32 s{sT1}, s{sT1}, s{sT2}")
        a(f"s_lshl_b32 s{sT2}, s{sH}, 7")
        a(f"s_add_u32 s{sT0}, s{sT0}, s{sT2}")
        a(f"s_lshl1_add_u32 s{sT0}, s{sWave}, s{sT0}")
        a(f"s_lshl_b32 s{sT0}, s{sT0}, 10")
        a(f"s_mul_i32 s{sT2}, s{sWave}, 6144")
        a(f"s_add_u32 s{sO}, s{sT1}, {WS_KF}")
        a(f"s_mov_b32 m0, s{sT2}")
        a("s_waitcnt lgkmcnt(0)")
        stp("ka")
        srd(a, rWS, sWS, 16 * MB)
        for kv, reg in (("k", WS_KF), ("v", WS_VF)):
            if kv == "v":
                for t in range(2):
                    T.ld("k", f"buffer_load_dwordx4 {v(vQ+4*t,4)}, v{vLo}, {wsr}, s{sT0} offen offset:{t*1024}")
            for i in range(6):
                if i == 4 or (i == 0 and kv == "v"):
                    a(f"s_add_u32 m0, s{sT2}, {(kv == 'v')*24576 + i*1024}")
                    a(f"s_add_u32 s{sO}, s{sT1}, {reg + i*1024}")
                T.ld(kv, f"buffer_load_dwordx4 v{vLo}, {wsr}, s{sO} offen offset:{(i&3)*1024} lds")
    stp("kvi")
    a(f"v_lshrrev_b32 v{vX}, 3, v{vL}")
    a(f"v_lshrrev_b32 v{vX+1}, 2, v{vL}")
    a(f"v_and_b32 v{vX+1}, 4, v{vX+1}")
    a(f"v_and_b32 v{vX+2}, 7, v{vL}")
    a(f"v_xor_b32 v{vX+1}, v{vX+1}, v{vX+2}")
    a(f"v_lshlrev_b32 v{vX+1}, 4, v{vX+1}")
    def waddr(dst, pitch, rows, scol, colmul):
        a(f"s_mul_i32 s{sT0}, s{sWave}, {rows*pitch}")
        a(f"s_mul_i32 s{sT1}, s{scol}, {colmul}")
        a(f"s_add_u32 s{sT0}, s{sT0}, s{sT1}")
        a(f"v_mul_u32_u24 v{vX+2}, {pitch}, v{vX}")
        a(f"v_add3_u32 v{dst}, v{vX+2}, v{vX+1}, s{sT0}")
        for k in range(1, 4):
            a(f"v_add_u32 v{dst+k}, {k*(8*pitch-1024)}, v{dst}")
    waddr(vWb, PO, 112, sDt, 112)
    a(f"s_mov_b32 s{sP1}, s{rW1+2}"); a(f"s_mov_b32 s{sP1+1}, s{rW1+3}")
    a(f"s_mov_b32 s{sP2}, s{rW2+2}"); a(f"s_mov_b32 s{sP2+1}, s{rW2+3}")
    for r, nb in ((rW1, S * F * 2), (rW2, S * F * 2), (rWo, D * D * 2), (rOut, S * D * 2)):
        a(f"s_mov_b32 s{r+2}, {nb}"); a(f"s_mov_b32 s{r+3}, 0x00020000")
    WK = {"w1": (rW1, P1, vWa), "w2": (rW2, P2, vWb), "wo": (rWo, PO, vWb)}
    def rotoff(dst, kind, gi, unit):
        sr, ng = (sR1, 16) if kind == "w1" else (sR2, 14)
        a(f"s_add_u32 s{dst}, s{sr}, {gi}")
        if ng == 16:
            a(f"s_and_b32 s{dst}, s{dst}, 15")
        else:
            a(f"s_sub_u32 s{sT4}, s{dst}, 14")
            a(f"s_min_u32 s{dst}, s{dst}, s{sT4}")
        a(f"s_mul_i32 s{dst}, s{dst}, {unit}")
    def wissue_ops(kind, gi, slot):
        r, pitch, va = WK[kind]
        n = 2 if (kind == "wo" and gi == 3) else 4
        def first():
            if kind == "wo":
                a(f"s_mov_b32 s{sO2}, {gi*32*pitch}")
            else:
                rotoff(sO2, kind, gi, 32 * pitch)
            a(f"s_add_u32 m0, s{sRing}, {slot*4096}")
            a("s_nop 0")
        ops = [first]
        for k in range(n):
            ops.append(lambda k=k: T.ld((kind, gi), f"buffer_load_dwordx4 v{va+k}, s[{r}:{r+3}], s{sO2} offen offset:{k*1024} lds"))
        return ops
    def wdrain_ops(kind, gi, slot):
        ops = []
        for ss in range(2):
            for mt, va in ((0, vT0), (1, vT1)):
                for j in range(2):
                    def op(ss=ss, mt=mt, va=va, j=j):
                        T.wvm((kind, gi))
                        T.lds(("dr", slot), f"ds_read_b64_tr_b16 {acc(16*gi+8*ss+4*mt+2*j,2)}, v{va} offset:{slot*4096+ss*2048+j*1024}")
                    ops.append(op)
        return ops
    def wodrain_ops(st):
        hq, j = st >> 1, st & 1
        row = 56 * (hq >> 1) + 24 * (hq & 1) + 8 * j
        ops = []
        for mt, va in ((0, vT0), (1, vT1)):
            for p in range(2):
                def op(mt=mt, va=va, p=p):
                    T.wvm(("wo", (row + 23) >> 5))
                    T.lds(("wod", st), f"ds_read_b64_tr_b16 {acc(192+8*st+4*mt+2*p,2)}, v{va} offset:{(row+16*p)*128}")
                ops.append(op)
        return ops
    def wreuse_ops(kind, gi, slot, tag=None):
        ops = wissue_ops(kind, gi, slot)
        first = ops[0]
        ops[0] = lambda: (T.wds(tag or ("dr", slot)), first())
        return ops
    N0 = g_("n0", 0)
    t1 = [wissue_ops("wo", gi, gi) for gi in range(4)] + [wissue_ops("w1", gi, 4 + gi) for gi in range(3)]
    for ops in t1[:min(N0, 4)]:
        run(ops)
    waddr(vWa, P1, 512, sFt, 128)
    for ops in t1[4:N0]:
        run(ops)
    bg1 = sum(t1[N0:], [])
    if MG and g_("nbp", 1) == 2:
        nbload()
    stp("woi")
    a(f"v_lshrrev_b32 v{vHi}, 5, v{vL}")
    a(f"v_and_b32 v{vDl}, 31, v{vL}")
    a(f"v_bfe_u32 v{vX}, v{vL}, 2, 2")
    a(f"v_mad_u32_u24 v{vX+1}, v{vHi}, 4, v{vX}")
    a(f"v_lshlrev_b32 v{vX+1}, 7, v{vX+1}")
    a(f"v_bfe_u32 v{vX+2}, v{vL}, 4, 1")
    a(f"v_lshlrev_b32 v{vX+2}, 5, v{vX+2}")
    a(f"v_and_b32 v{vX+3}, 3, v{vL}")
    a(f"v_lshl_add_u32 v{vX+2}, v{vX+3}, 3, v{vX+2}")
    a(f"v_bfe_u32 v{vX+3}, v{vL}, 3, 1")
    a(f"v_lshl_add_u32 v{vX+2}, v{vX+3}, 6, v{vX+2}")
    a(f"v_add3_u32 v{vT0}, v{vX+1}, v{vX+2}, s{sRing}")
    a(f"v_xor_b32 v{vT1}, 64, v{vT0}")
    a(f"s_lshl_b32 s{sT0}, s{sWave}, 11")
    a(f"v_add_u32 v{vKa}, s{sT0}, v{vLo}")
    a(f"v_add_u32 v{vVa}, 24576, v{vKa}")
    a(f"v_lshrrev_b32 v{vX}, 4, v{vL}")
    a(f"v_and_b32 v{vX+1}, 15, v{vL}")
    a(f"v_lshlrev_b32 v{vX+2}, 4, v{vX+1}")
    a(f"v_lshl_add_u32 v{vSt}, v{vX}, 9, v{vX+2}")
    a(f"v_lshlrev_b32 v{vX}, 2, v{vX}")
    a(f"v_sub_u32 v{vX}, v{vX+1}, v{vX}")
    a(f"v_mov_b32 v{vX+1}, 0xff800000")
    for r in range(4):
        a(f"v_cmp_gt_i32 vcc, {r}, v{vX}")
        a("s_nop 1")
        a(f"v_cndmask_b32 v{vMk+r}, v{vX+1}, 0, vcc")
        a(f"v_cndmask_b32 v{vMk+4+r}, 0, v{vX+1}, vcc")
    a(f"s_and_b32 s{sT1}, s{sH}, 1")
    a(f"s_cmp_eq_u32 s{sT1}, 1")
    a(f"s_cselect_b64 s[{mPar}:{mPar+1}], -1, 0")
    a(f"s_cselect_b32 s{mA}, 0xffff, 0")
    a(f"s_mov_b32 s{mA+1}, 0")
    a(f"s_mov_b32 s{mB}, 0")
    a(f"s_cselect_b32 s{mB+1}, 0, 0xffff0000")
    c1 = -2.0 * math.sqrt(2.0 / math.pi) * math.log2(math.e)
    a(f"s_mov_b32 s{sC1}, {hexf(c1)}")
    a(f"s_mov_b32 s{sC2}, {hexf(c1*0.044715)}")
    a(f"s_lshr_b32 s{sT0}, s{sWave}, 1")
    a(f"s_lshl_b32 s{sT0}, s{sT0}, 5")
    a(f"v_add_u32 v{vX+3}, s{sT0}, v{vDl}")
    a(f"s_lshl_b32 s{sT1}, s{sSt}, 6")
    a(f"v_add_u32 v{vX}, s{sT1}, v{vX+3}")
    a(f"v_lshlrev_b32 v{vX+2}, 1, v{vX}")
    a(f"s_and_b32 s{sT0}, s{sWave}, 1")
    a(f"s_lshl_b32 s{sT0}, s{sT0}, 6")
    a(f"s_mul_i32 s{sT1}, s{sDt}, 112")
    a(f"s_add_u32 s{sT0}, s{sT0}, s{sT1}")
    a(f"v_mul_u32_u24 v{vX}, 896, v{vX}")
    a(f"v_add_u32 v{vX}, s{sT0}, v{vX}")
    a(f"v_lshl_add_u32 v{vH}, v{vHi}, 5, v{vX}")
    a(f"v_lshl_add_u32 v{vOs}, v{vHi}, 4, v{vX}")
    a(f"v_mov_b32 v{vH+1}, v{vX+2}")
    a(f"v_lshlrev_b32 v{vH+2}, 3, v{vHi}")
    def xload():
        srd(a, rT, sPo, S * D * 2)
        for j in range(2):
            T.ld("x", f"buffer_load_dwordx4 {v(vXr+4*j,4)}, v{vH}, s[{rT}:{rT+3}], 0 offen offset:{16*j}")
    def bload():
        srd(a, rT, sP2, S * 2)
        T.ld("x", f"buffer_load_ushort v{vB2}, v{vH+1}, s[{rT}:{rT+3}], 0 offen")
        srd(a, rT, sP1, F * 2)
        a(f"s_lshl2_add_u32 s{sT0}, s{sFt}, s{sWave}")
        a(f"s_lshl_b32 s{sT0}, s{sT0}, 5")
        for j in range(2):
            T.ld("x", f"buffer_load_dwordx2 {v(vB1+2*j,2)}, v{vH+2}, s[{rT}:{rT+3}], s{sT0} offen offset:{16*j}")
    def touch(half):
        a(f"s_lshl_b32 s{sT0}, s{sR2}, 5")
        a(f"s_mul_i32 s{sT1}, s{sWave}, 56")
        a(f"s_add_u32 s{sT0}, s{sT0}, s{sT1}")
        a(f"s_add_u32 s{sT0}, s{sT0}, {224*half}")
        a(f"v_min_u32 v{vH+4}, 55, v{vL}")
        a(f"v_add_u32 v{vH+4}, s{sT0}, v{vH+4}")
        a(f"v_subrev_u32 v{vH+5}, 448, v{vH+4}")
        a(f"v_min_u32 v{vH+4}, v{vH+4}, v{vH+5}")
        a(f"s_and_b32 s{sT0}, s{sDt}, 3")
        a(f"s_mul_i32 s{sT0}, s{sT0}, {448*P2}")
        a(f"s_lshl_b32 s{sT1}, s{sSt}, 7")
        a(f"s_add_u32 s{sT0}, s{sT0}, s{sT1}")
        a(f"v_lshlrev_b32 v{vH+4}, 12, v{vH+4}")
        T.ld("pf", f"buffer_load_dword v{vH+6+half}, v{vH+4}, s[{rW2}:{rW2+3}], s{sT0} offen")
    TA = opts.get("ta", "xx")
    a(f"s_lshl_b32 s{sT0}, s{sSt}, 13")
    a(f"s_add_u32 s{sT0}, s{sT0}, {WS_FL}")
    a(f"v_lshl_add_u32 v{vX+3}, v{vX+3}, 4, s{sT0}")
    a(f"v_lshl_add_u32 v{vSr}, v{vHi}, 12, v{vX+3}")
    a(f"s_lshl_b32 s{sT0}, s{sDt}, 10")
    a(f"s_and_b32 s{sT1}, s{sWave}, 1")
    a(f"s_lshl3_add_u32 s{sT0}, s{sT1}, s{sT0}")
    a(f"v_add_u32 v{vSw}, s{sT0}, v{vX+3}")
    a(f"v_mad_u32_u24 v{vN1}, v{vHi}, 24, v{vDl}")
    a(f"v_lshlrev_b32 v{vN1}, 4, v{vN1}")
    a(f"v_lshlrev_b32 v{vX}, 2, v{vHi}")
    a(f"v_sub_u32 v{vX}, v{vDl}, v{vX}")
    a(f"v_mov_b32 v{vX+1}, 0x3f80")
    for ks in range(2):
        for i in range(4):
            dd = 16 * ks + ((2 * i) & 3) + 8 * (i >> 1)
            a(f"v_subrev_u32 v{vX+2}, {dd}, v{vX}")
            a(f"v_cmp_gt_u32 vcc, 2, v{vX+2}")
            a(f"v_lshlrev_b32 v{vX+2}, 4, v{vX+2}")
            a(f"v_lshlrev_b32 v{vX+2}, v{vX+2}, v{vX+1}")
            a(f"v_cndmask_b32 v{vId+4*ks+i}, 0, v{vX+2}, vcc")
    a(f"s_lshl3_add_u32 s{sOb}, s{sSt}, s{sWave}")
    a(f"s_lshl_b32 s{sOb}, s{sOb}, 13")
    a(f"s_add_u32 s{sOb}, s{sOb}, {WS_O}")
    for hf in range(2):
        if TA[hf] == "0": touch(hf)
        if TA[hf] == "1": bg1.append(lambda hf=hf: touch(hf))
    if MG and g_("nbp", 1) == 1:
        nbload()
    if PH2 and g_("p2at", 1) == 1:
        run(poison2_ops())
    if PH2 and g_("p2at", 1) == 2:
        bg1 = poison2_ops() + bg1
    stp("set")
    if MG:
        nbtake("k")
        T.ds0()
    T.wvm("k")
    stp("kw")
    a("s_barrier")
    stp("k")
    def tiles(u):
        return [t for t in (0, 1) if (t == 0 and u <= 16) or (t == 1 and u >= 1)]
    def cmask(u, t):
        return vMk if u - t == 0 else (vMk + 4 if u - t == 16 else None)
    for u in range(8):
        T.lds(("k", u), f"ds_read_b128 {v(vK+4*u,4)}, v{vKa} offset:{u*1024}")
    mx = [vX, vX + 1]; seen = [False, False]
    def maxof(u):
        for t in tiles(u):
            s_ = vS + ((u & 3) * 2 + t) * 4
            if not seen[t]:
                a(f"v_max3_f32 v{mx[t]}, v{s_}, v{s_+1}, v{s_+2}")
                a(f"v_max_f32 v{mx[t]}, v{mx[t]}, v{s_+3}")
                seen[t] = True
            else:
                a(f"v_max3_f32 v{mx[t]}, v{mx[t]}, v{s_}, v{s_+1}")
                a(f"v_max3_f32 v{mx[t]}, v{mx[t]}, v{s_+2}, v{s_+3}")
    for u in range(18):
        if u + 8 < 18:
            T.lds(("k", u + 8), f"ds_read_b128 {v(vK+4*(u+8),4)}, v{vKa} offset:{(u+8)*1024}")
        T.wds(("k", u))
        for t in tiles(u):
            c = cmask(u, t)
            a(f"v_mfma_f32_16x16x32_bf16 {v(vS+((u&3)*2+t)*4,4)}, {v(vK+4*u,4)}, {v(vQ+4*t,4)}, {v(c,4) if c else 0}")
        for _ in range(-(-len(bg1) // (18 - u))):
            bg1.pop(0)()
        if u >= 2:
            maxof(u - 2)
        if MG and u == g_("vat", 12):
            nbtake("v")
    stp("p1")
    T.wvm("v")
    if MG:
        T.wds("nbv")
    if PH2:
        T.wvm("po")
    a("s_barrier")
    if PH2:
        lab = a.label("fl2")
        a(f"s_cmp_lg_u32 s{sWave}, 0")
        a(f"s_cbranch_scc1 {lab}")
        a(f"s_mul_i32 s{sT0}, s2, {FS}")
        a(f"s_add_u32 s{sT0}, s{sT0}, {GF2}")
        a("s_mov_b64 exec, 1")
        a(f"buffer_store_dword v{vNm}, off, {wsr}, s{sT0} sc1")
        a("s_mov_b64 exec, -1")
        a(f"{lab}:")
    def rdv(p):
        for dt_ in range(2):
            T.lds(("v", p), f"ds_read_b128 {v(vV+(p%3)*8+4*dt_,4)}, v{vVa} offset:{p*2048+dt_*1024}")
    rdv(0); rdv(1)
    maxof(16)
    a("s_nop 3")
    maxof(17)
    for sw in ("v_permlane32_swap_b32", "v_permlane16_swap_b32"):
        for t in range(2):
            a(f"v_mov_b32 v{vX+2+t}, v{mx[t]}")
        a("s_nop 0")
        for t in range(2):
            a(f"{sw} v{mx[t]}, v{vX+2+t}")
        a("s_nop 0")
        for t in range(2):
            a(f"v_max_f32 v{mx[t]}, v{mx[t]}, v{vX+2+t}")
    for t in range(2):
        for r in range(4):
            a(f"v_sub_f32 v{vNm+4*t+r}, 0, v{mx[t]}")
    Sr = lambda p, k, t: vS + (p & 1) * 16 + (k * 2 + t) * 4
    Pr = lambda p, t: vP + (p & 1) * 8 + t * 4
    def s2_ops(p):
        ops = []
        for k in range(2):
            u = 2 * p + k
            for t in tiles(u):
                def op(k=k, u=u, t=t):
                    c = cmask(u, t); d = Sr(p, k, t)
                    if c:
                        for r in range(4):
                            a(f"v_add_f32 v{d+r}, v{c+r}, v{vNm+4*t}")
                        a("s_nop 1")
                    a(f"v_mfma_f32_16x16x32_bf16 {v(d,4)}, {v(vK+4*u,4)}, {v(vQ+4*t,4)}, {v(d if c else vNm+4*t,4)}")
                ops.append(op)
        return ops
    def pv_ops(p):
        ops = []
        for t in range(2):
            for dt_ in range(2):
                def op(t=t, dt_=dt_):
                    T.wds(("v", p))
                    d = vO + 8 * t + 4 * dt_
                    a(f"v_mfma_f32_16x16x32_bf16 {v(d,4)}, {v(vV+(p%3)*8+4*dt_,4)}, {v(Pr(p,t),4)}, {v(d,4) if p else 0}")
                ops.append(op)
        return ops
    bg = [lambda hf=hf: touch(hf) for hf in range(2) if TA[hf] == "2"]
    for st in range(8):
        bg += wodrain_ops(st)
        if st == 3: bg += wreuse_ops("w1", 3, 0, ("wod", 2))
        if st == 5: bg += wreuse_ops("w1", 4, 1, ("wod", 4))
    bg += [xload]
    bg += wdrain_ops("w1", 0, 4)
    bg += wreuse_ops("w1", 5, 2, ("wod", 7)) + wreuse_ops("w1", 6, 3, ("wod", 7))
    bg += wdrain_ops("w1", 1, 5) + wreuse_ops("w1", 7, 4) + wdrain_ops("w1", 2, 6) + wreuse_ops("w1", 8, 5)
    bg += [bload] + wreuse_ops("w1", 9, 6)
    bg += [lambda hf=hf: touch(hf) for hf in range(2) if TA[hf] == "3"]
    stp("p2")
    nbg = -(-len(bg) // 9)
    a("s_nop 0")
    run(s2_ops(0))
    a("s_nop 7")
    for p in range(9):
        mf = (pv_ops(p - 1) if p else []) + (s2_ops(p + 1) if p < 8 else [])
        npv = 4 if p else 0
        regs = [(k, t) for k in range(2) for t in tiles(2 * p + k)]
        mybg = [bg.pop(0) for _ in range(min(nbg, len(bg)))]
        ex = [Sr(p, k, t) + r for k, t in regs for r in range(4)]
        i_m = 0
        for i, r in enumerate(ex):
            a(f"v_exp_f32 v{r}, v{r}")
            if i % 2 == 1 and mf:
                mf.pop(0)(); i_m += 1
                if i_m == npv and p + 2 < 9:
                    rdv(p + 2)
            elif mybg:
                mybg.pop(0)()
        run(mf)
        if p == 0:
            rdv(2)
            a(f"v_mov_b32 v{Pr(0,1)}, 0"); a(f"v_mov_b32 v{Pr(0,1)+1}, 0")
        if p == 8:
            a(f"v_mov_b32 v{Pr(8,0)+2}, 0"); a(f"v_mov_b32 v{Pr(8,0)+3}, 0")
        for k, t in regs:
            a(f"v_cvt_pk_bf16_f32 v{Pr(p,t)+2*k}, v{Sr(p,k,t)}, v{Sr(p,k,t)+1}")
            if mybg: mybg.pop(0)()
            a(f"v_cvt_pk_bf16_f32 v{Pr(p,t)+2*k+1}, v{Sr(p,k,t)+2}, v{Sr(p,k,t)+3}")
            if mybg: mybg.pop(0)()
        run(mybg)
    a("s_nop 1")
    run(pv_ops(8))
    a(f"s_lshl2_add_u32 s{sT0}, s{sTb}, s{sWave}")
    a(f"s_lshl4_add_u32 s{sT0}, s{sT0}, s{sH}")
    a(f"s_lshl_b32 s{sT0}, s{sT0}, 11")
    a(f"s_add_u32 s{sT0}, s{sT0}, {WS_O}")
    a("s_nop 3")
    stp("att")
    mp = f"s[{mPar}:{mPar+1}]"
    for t in range(2):
        a(f"v_cndmask_b32 v{vX+2*t}, v{vO+8*t+4}, v{vO+8*t}, {mp}")
    for sw in ("v_permlane32_swap_b32", "v_permlane16_swap_b32"):
        for t in range(2):
            a(f"v_mov_b32 v{vX+2*t+1}, v{vX+2*t}")
        a("s_nop 0")
        for t in range(2):
            a(f"{sw} v{vX+2*t}, v{vX+2*t+1}")
        a("s_nop 0")
        for t in range(2):
            a(f"v_cndmask_b32 v{vX+2*t}, v{vX+2*t+1}, v{vX+2*t}, {mp}")
    for t in range(2):
        a(f"v_rcp_f32 v{vX+2*t}, v{vX+2*t}")
    for t in range(2):
        for r in range(8):
            a(f"v_mul_f32 v{vO+8*t+r}, v{vO+8*t+r}, v{vX+2*t}")
        for r in range(4):
            a(f"v_cvt_pk_bf16_f32 v{vQ+4*t+r}, v{vO+8*t+2*r}, v{vO+8*t+2*r+1}")
        for r in range(2):
            a(f"v_cndmask_b32 v{vQ+4*t+r}, v{vQ+4*t+r}, 0, s[{mA}:{mA+1}]")
            a(f"v_cndmask_b32 v{vQ+4*t+2+r}, v{vQ+4*t+2+r}, 0, s[{mB}:{mB+1}]")
        a(f"buffer_store_dwordx4 {v(vQ+4*t,4)}, v{vSt}, {wsr}, s{sT0} offen offset:{t*256} sc1")
    stp("ost")
    if PH2:
        a(f"v_lshlrev_b32 v{vKw}, {FS.bit_length()-1}, v{vL}")
        a(f"s_mul_i32 s{sKn}, s{sWave}, {64*FS}")
        a(f"s_add_u32 s{sKn}, s{sKn}, {GF2}")
        fl2 = f"buffer_load_dword v{vSt}, v{vKw}, {wsr}, s{sKn} offen sc1"
        T.ld("fl2", fl2)
    def w2addr():
        a(f"v_lshrrev_b32 v{vX}, 3, v{vL}")
        a(f"v_lshrrev_b32 v{vX+1}, 2, v{vL}")
        a(f"v_and_b32 v{vX+1}, 4, v{vX+1}")
        a(f"v_and_b32 v{vX+2}, 7, v{vL}")
        a(f"v_xor_b32 v{vX+1}, v{vX+1}, v{vX+2}")
        a(f"v_lshlrev_b32 v{vX+1}, 4, v{vX+1}")
        waddr(vWb, P2, 448, sSt, 128)
    SL2 = [2, 0, 1, 3, 4, 5, 6]
    SL1 = [0, 1, 3, 4, 5, 6]
    NPRE = g_("npre", 3)
    t3 = [wreuse_ops("w1", 10, 0), wreuse_ops("w1", 11, 1), wreuse_ops("w2", 0, 2)] + [wreuse_ops("w1", 12 + k, 3 + k) for k in range(4)]
    w2addr()
    for k in range(7):
        run(wdrain_ops("w1", 3 + k, k))
        if 1 <= k <= NPRE:
            run(t3.pop(0))
    for r in range(2):
        a(f"v_permlane32_swap_b32 v{vXr+r}, v{vXr+2+r}")
        a(f"v_permlane32_swap_b32 v{vXr+4+r}, v{vXr+6+r}")
    if NPRE >= 7:
        run(t3.pop(0))
    def allmax(regs, d):
        a(f"v_max3_u32 v{d}, v{regs[0]}, v{regs[1]}, v{regs[2]}")
        rest = regs[3:]
        while len(rest) >= 2:
            a(f"v_max3_u32 v{d}, v{d}, v{rest[0]}, v{rest[1]}"); rest = rest[2:]
        if rest:
            a(f"v_max_u32 v{d}, v{d}, v{rest[0]}")
    slow = []
    def stream(tg, steps, init, addr, ld2, mf, bgf):
        a(f"s_mov_b32 s{sCnt}, 0")
        def issue_ops(st):
            l0, l1 = ld2(st, sO)
            return [lambda: (addr(st, sO, False), T.ld((tg, st), l0)), lambda: T.ld((tg, st), l1)]
        issued = 0
        for st in range(init):
            run(issue_ops(st)); issued += 1
        for st in range(steps):
            af = vAct + (st % DEPTH) * 8
            T.wvm((tg, st))
            a(f"v_max_u32 v{vX}, v{af+3}, v{af+7}")
            a(f"v_cmp_eq_u32 vcc, -1, v{vX}")
            a(f"s_cbranch_vccnz {name}_{tg}s{st}")
            a(f"{name}_{tg}r{st}:")
            slow.append((tg, st, issued, addr, ld2))
            if st == 0:
                stp(tg + "d")
            ops = []
            n = 0
            while issued <= min(st + DEPTH - 1, steps - 1) and n < RAMP:
                ops += issue_ops(issued); issued += 1; n += 1
            ops += bgf(st, issued == steps and n == 0)
            per = -(-len(ops) // 4)
            for nt in range(2):
                for mt in range(2):
                    mf(st, af, nt, mt)
                    for _ in range(per):
                        if ops: ops.pop(0)()
    if g_("ack", 1):
        T.vm0()
    if PH2:
        T.wvm("fl2")
        ok, lp = a.label("f2ok"), a.label("f2lp")
        a(f"s_mov_b32 s{sCnt}, 0")
        a(f"{lp}:")
        a(f"v_cmp_ne_u32 vcc, -1, v{vSt}")
        a(f"s_cbranch_vccz {ok}")
        a(fl2)
        a(f"s_add_u32 s{sCnt}, s{sCnt}, 1")
        a(f"s_cmp_lt_u32 s{sCnt}, {SPIN}")
        a("s_waitcnt vmcnt(0)")
        a(f"s_cbranch_scc1 {lp}")
        a(f"{ok}:")
    a("s_barrier")
    stp("oack")
    def addr3(st, so, force):
        if force or st % 4 == 0:
            a(f"s_add_u32 s{so}, s{sOb}, {(st//4)*4096}")
            a(f"s_add_u32 s{so+1}, s{sOb}, {32768+(st//4)*4096}")
    def ld3(st, so):
        return [f"buffer_load_dwordx4 {v(vAct+st*8+nt*4,4)}, v{vLo}, {wsr}, s{so+nt} offen offset:{(st%4)*1024} sc1" for nt in range(2)]
    def mf3(st, af, nt, mt):
        d = vAcc + (nt * 2 + mt) * 16
        a(f"v_mfma_f32_32x32x16_bf16 {v(d,16)}, {acc(192+8*st+4*mt,4)}, {v(af+nt*4,4)}, {v(d,16) if st else 0}")
    def bg3(st, free):
        return t3.pop(0) if t3 and (st >= g_("s3", 4) or 8 - st <= len(t3)) else []
    T.ds0()
    stream("o", 8, 8, addr3, ld3, mf3, bg3)
    a("s_nop 7")
    a("s_nop 0")
    stp("p3")
    join = lambda n: f"{name}_j{n}"
    def branch4(tag):
        labs = [f"{name}_{tag}{w}" for w in range(4)]
        for w in range(1, 4):
            a(f"s_cmp_eq_u32 s{sWave}, {w}")
            a(f"s_cbranch_scc1 {labs[w]}")
        return labs
    def reduce4(w, part, dst, pre=None):
        for j in [(w + 1) & 3, (w + 2) & 3, (w + 3) & 3]:
            i = (w - j - 1) & 3
            for q, r in enumerate(part(j)):
                a(f"ds_write_b128 v{vLo}, {v(r,4)} offset:{(j*3+i)*4096+q*1024}")
        own = part(w); n = len(own)
        if pre: pre(own)
        a("s_waitcnt lgkmcnt(0)")
        a("s_barrier")
        for i in range(3):
            for q in range(n):
                a(f"ds_read_b128 {v(vAct+i*16+q*4,4)}, v{vLo} offset:{(w*3+i)*4096+q*1024}")
        for i in range(3):
            a(f"s_waitcnt lgkmcnt({(2-i)*n})")
            for q in range(n):
                for e in range(4):
                    d = dst[q] + e if i == 2 else own[q] + e
                    a(f"v_add_f32 v{d}, v{own[q]+e}, v{vAct+i*16+q*4+e}")
        return n
    def part3(j):
        b = vAcc + j * 16
        return [b, b + 4, b + 8] + ([b + 12] if (j & 1) == 0 else [])
    labs = branch4("e3")
    for w in range(4):
        a(f"{labs[w]}:")
        def addx(own):
            t = vAct + 48
            for q in range(len(own)):
                xr = vXr + (0, 4, 2, 6)[q]
                a(f"v_lshlrev_b32 v{t+4*q}, 16, v{xr}")
                a(f"v_and_b32 v{t+4*q+1}, 0xffff0000, v{xr}")
                a(f"v_lshlrev_b32 v{t+4*q+2}, 16, v{xr+1}")
                a(f"v_and_b32 v{t+4*q+3}, 0xffff0000, v{xr+1}")
            for q in range(len(own)):
                for e in range(4):
                    a(f"v_add_f32 v{own[q]+e}, v{own[q]+e}, v{t+4*q+e}")
        n = reduce4(w, part3, [vH + 4 * q for q in range(4)], addx)
        xs = [vH + k for k in range(4 * n)]
        s1, s2 = vX, vX + 1
        a(f"v_add_f32 v{s1}, v{xs[0]}, v{xs[1]}")
        a(f"v_mul_f32 v{s2}, v{xs[0]}, v{xs[0]}")
        a(f"v_add_f32 v{vX+2}, v{xs[2]}, v{xs[3]}")
        a(f"v_mul_f32 v{vX+3}, v{xs[1]}, v{xs[1]}")
        for k_ in range(2, len(xs)):
            if k_ >= 4:
                a(f"v_add_f32 v{s1+2*(k_&1)}, v{s1+2*(k_&1)}, v{xs[k_]}")
            a(f"v_fmac_f32 v{s2+2*(k_&1)}, v{xs[k_]}, v{xs[k_]}")
        a(f"v_add_f32 v{s1}, v{s1}, v{vX+2}")
        a(f"v_add_f32 v{s2}, v{s2}, v{vX+3}")
        a(f"v_mov_b32 v{vX+2}, v{s1}")
        a(f"v_mov_b32 v{vX+3}, v{s2}")
        a("s_nop 1")
        a(f"v_permlane32_swap_b32 v{s1}, v{vX+2}")
        a(f"v_permlane32_swap_b32 v{s2}, v{vX+3}")
        a("s_nop 0")
        a(f"v_add_f32 v{s1}, v{s1}, v{vX+2}")
        a(f"v_add_f32 v{s2}, v{s2}, v{vX+3}")
        a("s_mov_b32 exec_hi, 0")
        a(f"buffer_store_dwordx2 {v(s1,2)}, v{vSw}, {wsr}, 0 offen sc1")
        a("s_mov_b64 exec, -1")
        if n == 3:
            for k in range(12, 16):
                a(f"v_mov_b32 v{vH+k}, 0")
        a(f"s_branch {join(3)}")
    a(f"{join(3)}:")
    T.dd = len(T.ds)
    a(f"s_mov_b32 s{sCnt}, 0")
    stp("sst")
    NW2 = g_("nw2", 4)
    t4 = [wreuse_ops("w2", gi, SL2[gi]) for gi in range(1, 7)]
    for k in range(6):
        run(wdrain_ops("w1", 10 + k, SL1[k]))
        if 1 <= k < NW2:
            run(t4.pop(0))
    if NW2 >= 7:
        run(t4.pop(0))
    def actaddr(region, steps):
        a(f"s_lshl2_add_u32 s{sT0}, s{sDt}, s{sWave}")
        a(f"s_mul_i32 s{sT0}, s{sT0}, {steps*1792}")
        a(f"s_add_u32 s{sT0}, s{sT0}, {region}")
        a(f"v_add_u32 v{vA0}, s{sT0}, v{vLo}")
        a(f"v_min_u32 v{vX}, 23, v{vDl}")
        a(f"v_mad_u32_u24 v{vX}, v{vHi}, 24, v{vX}")
        a(f"v_lshl_add_u32 v{vA1}, v{vX}, 4, s{sT0}")
        a(f"v_add_u32 v{vA1}, 1024, v{vA1}")
    actaddr(WS_HN, 32)
    if g_("ack", 1):
        T.vm0()
    stp("sack")
    tmp = vAct
    lp, ok = f"{name}_ps", f"{name}_os"
    a(f"{lp}:")
    for i in range(4):
        a(f"buffer_load_dwordx4 {v(tmp+4*i,4)}, v{vSr}, {wsr}, 0 offen offset:{i*1024} sc1")
    a(f"s_add_u32 s{sCnt}, s{sCnt}, 1")
    T.vm0()
    allmax([tmp + 2 * i + 1 for i in range(8)], vX + 2)
    a(f"v_cmp_eq_u32 vcc, -1, v{vX+2}")
    a(f"s_cbranch_vccz {ok}")
    a(f"s_cmp_lt_u32 s{sCnt}, {SPIN}")
    a(f"s_cbranch_scc1 {lp}")
    a(f"{ok}:")
    stp("sok")
    for e in range(2):
        a(f"v_add_f32 v{tmp+e}, v{tmp+e}, v{tmp+2+e}")
        a(f"v_add_f32 v{tmp+4+e}, v{tmp+4+e}, v{tmp+6+e}")
        a(f"v_add_f32 v{tmp+8+e}, v{tmp+8+e}, v{tmp+10+e}")
        a(f"v_add_f32 v{tmp+12+e}, v{tmp+12+e}, v{tmp+14+e}")
    for e in range(2):
        a(f"v_add_f32 v{tmp+e}, v{tmp+e}, v{tmp+4+e}")
        a(f"v_add_f32 v{tmp+8+e}, v{tmp+8+e}, v{tmp+12+e}")
    for e in range(2):
        a(f"v_add_f32 v{tmp+e}, v{tmp+e}, v{tmp+8+e}")
    a(f"v_mov_b32 v{tmp+2}, v{tmp}")
    a(f"v_mov_b32 v{tmp+3}, v{tmp+1}")
    a(f"v_mov_b32 v{tmp+4}, {hexf(1.0/448)}")
    a(f"v_mov_b32 v{tmp+5}, {hexf(1e-5)}")
    a(f"v_permlane32_swap_b32 v{tmp}, v{tmp+2}")
    a(f"v_permlane32_swap_b32 v{tmp+1}, v{tmp+3}")
    a("s_nop 0")
    a(f"v_add_f32 v{tmp}, v{tmp}, v{tmp+2}")
    a(f"v_add_f32 v{tmp+1}, v{tmp+1}, v{tmp+3}")
    a(f"v_mul_f32 v{tmp}, v{tmp}, v{tmp+4}")
    a(f"v_mul_f32 v{tmp+2}, v{tmp}, v{tmp}")
    a(f"v_fma_f32 v{tmp+1}, v{tmp+1}, v{tmp+4}, -v{tmp+2}")
    a(f"v_max_f32 v{tmp+1}, 0, v{tmp+1}")
    a(f"v_add_f32 v{tmp+2}, v{tmp+1}, v{tmp+5}")
    a(f"v_rsq_f32 v{tmp+2}, v{tmp+2}")
    a(f"s_lshl_b32 s{sT0}, s{sDt}, 5")
    a(f"v_mul_f32 v{tmp+3}, v{tmp+2}, v{tmp+2}")
    a(f"v_fma_f32 v{tmp+3}, v{tmp+3}, v{tmp+1}, v{tmp+5}")
    a(f"v_rsq_f32 v{tmp+3}, v{tmp+3}")
    a(f"s_add_u32 s{sT0}, s{sT0}, s{sSt}")
    a(f"v_mul_f32 v{tmp+2}, v{tmp+2}, v{tmp+3}")
    a(f"v_mul_f32 v{tmp}, v{tmp}, v{tmp+2}")
    hn = vAct + 32
    for k in range(16):
        a(f"v_fma_f32 v{hn+k}, v{vH+k}, v{tmp+2}, -v{tmp}")
    pk2 = vWf + 8
    for k in range(8):
        a(f"v_cvt_pk_bf16_f32 v{pk2+k}, v{hn+2*k}, v{hn+2*k+1}")
    tr = vAct + 16
    a(f"s_lshr_b32 s{sT1}, s{sWave}, 1")
    a(f"s_lshl1_add_u32 s{sT0}, s{sT0}, s{sT1}")
    a(f"v_mfma_f32_32x32x16_bf16 {v(tr,16)}, {v(pk2,4)}, {v(vId,4)}, 0")
    a(f"v_mfma_f32_32x32x16_bf16 {v(tr,16)}, {v(pk2+4,4)}, {v(vId+4,4)}, {v(tr,16)}")
    a(f"s_mul_i32 s{sT0}, s{sT0}, 3584")
    a(f"s_add_u32 s{sT0}, s{sT0}, {WS_HN}")
    a(f"s_bitcmp1_b32 s{sWave}, 0")
    a(f"s_cselect_b32 s{sT1}, 0x00ffffff, -1")
    a(f"s_cselect_b64 vcc, -1, 0")
    a(f"v_add_u32 v{vX}, 1024, v{vN1}")
    a("s_nop 0")
    a(f"v_cndmask_b32 v{vX}, v{vLo}, v{vX}, vcc")
    a("s_nop 5")
    for k in range(8):
        a(f"v_cvt_pk_bf16_f32 v{tmp+k}, v{tr+2*k}, v{tr+2*k+1}")
    a(f"s_mov_b32 exec_lo, s{sT1}")
    a(f"s_mov_b32 exec_hi, s{sT1}")
    a(f"buffer_store_dwordx4 {v(tmp,4)}, v{vX}, {wsr}, s{sT0} offen sc1")
    a(f"buffer_store_dwordx4 {v(tmp+4,4)}, v{vX}, {wsr}, s{sT0} offen offset:1792 sc1")
    a("s_mov_b64 exec, -1")
    stp("hn")
    T.ds0()
    for ops in t4:
        run(ops)
    a("s_barrier")
    a(f"s_cmp_eq_u32 s{sIdle}, 7")
    a(f"s_cbranch_scc1 {name}_idle")
    idle_st = st_n[0]
    def gemm(which, steps, bgf):
        tg = f"g{which}"
        if g_("ack", 1):
            T.vm0()
        stp(tg)
        def addr(st, so, force):
            if force or st % 2 == 0:
                rotoff(so, f"w{which}", st >> 1, 3584)
        def ld2(st, so):
            return [f"buffer_load_dwordx4 {v(vAct+(st%DEPTH)*8+4*k,4)}, v{(vA0,vA1)[k]}, {wsr}, s{so} offen offset:{(st&1)*1792} sc1" for k in range(2)]
        def mf(st, af, nt, mt):
            d = vAcc + (mt * 2 + nt) * 16
            c = v(d, 16) if st else "0"
            wf = acc(8 * st + 4 * mt, 4)
            if which == 1:
                a(f"v_mfma_f32_32x32x16_bf16 {v(d,16)}, {wf}, {v(af+nt*4,4)}, {c}")
            else:
                a(f"v_mfma_f32_32x32x16_bf16 {v(d,16)}, {v(af+nt*4,4)}, {wf}, {c}")
        stream(tg, steps, INIT, addr, ld2, mf, bgf)
        stp(tg + "e")
    late = []
    for gi in range(7, 14):
        late.append(wreuse_ops("w2", gi, SL2[gi - 7]))
    drs = {}
    D0 = g_("d0", 12)
    def bg4(st, free):
        ops = []
        k = st - D0
        if 0 <= k < 14:
            if k % 2 == 0:
                drs[0] = wdrain_ops("w2", k // 2, SL2[k // 2])
            ops += drs[0][(k % 2) * 4:(k % 2) * 4 + 4]
        if free and late and st >= D0 + 2 * (7 - len(late)) + 2:
            ops += late.pop(0)
        return ops
    gemm(1, 32, bg4)
    while late:
        run(late.pop(0))
    def part4(j):
        mt, t = j >> 1, j & 1
        return [vAcc + (mt * 2) * 16 + 8 * t, vAcc + (mt * 2) * 16 + 8 * t + 4,
                vAcc + (mt * 2 + 1) * 16 + 8 * t, vAcc + (mt * 2 + 1) * 16 + 8 * t + 4]
    labs = branch4("e4")
    for w in range(4):
        a(f"{labs[w]}:")
        t = vAct + 48
        def addb(own):
            for e in range(4):
                a(f"v_lshlrev_b32 v{t+2*e}, 16, v{vB1+e}")
                a(f"v_and_b32 v{t+2*e+1}, 0xffff0000, v{vB1+e}")
            for i_, x in enumerate([own[q] + e for q in range(4) for e in range(4)]):
                a(f"v_add_f32 v{x}, v{x}, v{t+(i_&7)}")
        a("s_nop 7")
        reduce4(w, part4, [vAct + 64 + 4 * q for q in range(4)], addb)
        if w < 3:
            a(f"s_branch {join(4)}")
    a(f"{join(4)}:")
    T.dd = len(T.ds)
    xs = [vAct + 64 + k for k in range(16)]
    z = vAct
    a(f"v_mov_b32 v{vX}, s{sC1}")
    for i_, x in enumerate(xs):
        a(f"v_mul_f32 v{z+i_}, v{x}, v{x}")
    for i_, x in enumerate(xs):
        a(f"v_fma_f32 v{z+i_}, v{z+i_}, s{sC2}, v{vX}")
    for i_, x in enumerate(xs):
        a(f"v_mul_f32 v{z+i_}, v{z+i_}, v{x}")
    for i_, x in enumerate(xs):
        a(f"v_exp_f32 v{z+i_}, v{z+i_}")
    for i_, x in enumerate(xs):
        a(f"v_add_f32 v{z+i_}, 1.0, v{z+i_}")
    for i_, x in enumerate(xs):
        a(f"v_rcp_f32 v{z+i_}, v{z+i_}")
    a(f"s_mul_i32 s{sT0}, s{sDt}, 28")
    a(f"s_add_u32 s{sT0}, s{sT0}, s{sFt}")
    a(f"s_lshl2_add_u32 s{sT0}, s{sT0}, s{sWave}")
    a(f"s_mul_i32 s{sT0}, s{sT0}, 1792")
    a(f"s_add_u32 s{sT0}, s{sT0}, {WS_UF}")
    for i_, x in enumerate(xs):
        a(f"v_mul_f32 v{x}, v{x}, v{z+i_}")
    pk = vWf
    for i_ in range(8):
        a(f"v_cvt_pk_bf16_f32 v{pk+i_}, v{xs[2*i_]}, v{xs[2*i_+1]}")
    a(f"buffer_store_dwordx4 {v(pk,4)}, v{vLo}, {wsr}, s{sT0} offen sc1")
    a("s_mov_b32 exec_lo, 0x00ffffff")
    a("s_mov_b32 exec_hi, 0x00ffffff")
    a(f"buffer_store_dwordx4 {v(pk+4,4)}, v{vN1}, {wsr}, s{sT0} offen offset:1024 sc1")
    a("s_mov_b64 exec, -1")
    stp("ust")
    idle_e = st_n[0]
    a(f"{join(5)}:")
    actaddr(WS_UF, 28)
    a("s_barrier")
    drs.clear()
    def bg5(st, free):
        if st < 14:
            if st % 2 == 0:
                drs[0] = wdrain_ops("w2", 7 + st // 2, SL2[st // 2])
            return drs[0][(st % 2) * 4:(st % 2) * 4 + 4]
        if st == 13 + 1:
            pass
        return []
    T.vm0()
    class G5:
        pass
    _bg5 = bg5
    def bg5w(st, free):
        ops = _bg5(st, free)
        if st == 13:
            ops = ops + [T.ds0]
        return ops
    gemm(2, 28, bg5w)
    def part5(j):
        b = vAcc + j * 16
        return [b, b + 4, b + 8] + ([b + 12] if (j & 1) == 0 else [])
    labs = branch4("e5")
    for w in range(4):
        a(f"{labs[w]}:")
        def addh(own):
            a(f"v_lshlrev_b32 v{vB2}, 16, v{vB2}")
            for q in range(len(own)):
                for e in range(4):
                    a(f"v_add_f32 v{vH+4*q+e}, v{vH+4*q+e}, v{vB2}")
            for q in range(len(own)):
                for e in range(4):
                    a(f"v_add_f32 v{own[q]+e}, v{own[q]+e}, v{vH+4*q+e}")
        a("s_nop 7")
        n = reduce4(w, part5, [vH + 4 * q for q in range(4)], addh)
        for q in range(n):
            a(f"v_cvt_pk_bf16_f32 v{pk+2*q}, v{vH+4*q}, v{vH+4*q+1}")
            a(f"v_cvt_pk_bf16_f32 v{pk+2*q+1}, v{vH+4*q+2}, v{vH+4*q+3}")
        a("s_nop 1")
        for p in range(2):
            a(f"v_permlane32_swap_b32 v{pk+4*p}, v{pk+4*p+2}")
            a(f"v_permlane32_swap_b32 v{pk+4*p+1}, v{pk+4*p+3}")
        a(f"buffer_store_dwordx4 {v(pk,4)}, v{vOs}, s[{rOut}:{rOut+3}], 0 offen")
        if n == 3:
            a("s_mov_b32 exec_hi, 0")
        a(f"buffer_store_dwordx4 {v(pk+4,4)}, v{vOs}, s[{rOut}:{rOut+3}], 0 offen offset:32")
        if diag:
            a("s_mov_b64 exec, -1")
            a("s_waitcnt vmcnt(0)")
            stamp(a, st_n[0], sTS, diag, kidx)
            stamp_flush(a, st_n[0] + 1, sTS, sWS, sWave, kidx, vX, diag)
        a("s_endpgm")
    a(f"{name}_idle:")
    T2 = T
    T.vm = []; T.vd = 0; T.ds = []; T.dd = 0
    a("s_waitcnt vmcnt(0)")
    T.vm += [("w2", gi) for gi in range(7)]
    T.vd = 7
    IDT = g_("idt", 1)
    if IDT:
        a(f"s_and_b32 s{sT0}, s{sDt}, 3")
        a(f"s_mul_i32 s{sT0}, s{sT0}, 448")
        a(f"s_mul_i32 s{sT1}, s{sWave}, {28*IDT}")
        a(f"s_add_u32 s{sT0}, s{sT0}, s{sT1}")
        if IDT == 1:
            a(f"s_lshr_b32 s{sT1}, s{sDt}, 2")
            a(f"s_mul_i32 s{sT1}, s{sT1}, 112")
            a(f"s_add_u32 s{sT0}, s{sT0}, s{sT1}")
        a(f"s_add_u32 s{sT0}, s{sT0}, 224")
        a(f"s_lshl_b32 s{sT0}, s{sT0}, 2")
        a(f"s_lshr_b32 s{sT1}, s{sSt}, 3")
        a(f"s_add_u32 s{sT0}, s{sT0}, s{sT1}")
        a(f"s_lshl_b32 s{sT0}, s{sT0}, 10")
        a(f"v_lshrrev_b32 v{vX}, 3, v{vL}")
        a(f"v_lshlrev_b32 v{vX}, 12, v{vX}")
        a(f"v_and_b32 v{vX+1}, 7, v{vL}")
        a(f"v_lshl_add_u32 v{vX}, v{vX+1}, 7, v{vX}")
        for k, r0 in enumerate((0, 8, 16, 20) if IDT == 1 else range(0, 56, 8)):
            a(f"s_add_u32 s{sT1}, s{sT0}, {r0*P2}")
            T.ld("pf", f"buffer_load_dword v{vAct+k}, v{vX}, s[{rW2}:{rW2+3}], s{sT1} offen")
    for gi in range(7):
        run(wdrain_ops("w2", gi, SL2[gi]))
    for gi in range(7):
        run(wreuse_ops("w2", 7 + gi, SL2[gi]))
    if diag:
        for k in range(idle_st, idle_e):
            stamp(a, k, sTS, diag, kidx)
    a(f"s_branch {join(5)}")
    for tg, st, issued, addr, ld2 in slow:
        af = vAct + (st % DEPTH) * 8
        a(f"{name}_{tg}s{st}:")
        for s2 in range(st, min(issued, st + g_("nre", 12))):
            addr(s2, sT0, s2 == st)
            for l in ld2(s2, sT0):
                a(l)
        a(f"s_add_u32 s{sCnt}, s{sCnt}, 1")
        a(f"s_cmp_ge_u32 s{sCnt}, {SPIN}")
        a("s_waitcnt vmcnt(0)")
        a(f"s_cbranch_scc1 {name}_{tg}r{st}")
        a(f"v_max_u32 v{vX}, v{af+3}, v{af+7}")
        a(f"v_cmp_eq_u32 vcc, -1, v{vX}")
        a(f"s_cbranch_vccnz {name}_{tg}s{st}")
        a(f"s_branch {name}_{tg}r{st}")
    for kv, r0 in nbslow:
        a(f"{name}_nb{kv}:")
        a(f"s_mov_b32 s{sCnt}, 0")
        a(f"{name}_nl{kv}:")
        for l in (nbk if kv == "k" else nbv):
            a(l)
        a(f"s_add_u32 s{sCnt}, s{sCnt}, 1")
        a(f"s_cmp_ge_u32 s{sCnt}, {SPIN}")
        a("s_waitcnt vmcnt(0)")
        a(f"s_cbranch_scc1 {name}_nr{kv}")
        a(f"v_max3_u32 v{vX+4}, v{r0+3}, v{r0+7}, v{r0+11}")
        a(f"v_max_u32 v{vX+4}, v{vX+4}, v{r0+15}")
        a(f"v_cmp_eq_u32 vcc, -1, v{vX+4}")
        a(f"s_cbranch_vccnz {name}_nl{kv}")
        a(f"s_branch {name}_nr{kv}")
    a(f"{done}:")
    a("s_endpgm")
    print("fused: vgprs", R.hi, "stamps", list(enumerate(used)))
    return dict(name=name, grid=256, block=256, lds=LDS, vgprs=256, agprs=256)
```

```python
import math
from asmlib import *
from layout import *
from gemm import stamp as stamp0, stamp_flush, pf_setup, pf_issue

def qkv_kernel(a, name, diag=False, kidx=0, opts={}, mg=None):
    NWG = 256
    CH = 12800
    XB = 7 * CH
    CSB = XB + 4 * 16384
    PRV = CSB + 1536
    LDS = PRV + 4 * 512
    PITCH = 2688
    tbx = int(opts.get("k1tb", 4))
    rot = int(opts.get("k1rot", 1))
    sX, sW, sWS = 4, 6, 8
    rX, rW, rQ, rF = 12, 16, 20, 24
    sWave, sH, sTb, sWb, sXb, sT0, sT1 = 28, 29, 30, 31, 32, 33, 34
    sOX, sOW = 36, 44
    OX = [sOX + c for c in range(7)]; OW = [sOW + c for c in range(7)]
    pfp = lambda i: 82 + 2 * i
    if mg:
        sX, sW, sWS = 8, 10, 4
        rX, rW, rQ, rD = 28, 32, 12, 84
        sWave, sH, sTb, sWb, sXb, sT0, sT1 = 36, 40, 41, 44, 45, 42, 43
        OX = [37, 38, 39, 47, 48, 49, 50]; OW = [46] * 7
        sKo, sVo, sFo, sZ = 82, 83, 51, 3
        pfp = lambda i: dict(w1=16, w2=20, w2a=20, wo=24)[pf[i]]
    mPar, mA, mB, mEx, mPadV = 52, 54, 56, 58, 70
    mb = [72, 74, 76, 78, 80]
    sTS = 60
    R = Regs(1)
    vL = R.get(); vHi = R.get(); vTok = R.get()
    vWo = R.get(); vXo = R.get(4)
    vXa = R.get(4); vQa = R.get(4); vKa = R.get()
    vT = R.get(8, 2)
    vSel = R.get(4, 4)
    vCs = R.get(12, 4)
    vQ = R.get(16, 4); vK = R.get(16, 4); vV = R.get(16, 4); vG = R.get(16, 4)
    vXf = R.get(32, 4)
    vWf = R.get(24, 4)
    vE = R.get(64, 4)
    pf = [x for x in opts.get('pf1', '').split(',') if x]
    pfat = [int(z) for z in str(opts.get('pf1at', 10)).split(",")]
    vPf = R.get(8)
    vPo = R.get(6, 4)
    done = f"{name}_done"
    vFl = R.get()
    if mg:
        stamp = lambda a_, i, *k: mg(["", "xi", "x0", "xe"][i])
    else:
        stamp = stamp0
        kernel_header(a, name)
        a(f"s_cmp_ge_u32 s2, {NWG}")
        a(f"s_cbranch_scc1 {done}")
        stamp(a, 0, sTS, diag, kidx)
    a(f"s_load_dwordx4 s[{sX}:{sX+3}], s[0:1], {KA_X}")
    a(f"s_load_dwordx2 s[{sWS}:{sWS+1}], s[0:1], {KA_WS}")
    if mg:
        a(f"s_load_dwordx4 s[16:19], s[0:1], {KA_W1}")
        a(f"s_load_dwordx4 s[20:23], s[0:1], {KA_W2}")
        a(f"s_load_dwordx2 s[24:25], s[0:1], {KA_WO}")
        a(f"s_load_dwordx4 s[96:99], s[0:1], {KA_OUT}")
    else:
        for i, w_ in enumerate(pf):
            pf_setup(a, w_, 82 + 2 * i)
    a(f"v_lshrrev_b32 v{vT}, 6, v0")
    a(f"v_and_b32 v{vL}, 63, v0")
    a(f"v_readfirstlane_b32 s{sWave}, v{vT}")
    nx = 16 // tbx
    hx = 8 // nx
    lg = lambda n: n.bit_length() - 1
    a(f"s_and_b32 s{sT0}, s2, 7")
    a(f"s_lshr_b32 s{sT1}, s2, 3")
    a(f"s_lshr_b32 s{sTb}, s{sT0}, {lg(hx)}")
    a(f"s_lshl_b32 s{sTb}, s{sTb}, {lg(tbx)}")
    a(f"s_and_b32 s{sH}, s{sT1}, {tbx-1}")
    a(f"s_add_u32 s{sTb}, s{sTb}, s{sH}")
    a(f"s_and_b32 s{sH}, s{sT0}, {hx-1}")
    a(f"s_lshl_b32 s{sH}, s{sH}, {lg(16//hx)}")
    a(f"s_lshr_b32 s{sT1}, s{sT1}, {lg(tbx)}")
    a(f"s_add_u32 s{sH}, s{sH}, s{sT1}")
    if rot:
        a(f"s_and_b32 s{sT0}, s{sH}, 7")
        a(f"s_cmp_eq_u32 s{sT0}, 7")
        a(f"s_cselect_b32 s{sT0}, 3, s{sT0}")
    else:
        a(f"s_mov_b32 s{sT0}, 0")
    for c in range(7):
        a(f"s_lshl_b32 s{OX[c]}, s{sT0}, 7")
        if not mg:
            a(f"s_mul_i32 s{OW[c]}, s{sT0}, {64*PITCH}")
        if c < 6:
            a(f"s_add_u32 s{sT0}, s{sT0}, 1")
            a(f"s_cmp_eq_u32 s{sT0}, 7")
            a(f"s_cselect_b32 s{sT0}, 0, s{sT0}")
    a(f"s_mul_i32 s{sT0}, s{sH}, 56")
    a(f"s_and_b32 s{sT1}, s{sH}, 1")
    a(f"s_lshl_b32 s{sT1}, s{sT1}, 3")
    a(f"s_sub_u32 s{sT0}, s{sT0}, s{sT1}")
    a(f"s_mul_i32 s{sT1}, s{sWave}, {16*PITCH}")
    a(f"s_add_u32 s{sT0}, s{sT0}, s{sT1}")
    a(f"v_lshrrev_b32 v{vT}, 2, v{vL}")
    a(f"v_mul_u32_u24 v{vT}, {PITCH}, v{vT}")
    a(f"v_and_b32 v{vT+1}, 3, v{vL}")
    a(f"v_lshlrev_b32 v{vT+1}, 4, v{vT+1}")
    a(f"v_add3_u32 v{vWo}, v{vT}, v{vT+1}, s{sT0}")
    a(f"s_lshl_b32 s{sT0}, s{sTb}, 2")
    a(f"s_add_u32 s{sT0}, s{sT0}, s{sWave}")
    a(f"s_mul_i32 s{sT0}, s{sT0}, {32*896}")
    a(f"v_lshrrev_b32 v{vT}, 3, v{vL}")
    a(f"v_mul_u32_u24 v{vT}, 896, v{vT}")
    a(f"v_lshrrev_b32 v{vT+1}, 4, v{vL}")
    a(f"v_and_b32 v{vT+2}, 7, v{vL}")
    a(f"v_xor_b32 v{vT+1}, v{vT+1}, v{vT+2}")
    a(f"v_lshlrev_b32 v{vT+1}, 4, v{vT+1}")
    a(f"v_add3_u32 v{vXo}, v{vT}, v{vT+1}, s{sT0}")
    a(f"v_xor_b32 v{vT+1}, 64, v{vT+1}")
    a(f"v_add3_u32 v{vXo+1}, v{vT}, v{vT+1}, s{sT0}")
    a(f"v_add_u32 v{vXo+2}, {2*(8*896-1024)}, v{vXo}")
    a(f"v_add_u32 v{vXo+1}, {8*896-1024}, v{vXo+1}")
    a(f"v_add_u32 v{vXo+3}, {2*(8*896-1024)}, v{vXo+1}")
    a(f"s_mul_i32 s{sWb}, s{sWave}, 3072")
    a(f"s_lshl_b32 s{sXb}, s{sWave}, 14")
    a(f"s_add_u32 s{sXb}, s{sXb}, {XB}")
    a("s_waitcnt lgkmcnt(0)")
    srd(a, rX, sX, S * D * 2)
    srd(a, rW, sW, D * 3 * D * 2)

    order = []
    def issueW(c):
        if mg:
            a(f"s_mul_i32 s{OW[c]}, s{OX[c]}, {PITCH//2}")
        for t in range(3):
            a(f"s_add_u32 m0, s{sWb}, {c*CH + t*128}")
            a("s_nop 0")
            a(f"buffer_load_dwordx4 v{vWo}, s[{rW}:{rW+3}], s{OW[c]} offen offset:{t*896} lds")
            order.append(c)
    def issueX(c):
        a(f"s_add_u32 m0, s{sXb}, {(c&3)*4096}")
        a("s_nop 0")
        for i in range(4):
            a(f"buffer_load_dwordx4 v{vXo+i}, s[{rX}:{rX+3}], s{OX[c]} offen offset:{i*1024} lds")
            order.append(c)
    def waitchunk(*c):
        last = max(i for i, t in enumerate(order) if t in c)
        a(f"s_waitcnt vmcnt({min(63, len(order)-1-last)})")
    if mg:
        FS = int(opts.get("fs", 64)); GF = WS_FL + 512 * 1024
        srd(a, rQ, sWS, 16 * MB)
        srd(a, rD, 98, 256)
        a(f"s_lshl2_add_u32 s{sZ}, s2, s{sWave}")
        a(f"v_lshlrev_b32 v{vPo+4}, 4, v{vL}")
        lab = a.label("k1z")
        a(f"s_cmp_lg_u32 s{sZ}, 0")
        a(f"s_cbranch_scc1 {lab}")
        for e in range(4):
            a(f"v_mov_b32 v{vPo+e}, 0")
        for i in range(FS // 2):
            if i % 4 == 0:
                a(f"s_mov_b32 s{sVo}, {GF + i*1024}")
            a(f"buffer_store_dwordx4 {v(vPo,4)}, v{vPo+4}, s[{rQ}:{rQ+3}], s{sVo} offen offset:{(i%4)*1024} sc1")
        a(f"{lab}:")
    PO0 = int(opts.get("po0", -2 if mg else 24))
    NI = int(opts.get("ni", 2 if mg else 0))
    def kvaddr():
        a(f"s_mul_i32 s{sKo}, s{sH}, {HSTR}")
        a(f"s_lshl2_add_u32 s{sT0}, s{sTb}, s{sWave}")
        a(f"s_lshl_b32 s{sT0}, s{sT0}, 11")
        a(f"s_add_u32 s{sKo}, s{sKo}, s{sT0}")
        a(f"s_add_u32 s{sVo}, s{sKo}, {WS_VF + 16384}")
        a(f"s_add_u32 s{sKo}, s{sKo}, {WS_KF + 16384}")
        return [f"buffer_store_dwordx4 {v(vPo,4)}, v{vPo+4}, s[{rQ}:{rQ+3}], s{so} offen offset:{o} sc1" for so in (sKo, sVo) for o in (0, 1024)]
    if mg:
        kvpo = kvaddr()
        for e in range(4):
            a(f"v_mov_b32 v{vPo+e}, -1")
        if PO0 == -2:
            for x_ in kvpo:
                a(x_); order.append(-2)
    pend = []
    def opW(c, t):
        if mg and t == 0:
            a(f"s_mul_i32 s{OW[c]}, s{OX[c]}, {PITCH//2}")
        a(f"s_add_u32 m0, s{sWb}, {c*CH + t*128}")
        a("s_nop 0")
        a(f"buffer_load_dwordx4 v{vWo}, s[{rW}:{rW+3}], s{OW[c]} offen offset:{t*896} lds")
        order.append(c)
    def opX(c, i):
        a(f"s_add_u32 m0, s{sXb}, {(c&3)*4096}")
        a("s_nop 0")
        a(f"buffer_load_dwordx4 v{vXo+i}, s[{rX}:{rX+3}], s{OX[c]} offen offset:{i*1024} lds")
        order.append(c)
    for c in range(NI, 7 if NI else 0):
        pend += [(c, opW, 0), (c, opX, 0), (c, opW, 1), (c, opX, 1), (c, opW, 2), (c, opX, 2), (c, opX, 3)]
    def ramp(s_, slot):
        n = 7 * (s_ // 4 + 1) - 7 + (2, 4, 6, 7)[s_ & 3] - (1 - slot)
        while pend and 7 * (7 - NI) - len(pend) < n and s_ >= 4 * (pend[0][0] - 4) + 1:
            c, f, i = pend.pop(0); f(c, i)
    for c in range(NI or 4):
        issueX(c); issueW(c)
        if mg and c == int(opts.get("goat", 1)):
            lab = a.label("k1go")
            a(f"s_cmp_lg_u32 s{sZ}, 0")
            a(f"s_cbranch_scc1 {lab}")
            a(f"v_mov_b32 v{vFl}, -1")
            a(f"s_waitcnt vmcnt({len(order)})")
            a("s_mov_b64 exec, 1")
            a(f"buffer_store_dword v{vFl}, off, s[{rD}:{rD+3}], 0 sc1")
            a("s_mov_b64 exec, -1")
            a(f"{lab}:")
    for c in range(4, 0 if NI else 7):
        issueW(c)
    stamp(a, 1, sTS, diag)
    if not mg:
        srd(a, rQ, sWS, 16 * MB)
    a(f"v_lshrrev_b32 v{vHi}, 5, v{vL}")
    a(f"v_and_b32 v{vTok}, 31, v{vL}")
    a(f"v_lshrrev_b32 v{vT}, 5, v0")
    a(f"v_mul_u32_u24 v{vT}, {CH}, v{vT}")
    a(f"v_lshl_add_u32 v{vT}, v{vTok}, 4, v{vT}")
    for e in range(4):
        a(f"v_mov_b32 v{vSel+e}, 0x3f803f80")
    a(f"v_cmp_gt_u32 vcc, 224, v0")
    a(f"s_and_saveexec_b64 s[{mEx}:{mEx+1}], vcc")
    a(f"ds_write_b128 v{vT}, {v(vSel,4)} offset:12288")
    a(f"s_mov_b64 exec, s[{mEx}:{mEx+1}]")
    a(f"v_bfe_u32 v{vT}, v{vL}, 1, 3")
    a(f"v_xor_b32 v{vT}, v{vT}, v{vHi}")
    a(f"v_lshlrev_b32 v{vT}, 4, v{vT}")
    a(f"v_lshl_add_u32 v{vT+1}, v{vTok}, 7, s{sXb}")
    for j in range(4):
        a(f"v_xor_b32 v{vT+2}, {32*j}, v{vT}")
        a(f"v_add_u32 v{vXa+j}, v{vT+2}, v{vT+1}")
    a(f"v_bfe_u32 v{vT}, v{vL}, 2, 2")
    a(f"v_lshlrev_b32 v{vT}, 6, v{vT}")
    a(f"v_bfe_u32 v{vT+1}, v{vL}, 4, 1")
    a(f"v_and_b32 v{vT+2}, 3, v{vL}")
    a(f"v_lshlrev_b32 v{vT+2}, 3, v{vT+2}")
    a(f"v_lshl_add_u32 v{vT+1}, v{vT+1}, 5, v{vT+2}")
    a(f"v_add_u32 v{vT}, v{vT}, v{vT+1}")
    a(f"v_lshl_add_u32 v{vKa}, v{vHi}, 9, v{vT}")
    a(f"v_add_u32 v{vT}, 12288, v{vT}")
    a(f"s_and_b32 s{sT0}, s{sH}, 1")
    a(f"s_cmp_eq_u32 s{sT0}, 1")
    a(f"s_cselect_b32 s{sT1}, 0, 0x13")
    a(f"s_cselect_b64 s[{mPar}:{mPar+1}], -1, 0")
    a(f"s_cselect_b32 s{mA}, -1, 0")
    a(f"s_mov_b32 s{mA+1}, 0")
    a(f"s_mov_b32 s{mB}, 0")
    a(f"s_cselect_b32 s{mB+1}, 0, -1")
    a(f"s_cselect_b32 s{mPadV}, 0x0000000f, 0xf0000000")
    a(f"s_mov_b32 s{mPadV+1}, s{mPadV}")
    a(f"v_and_b32 v{vT+1}, 0x13, v{vL}")
    a(f"v_cmp_eq_u32 vcc, s{sT1}, v{vT+1}")
    a("s_nop 0")
    for j in range(4):
        a(f"v_add_u32 v{vT+2}, {j*3072}, v{vKa}")
        a(f"v_cndmask_b32 v{vQa+j}, v{vT+2}, v{vT}, vcc")
    a(f"v_and_b32 v{vT}, 15, v{vL}")
    a(f"v_bfe_u32 v{vT+1}, v{vL}, 4, 1")
    a(f"v_cmp_eq_u32 vcc, v{vT}, v{vT+1}")
    a("s_waitcnt lgkmcnt(0)")
    a("s_nop 1")
    for e in range(4):
        a(f"v_cndmask_b32 v{vSel+e}, 0, v{vSel+e}, vcc")
    for i, bit in enumerate((0, 1, 3, 4, 2)):
        pat = sum(1 << l for l in range(32) if (l >> bit) & 1)
        a(f"s_mov_b32 s{mb[i]}, 0x{pat:08x}")
        a(f"s_mov_b32 s{mb[i]+1}, 0x{pat:08x}")
    def rd_x(c, j):
        a(f"ds_read_b128 {v(vXf+(c&1)*16+4*j,4)}, v{vXa+j} offset:{(c&3)*4096}")
    def rd_w(s_, t, p):
        c, j = s_ >> 2, s_ & 3
        cc = c if c < 5 else c - 5
        d = vWf + (s_ & 1) * 12 + t * 4 + 2 * p
        if t == 0:
            a(f"ds_read_b64_tr_b16 {v(d,2)}, v{vQa+j} offset:{cc*CH+p*256}")
        else:
            a(f"ds_read_b64_tr_b16 {v(d,2)}, v{vKa} offset:{cc*CH+j*3072+t*1024+p*256}")
    sPo = 86 if mg else 82 + 6
    a(f"s_lshl_b32 s{sPo+8}, s2, 2")
    a(f"s_add_u32 s{sPo+8}, s{sPo+8}, s{sWave}")
    for e in range(4):
        a(f"v_mov_b32 v{vPo+e}, -1")
    a(f"v_lshlrev_b32 v{vPo+4}, 4, v{vL}")
    a(f"v_lshlrev_b32 v{vPo+5}, 2, v{vL}")
    def po(base, per, offs):
        r = [f"s_mul_i32 s{sPo+9}, s{sPo+8}, {per}", f"s_add_u32 s{sPo+9}, s{sPo+9}, {base}"]
        return r + [f"buffer_store_dwordx4 {v(vPo,4)}, v{vPo+4}, s[{rQ}:{rQ+3}], s{sPo+9} offen offset:{o} sc1" for o in offs]
    polist = [po(WS_O, 2048, (0, 1024)), po(WS_HN, 1792, (0, 768)), po(WS_UF, 1568, (0, 544))]
    polist.append(["s_mov_b64 exec, 0xffff"] + po(WS_FL, 256, (0,)) + ["s_mov_b64 exec, -1"])
    if mg:
        if int(opts.get("p2", 1)):
            polist.clear()
        if PO0 != -2:
            polist.insert(0, kvpo)
        PON = int(opts.get("pon", 5))
        FLS = int(opts.get("fls", 7))
        gold = f"buffer_load_dword v{vFl}, off, s[{rD}:{rD+3}], 0 sc1"
        a(f"v_lshlrev_b32 v{vPo+5}, {lg(FS)}, v{vL}")
        a(f"s_mul_i32 s{sFo}, s{sWave}, {64*FS}")
        a(f"s_add_u32 s{sFo}, s{sFo}, {GF}")
        flld = f"buffer_load_dword v{vFl}, v{vPo+5}, s[{rQ}:{rQ+3}], s{sFo} offen sc1"
        def spin(ld):
            ok, lp = a.label("k1ok"), a.label("k1lp")
            a(f"s_mov_b32 s{sT0}, 0")
            a(f"{lp}:")
            a(f"v_cmp_ne_u32 vcc, -1, v{vFl}")
            a(f"s_cbranch_vccz {ok}")
            a(ld)
            a(f"s_add_u32 s{sT0}, s{sT0}, 1")
            a(f"s_cmp_lt_u32 s{sT0}, 20000")
            a("s_waitcnt vmcnt(0)")
            a(f"s_cbranch_scc1 {lp}")
            a(f"{ok}:")
    def poison(n):
        for _ in range(n):
            if polist:
                for x_ in polist.pop(0):
                    a(x_)
                    if mg and x_.startswith("buffer"):
                        order.append(-2)
    if PO0 == -1:
        poison(PON)
    for i, w_ in enumerate(pf):
        if pfat[min(i, len(pfat) - 1)] == -1:
            order.extend([-1] * pf_issue(a, w_, pfp(i), 88, 92, sWave, vL, vPf, vPf + 2 + 2 * i))
    waitchunk(0)
    a("s_barrier")
    stamp(a, 2, sTS, diag)
    rd_x(0, 0); rd_x(0, 1)
    for t in range(3):
        rd_w(0, t, 0); rd_w(0, t, 1)
    rd_x(0, 2); rd_x(0, 3)
    for s_ in range(28):
        c, j = s_ >> 2, s_ & 3
        xf = v(vXf + (c & 1) * 16 + 4 * j, 4)
        wf = [v(vWf + (s_ & 1) * 12 + 4 * t, 4) for t in range(3)]
        cz = lambda r, n=16: "0" if s_ == 0 else v(r, n)
        nxt = s_ + 1 < 28
        newc = nxt and j == 3
        if j == 0:
            a("s_waitcnt lgkmcnt(8)")
        a(f"v_mfma_f32_32x32x16_bf16 {v(vG,16)}, {xf}, {xf}, {cz(vG)}")
        if newc:
            if mg and s_ == FLS:
                assert not polist
                waitchunk(c + 1, -2)
            else:
                waitchunk(c + 1)
            if c + 1 == 5:
                for r in [vKa] + [vQa + i for i in range(4)]:
                    a(f"v_add_u32 v{r}, {5*CH}, v{r}")
            a("s_waitcnt lgkmcnt(0)")
            a("s_barrier")
            rd_x(c + 1, 0); rd_x(c + 1, 1)
            if mg and s_ == FLS:
                lab = a.label("k1fl")
                a(f"s_cmp_lg_u32 s{sWave}, 0")
                a(f"s_cbranch_scc1 {lab}")
                spin(gold)
                a(f"s_mul_i32 s{sT0}, s2, {FS}")
                a(f"s_add_u32 s{sT0}, s{sT0}, {GF}")
                a("s_mov_b64 exec, 1")
                a(f"buffer_store_dword v{vPo}, off, s[{rQ}:{rQ+3}], s{sT0} sc1")
                a("s_mov_b64 exec, -1")
                a(f"{lab}:")
        else:
            a(f"s_waitcnt lgkmcnt({2 if j == 0 else 0})")
        if nxt:
            rd_w(s_ + 1, 0, 0); rd_w(s_ + 1, 0, 1)
        a(f"v_mfma_f32_32x32x16_bf16 {v(vQ,16)}, {wf[0]}, {xf}, {cz(vQ)}")
        if nxt:
            rd_w(s_ + 1, 1, 0); rd_w(s_ + 1, 1, 1)
        if j == 1 and c + 4 < 7 and not NI:
            issueX(c + 4)
        ramp(s_, 0)
        a(f"v_mfma_f32_32x32x16_bf16 {v(vK,16)}, {wf[1]}, {xf}, {cz(vK)}")
        if nxt:
            rd_w(s_ + 1, 2, 0); rd_w(s_ + 1, 2, 1)
        if newc:
            rd_x(c + 1, 2); rd_x(c + 1, 3)
        a(f"v_mfma_f32_32x32x16_bf16 {v(vV,16)}, {xf}, {wf[2]}, {cz(vV)}")
        ramp(s_, 1)
        if mg and s_ == int(opts.get("gol", 3)):
            a(gold); order.append(-2)
        for i, w_ in enumerate(pf):
            if s_ == pfat[min(i, len(pfat) - 1)]:
                n_ = pf_issue(a, w_, pfp(i), 88, 92, sWave, vL, vPf, vPf + 2 + 2 * i, half=w_ in opts.get("pfh", "").split(","))
                order.extend([-1] * n_)
        if s_ >= PO0:
            poison(PON if mg else 1)
        if mg and s_ == int(opts.get("flat", 24)):
            a(flld)
        lab = a.label("k1cs")
        a(f"s_cmp_lg_u32 s{sWave}, {j}")
        a(f"s_cbranch_scc1 {lab}")
        for t in range(3):
            cs = "0" if c == 0 else v(vCs + 4 * t, 4)
            a(f"v_mfma_f32_16x16x32_bf16 {v(vCs+4*t,4)}, {v(vSel,4)}, {wf[t]}, {cs}")
        a(f"{lab}:")
    stamp(a, 3, sTS, diag)
    a(f"s_lshl_b32 s{sT0}, s{sWave}, 2")
    a(f"s_add_u32 s{sT0}, s{sT0}, {CSB}")
    a(f"v_lshl_add_u32 v{vT}, v{vL}, 4, s{sT0}")
    a(f"v_lshlrev_b32 v{vT+1}, 4, v{vL}")
    a(f"v_add_u32 v{vT+1}, {CSB}, v{vT+1}")
    a(f"v_lshlrev_b32 v{vT+2}, 4, v{vTok}")
    a(f"v_add_u32 v{vT+2}, {CSB+1024}, v{vT+2}")
    a(f"s_lshl_b32 s{sT0}, s{sWave}, 9")
    a(f"s_add_u32 s{sT0}, s{sT0}, {PRV}")
    a(f"v_lshl_add_u32 v{vT+3}, v{vL}, 2, s{sT0}")
    a(f"v_lshl_add_u32 v{vT+4}, v{vTok}, 2, s{sT0}")
    a(f"v_lshl_add_u32 v{vT+5}, v{vHi}, 4, s{sT0}")
    a("s_mov_b64 exec, 0xffff")
    for t in range(3):
        a(f"ds_write_b32 v{vT}, v{vCs+4*t} offset:{t*512}")
        a(f"ds_write_b32 v{vT}, v{vCs+4*t+1} offset:{t*512+256}")
    a("s_mov_b64 exec, -1")
    g = vG
    for i in range(8):
        a(f"v_cndmask_b32 v{g+2*i}, v{g+2*i}, v{g+2*i+1}, s[{mb[0]}:{mb[0]+1}]")
    for i in range(4):
        a(f"v_cndmask_b32 v{g+4*i}, v{g+4*i}, v{g+4*i+2}, s[{mb[1]}:{mb[1]+1}]")
    a("s_waitcnt lgkmcnt(0)")
    a("s_barrier")
    a(f"ds_read_b128 {v(vE,4)}, v{vT+1}")
    a(f"ds_read_b128 {v(vE+4,4)}, v{vT+2}")
    for i in range(2):
        a(f"v_cndmask_b32 v{g+8*i}, v{g+8*i}, v{g+8*i+4}, s[{mb[2]}:{mb[2]+1}]")
    a(f"v_cndmask_b32 v{g}, v{g}, v{g+8}, s[{mb[3]}:{mb[3]+1}]")
    a(f"v_cndmask_b32 v{g+2}, v{vQ+12}, v{vQ}, s[{mPar}:{mPar+1}]")
    a(f"v_mov_b32 v{g+1}, v{g}")
    a(f"v_mov_b32 v{g+3}, v{g+2}")
    a("s_nop 1")
    a(f"v_permlane32_swap_b32 v{g}, v{g+1}")
    a(f"v_permlane32_swap_b32 v{g+2}, v{g+3}")
    a("s_nop 1")
    a(f"v_cndmask_b32 v{g}, v{g}, v{g+1}, s[{mb[4]}:{mb[4]+1}]")
    a(f"v_cndmask_b32 v{g+2}, v{g+3}, v{g+2}, s[{mPar}:{mPar+1}]")
    a(f"v_mul_f32 v{g+2}, {hexf(1.0/448)}, v{g+2}")
    a(f"v_mul_f32 v{g+1}, v{g+2}, v{g+2}")
    a(f"v_mov_b32 v{g+3}, {hexf(1.0/448)}")
    a(f"v_fma_f32 v{g}, v{g}, v{g+3}, -v{g+1}")
    a(f"v_max_f32 v{g}, 0, v{g}")
    a(f"v_add_f32 v{g}, {hexf(1e-5)}, v{g}")
    a(f"v_rsq_f32 v{g}, v{g}")
    a("s_waitcnt lgkmcnt(1)")
    a(f"v_add_f32 v{vE}, v{vE}, v{vE+1}")
    a(f"v_add_f32 v{vE+2}, v{vE+2}, v{vE+3}")
    a(f"v_mul_f32 v{g+1}, v{g}, v{g+2}")
    a(f"v_add_f32 v{vE}, v{vE}, v{vE+2}")
    a(f"v_sub_f32 v{g+1}, 0, v{g+1}")
    a(f"ds_write_b32 v{vT+3}, v{vE}")
    a(f"ds_write_b32 v{vT+4}, v{g} offset:256")
    a(f"ds_write_b32 v{vT+4}, v{g+1} offset:384")
    a("s_waitcnt lgkmcnt(3)")
    a(f"v_add_f32 v{vE+4}, v{vE+4}, v{vE+5}")
    a(f"v_add_f32 v{vE+6}, v{vE+6}, v{vE+7}")
    qs = 28 ** -0.5 * math.log2(math.e)
    a(f"v_mul_f32 v{g+4}, {hexf(qs)}, v{g}")
    a(f"v_mul_f32 v{g+5}, {hexf(qs)}, v{g+1}")
    a(f"v_add_f32 v{g+6}, v{vE+4}, v{vE+6}")
    a("s_waitcnt lgkmcnt(0)")
    def rdb(i):
        a(f"ds_read_b128 {v(vE+4*i,4)}, v{vT+5} offset:{(i >> 2) * 128 + (i & 3) * 32}")
    if mg:
        for i in range(4, 16):
            rdb(i)
        a(f"v_bfe_u32 v{vT}, v{vL}, 4, 1")
        a(f"v_and_b32 v{vT+1}, 15, v{vL}")
        a(f"v_lshlrev_b32 v{vT+1}, 4, v{vT+1}")
        a(f"v_lshl_add_u32 v{vT}, v{vT}, 10, v{vT+1}")
        a(f"v_lshl_add_u32 v{vT+1}, v{vHi}, 8, v{vT}")
        a(f"v_lshl_add_u32 v{vT}, v{vHi}, 9, v{vT}")
        a(f"s_lshl_b32 s{sT0}, s{sWave}, 11")
        a(f"v_add_u32 v{vT+2}, s{sT0}, v{vT}")
        a(f"v_add_u32 v{vT+3}, s{sT0}, v{vT+1}")
        a(f"v_add_u32 v{vT+4}, s{sT0}, v{vT+2}")
        pk = vXf
        a(f"v_mov_b32 v{g+7}, 0x3f803f80")
        def qk(t, A_, B_, acc_):
            for r in range(16):
                a(f"v_mul_f32 v{vE+16*t+r}, v{B_}, v{vE+16*t+r}")
            for r in range(16):
                a(f"v_fma_f32 v{acc_+r}, v{A_}, v{acc_+r}, v{vE+16*t+r}")
            for r in range(8):
                a(f"v_cvt_pk_bf16_f32 v{pk+8*t+r}, v{acc_+2*r}, v{acc_+2*r+1}")
            pad = f"v{g+7}" if t == 0 else "0"
            for r in (0, 1):
                a(f"v_cndmask_b32 v{pk+8*t+r}, v{pk+8*t+r}, {pad}, s[{mA}:{mA+1}]")
            for r in (6, 7):
                a(f"v_cndmask_b32 v{pk+8*t+r}, v{pk+8*t+r}, {pad}, s[{mB}:{mB+1}]")
        a("s_waitcnt lgkmcnt(8)")
        for i in range(4):
            rdb(i)
        qk(1, g, g + 1, vK)
        for j in range(2):
            a(f"buffer_store_dwordx4 {v(pk+8+4*j,4)}, v{vT}, s[{rQ}:{rQ+3}], s{sKo} offen offset:{256*j} sc1")
        for j in range(2):
            a(f"ds_write_b128 v{vT+2}, {v(pk+8+4*j,4)} offset:{16384+256*j}")
        mg("ks")
        a("s_waitcnt lgkmcnt(6)" if not diag else "s_waitcnt lgkmcnt(0)")
        for r in range(16):
            a(f"v_mul_f32 v{vE+48+r}, v{g+6}, v{vE+48+r}")
        for r in range(16):
            a(f"v_fma_f32 v{vV+r}, v{vE+32+r}, v{vV+r}, v{vE+48+r}")
        for jj in range(2):
            for e, r in enumerate((4*jj, 4*jj+2, 8+4*jj, 8+4*jj+2)):
                a(f"v_cvt_pk_bf16_f32 v{pk+16+4*jj+e}, v{vV+r}, v{vV+r+1}")
        for r in range(8):
            a(f"v_cndmask_b32 v{pk+16+r}, v{pk+16+r}, v{g+7}, s[{mPadV}:{mPadV+1}]")
        for j in range(2):
            a(f"buffer_store_dwordx4 {v(pk+16+4*j,4)}, v{vT+1}, s[{rQ}:{rQ+3}], s{sVo} offen offset:{512*j} sc1")
        for j in range(2):
            a(f"ds_write_b128 v{vT+3}, {v(pk+16+4*j,4)} offset:{40960+512*j}")
        a("s_waitcnt lgkmcnt(4)")
        qk(0, g + 4, g + 5, vQ)
        for j in range(2):
            a(f"ds_write_b128 v{vT+4}, {v(pk+4*j,4)} offset:{24576+256*j}")
        a("s_waitcnt vmcnt(4)")
        spin(flld)
        a("s_barrier")
        return
    for i in range(12):
        rdb(i)
    a(f"s_lshl_b32 s{sT0}, s{sH}, 4")
    a(f"s_add_u32 s{sT0}, s{sT0}, s{sTb}")
    a(f"s_lshl_b32 s{sT0}, s{sT0}, 2")
    a(f"s_add_u32 s{sT0}, s{sT0}, s{sWave}")
    a(f"s_lshl_b32 s{sT0}, s{sT0}, 11")
    a(f"s_lshl_b32 s{sOX+1}, s{sH}, 14")
    a(f"s_add_u32 s{sT1}, s{sT0}, s{sOX+1}")
    a(f"s_add_u32 s{sOX}, s{sT1}, {WS_VF + 16384}")
    a(f"s_add_u32 s{sT1}, s{sT1}, {WS_KF + 16384}")
    a(f"s_mul_i32 s{sOX+1}, s{sH}, {HSTR}")
    a(f"s_lshl_b32 s{sOX+2}, s{sTb}, 10")
    a(f"s_add_u32 s{sOX+1}, s{sOX+1}, s{sOX+2}")
    a(f"s_add_u32 s{sOX+2}, s{sOX+1}, {WS_VF}")
    a(f"s_add_u32 s{sOX+1}, s{sOX+1}, {WS_KF}")
    a(f"v_bfe_u32 v{vT}, v{vL}, 4, 1")
    a(f"v_and_b32 v{vT+1}, 15, v{vL}")
    a(f"v_lshlrev_b32 v{vT+1}, 4, v{vT+1}")
    a(f"v_lshl_add_u32 v{vT}, v{vT}, 10, v{vT+1}")
    a(f"v_lshl_add_u32 v{vT+1}, v{vHi}, 8, v{vT}")
    a(f"v_lshl_add_u32 v{vT}, v{vHi}, 9, v{vT}")
    pk = vXf
    a(f"v_mov_b32 v{g+7}, 0x3f803f80")
    for t, (A_, B_, acc_) in enumerate(((g + 4, g + 5, vQ), (g, g + 1, vK))):
        a(f"s_waitcnt lgkmcnt(8)")
        if t == 0:
            for i in range(12, 16):
                rdb(i)
        for r in range(16):
            a(f"v_mul_f32 v{vE+16*t+r}, v{B_}, v{vE+16*t+r}")
        for r in range(16):
            a(f"v_fma_f32 v{acc_+r}, v{A_}, v{acc_+r}, v{vE+16*t+r}")
        for r in range(8):
            a(f"v_cvt_pk_bf16_f32 v{pk+8*t+r}, v{acc_+2*r}, v{acc_+2*r+1}")
        pad = f"v{g+7}" if t == 0 else "0"
        for r in (0, 1):
            a(f"v_cndmask_b32 v{pk+8*t+r}, v{pk+8*t+r}, {pad}, s[{mA}:{mA+1}]")
        for r in (6, 7):
            a(f"v_cndmask_b32 v{pk+8*t+r}, v{pk+8*t+r}, {pad}, s[{mB}:{mB+1}]")
        so = sT0 if t == 0 else sT1
        a(f"buffer_store_dwordx4 {v(pk+8*t,4)}, v{vT}, s[{rQ}:{rQ+3}], s{so} offen")
        a(f"buffer_store_dwordx4 {v(pk+8*t+4,4)}, v{vT}, s[{rQ}:{rQ+3}], s{so} offen offset:256")
    a("s_waitcnt lgkmcnt(0)")
    for r in range(16):
        a(f"v_mul_f32 v{vE+48+r}, v{g+6}, v{vE+48+r}")
    for r in range(16):
        a(f"v_fma_f32 v{vV+r}, v{vE+32+r}, v{vV+r}, v{vE+48+r}")
    for jj in range(2):
        for e, r in enumerate((4*jj, 4*jj+2, 8+4*jj, 8+4*jj+2)):
            a(f"v_cvt_pk_bf16_f32 v{pk+16+4*jj+e}, v{vV+r}, v{vV+r+1}")
    for r in range(8):
        a(f"v_cndmask_b32 v{pk+16+r}, v{pk+16+r}, v{g+7}, s[{mPadV}:{mPadV+1}]")
    a(f"buffer_store_dwordx4 {v(pk+16,4)}, v{vT+1}, s[{rQ}:{rQ+3}], s{sOX} offen")
    a(f"buffer_store_dwordx4 {v(pk+20,4)}, v{vT+1}, s[{rQ}:{rQ+3}], s{sOX} offen offset:512")
    lab = a.label("k1neg")
    a(f"s_cmp_lg_u32 s{sWave}, 0")
    a(f"s_cbranch_scc1 {lab}")
    a(f"v_mov_b32 v{vE+8}, 0xfb80fb80")
    for r in range(8):
        if r in (0, 1, 6, 7):
            m_ = mA if r < 2 else mB
            a(f"v_cndmask_b32 v{vE+r}, 0, v{vE+8}, s[{m_}:{m_+1}]")
        else:
            a(f"v_mov_b32 v{vE+r}, 0")
    for r in range(4):
        a(f"v_mov_b32 v{vE+12+r}, 0")
    a(f"buffer_store_dwordx4 {v(vE+12,4)}, v{vPo+4}, s[{rQ}:{rQ+3}], s{sOX+2} offen")
    a("s_mov_b32 exec_lo, 0xffff")
    a("s_mov_b32 exec_hi, 0xffff")
    a(f"buffer_store_dwordx4 {v(vE,4)}, v{vT}, s[{rQ}:{rQ+3}], s{sOX+1} offen")
    a(f"buffer_store_dwordx4 {v(vE+4,4)}, v{vT}, s[{rQ}:{rQ+3}], s{sOX+1} offen offset:256")
    a("s_mov_b64 exec, -1")
    a(f"{lab}:")
    if pf and not diag:
        a("s_waitcnt vmcnt(0)")
    if diag:
        a("s_waitcnt vmcnt(0)")
        stamp(a, 4, sTS, diag)
        stamp_flush(a, 5, sTS, sWS, sWave, kidx, vT, diag)
    a(f"{done}:")
    a("s_endpgm")
    return dict(name=name, grid=NWG, block=256, lds=LDS, vgprs=R.hi)
```

```python
import sys, os
sys.path.insert(0, os.path.dirname(os.path.abspath(__file__)))
from asmlib import *
from layout import *
import gemm

NAME = "sequential_preLN__sliding_block__mixer_token_mlp__prompt"

def empty_kernel(a, name):
    kernel_header(a, name)
    a("s_endpgm")
    return dict(name=name, grid=256, block=256, lds=0, vgprs=8)

def build(opts):
    a = Asm()
    ks = []
    diag = int(opts.get("diag", 0))
    only = opts.get("only", "F" if int(opts.get("mg", 0)) else "1F")
    plain = int(opts.get("plain", 0))
    if "spin" in opts:
        gemm.MARK[0] = 1
    if "1" in only:
        import qkv
        ks.append(qkv.qkv_kernel(a, "qkv_kernel", diag=diag, kidx=0, opts=opts))
    if "F" in only:
        import fused
        ks.append(fused.fused_kernel(a, NAME + "_kernel" if plain else "attn_mix_kernel", diag=diag, kidx=1, opts=opts))
    if "2" in only:
        import attn
        ks.append(attn.attn_kernel(a, "attn_kernel", diag=diag, kidx=1, opts=opts))
    if "3" in only:
        import proj
        ks.append(proj.proj_kernel(a, "proj_kernel", diag=diag, kidx=2, opts=opts))
    if "4" in only:
        ks.append(gemm.gemm_kernel(a, "mix1_kernel", 1, DEPTH=int(opts.get("d4", 12)), diag=diag, kidx=3, opts=opts))
    if "5" in only:
        ks.append(gemm.gemm_kernel(a, "mix2_kernel", 2, DEPTH=int(opts.get("d5", 12)), diag=diag, kidx=4, opts=opts))
    if "spin" in opts:
        i, j, m = map(int, opts["spin"].split(","))
        ks.append(gemm.spin_kernel(a, "spin_kernel", i, j, m))
    launches = list(ks)
    nempty = int(opts.get("empty", 0))
    if nempty:
        e = empty_kernel(a, "nop_kernel")
        ks.append(e)
        launches += [e] * nempty
    for k in ks:
        kernel_desc(a, k["name"], k["vgprs"], k.get("agprs", 0))
    hdr = ["; hand-written generator output (gen/*.py): LN+QKV, sliding-window attention, Wo+LN, token-mixing MLP",
           "; kernarg: 0 x, 8 wqkv, 16 wo, 24 (unused), 32 w1, 40 b1, 48 w2, 56 b2, 64 out, 72 debug, 80 ws"]
    for k in launches:
        hdr.append(f"; @launch {'' if plain else 'kernel=' + k['name'] + ' '}grid=({k['grid']},1,1) block=({k['block']},1,1) lds={k['lds']}")
    hdr.append('.amdgcn_target "amdgcn-amd-amdhsa--gfx950"')
    return "\n".join(hdr) + "\n" + a.text()

if __name__ == "__main__":
    args = sys.argv[1:]
    out = f"cdna_kernels/{NAME}.s"
    opts = {}
    for x in args:
        if "=" in x:
            k, v_ = x.split("=", 1); opts[k] = v_
        else:
            out = x
    t = build(opts)
    open(out, "w").write(t)
    print("wrote", out, len(t), "bytes")
```
